```python
import torch

def _softmax(x, axis=-1):
    return torch.softmax(x, dim=axis)
def _gelu(x):
    return torch.nn.functional.gelu(x, approximate="tanh")
def _silu(x):
    return torch.nn.functional.silu(x)
def _sigmoid(x):
    return torch.sigmoid(x)
def _layernorm(x, axis=-1, eps=1e-5):
    m = x.mean(dim=axis, keepdim=True)
    v = x.var(dim=axis, keepdim=True, unbiased=False)
    return (x - m) / torch.sqrt(v + eps)
def _scatter_add(tgt, idx, src, axis=0):
    return tgt.clone().index_add_(axis, idx, src)
def _segment_sum(src, seg, n):
    out = torch.zeros((n,) + src.shape[1:], dtype=src.dtype)
    return out.index_add_(0, seg, src)
def _pad(x, pw):
    flat = tuple(v for pair in reversed(pw) for v in pair)
    return torch.nn.functional.pad(x, flat)

kernel_name = 'standalone__fft_conv__vision'

def setup_inputs():

    _w = (lambda a: (lambda t: t.to(torch.bfloat16) if t.is_floating_point() else t)(torch.as_tensor(a)))
    H = W = 224
    C = 96
    K = 7
    return {
        "x": _w((lambda *s: torch.randn(*s, dtype=torch.bfloat16) * 0.05)(1, H, W, C)),
        "w": _w((lambda *s: torch.randn(*s, dtype=torch.bfloat16) * 0.05)(K, K, C, C)),
    }

def reference(x, w):
    B, H, W, C = x.shape
    K = w.shape[0]
    wp = _pad(w, ((0, H - K), (0, W - K), (0, 0), (0, 0)))
    Xf = (lambda x, axes=(-2,-1): torch.fft.rfft2(x.float(), dim=axes))(x, axes=(1, 2))
    Wf = (lambda x, axes=(-2,-1): torch.fft.rfft2(x.float(), dim=axes))(wp, axes=(0, 1))
    Yf = torch.einsum('bhwi,hwio->bhwo', Xf, Wf)
    y = (lambda x, s, axes=(-2,-1): torch.fft.irfft2(x, s=s, dim=axes).to(torch.bfloat16))(Yf, (H, W), axes=(1, 2))
    return y
```

```python
import numpy as np
def bf16r(x):
    x = np.asarray(x, dtype=np.float32)
    u = x.view(np.uint32)
    r = ((u + 0x7FFF + ((u >> 16) & 1)) & 0xFFFF0000).astype(np.uint32)
    return r.view(np.float32)
def bf16bits(x):
    return (bf16r(x).view(np.uint32) >> 16).astype(np.uint16)
def bits2f(u16):
    return (u16.astype(np.uint32) << 16).view(np.float32)

def build(m, pts, r=7):
    T = m + r - 1
    assert len(pts) == T
    def E(n):
        M = np.zeros((T, n), dtype=np.complex128)
        for j, p in enumerate(pts):
            if p == 'inf': M[j, n - 1] = 1
            else: M[j] = [p ** k for k in range(n)]
        return M
    C = np.linalg.inv(E(T))
    return E(m).T, E(r), C.T

class Cfg:
    pass

def cfg16():
    c = Cfg()
    c.T, c.m, c.S, c.NT = 16, 10, 8, 23
    c.TPC = 29
    c.NREG = 42
    a = 1.443
    th1, th2 = np.deg2rad(45.8), np.deg2rad(75.6)
    P = [np.exp(1j * th1), np.exp(1j * th2), np.exp(1j * (np.pi - th2)), np.exp(1j * (np.pi - th1))]
    R = [(0.0, 'inf'), (1.0, -1.0), (a, -a), (1 / a, -1 / a)]
    c.units = 'PRR'
    pts = []
    for w in range(4):
        pts += [P[w], np.conj(P[w]), R[w][0], R[w][1]]
    AT, G, BT = build(c.m, pts)
    c.BT = np.zeros((16, 16)); c.G = np.zeros((16, 7)); c.ATs = np.zeros((4, 5, c.m))
    for w in range(4):
        j = 4 * w
        sb = np.linalg.norm(BT[j]) / np.sqrt(2); sg = np.linalg.norm(G[j]) / np.sqrt(2)
        b = BT[j] / sb; g = G[j] / sg; at = AT[:, j] * sb * sg
        c.BT[j] = b.real; c.BT[j + 1] = b.imag; c.G[j] = g.real; c.G[j + 1] = g.imag
        c.ATs[w, 0] = 2 * at.real; c.ATs[w, 1] = -2 * at.imag; c.ATs[w, 2] = -2 * at.real
        for q in (2, 3):
            sb = np.linalg.norm(BT[j + q]); sg = np.linalg.norm(G[j + q])
            c.BT[j + q] = (BT[j + q] / sb).real; c.G[j + q] = (G[j + q] / sg).real
            c.ATs[w, 1 + q] = (AT[:, j + q] * sb * sg).real
    c.BT[np.abs(c.BT) < 1e-12] = 0; c.G[np.abs(c.G) < 1e-12] = 0; c.ATs[np.abs(c.ATs) < 1e-12] = 0
    return c

def track_info(c, q):
    t = q // c.TPC; tau = q % c.TPC
    real = (t < c.NT) and tau >= 1
    t = min(t, c.NT - 1)
    row0 = (c.S * tau - c.S) % 224
    return t, tau, row0, real

def emul_X(c, x):
    S = c.S
    XF = np.zeros((c.NREG, 4, 3, 4, S, 4, 16, 8), dtype=np.float32)
    BT = c.BT
    for q in range(c.NREG * 16):
        t, tau, row0, real = track_info(c, q)
        cols = (10 * t - 6 + np.arange(16)) % 224
        d = x[row0:row0 + S][:, cols, :].astype(np.float64)
        Xp = np.einsum('nw,rwc->nrc', BT, d)
        Xp = bf16r(Xp).reshape(4, 4, S, 3, 4, 8)
        XF[q // 16, :, :, :, :, :, q % 16, :] = Xp.transpose(0, 3, 1, 2, 4, 5)
    return XF

def emul_W(c, w):
    g = w[:, ::-1].astype(np.float64)
    Wp = np.einsum('nk,hkio->nhio', c.G, g)
    Wp = bf16r(Wp).reshape(4, 4, 7, 3, 4, 8, 6, 16)
    return Wp.transpose(6, 0, 3, 1, 2, 4, 7, 5).copy()

def emul_Y(c, XF, WF, round_y=True):
    S = c.S
    y = np.zeros((224, 224, 96))
    X = XF.astype(np.float64).transpose(0, 6, 1, 3, 4, 2, 5, 7).reshape(c.NREG * 16, 4, 4, S, 96)
    W = WF.astype(np.float64).transpose(1, 3, 4, 2, 5, 7, 0, 6).reshape(4, 4, 7, 96, 96)
    AT = bf16r(c.ATs).astype(np.float64)
    for q in range(1, c.NREG * 16):
        t, tau, row0, real = track_info(c, q)
        if not real: continue
        ext = np.concatenate([X[q - 1][:, :, S - 6:], X[q]], axis=2)
        acc = np.zeros((4, 5, S, 96))
        for kh in range(7):
            xs = ext[:, :, 6 - kh:6 - kh + S]
            acc[:, 0] += np.einsum('wrc,wco->wro', xs[:, 0], W[:, 0, kh])
            acc[:, 1] += np.einsum('wrc,wco->wro', xs[:, 0], W[:, 1, kh]) + np.einsum('wrc,wco->wro', xs[:, 1], W[:, 0, kh])
            acc[:, 2] += np.einsum('wrc,wco->wro', xs[:, 1], W[:, 1, kh])
            acc[:, 3] += np.einsum('wrc,wco->wro', xs[:, 2], W[:, 2, kh])
            acc[:, 4] += np.einsum('wrc,wco->wro', xs[:, 3], W[:, 3, kh])
        if round_y: acc = bf16r(acc).astype(np.float64)
        o = np.einsum('wsi,wsro->rio', AT, acc)
        n = min(10, 224 - 10 * t)
        y[row0:row0 + S, 10 * t:10 * t + n] = o[:, :n]
    return y

if __name__ == '__main__':
    c = cfg16()
    np.set_printoptions(precision=4, suppress=True, linewidth=200)
    print('BT\n', c.BT); print('G\n', c.G); print('AT\n', c.ATs.reshape(20, 10))
    rng = np.random.default_rng(0)
    x = bf16r(rng.standard_normal((224, 224, 96)) * 0.05); w = bf16r(rng.standard_normal((7, 7, 96, 96)) * 0.05)
    XF = emul_X(c, x); WF = emul_W(c, w)
    y = emul_Y(c, XF, WF)
    ref = np.zeros((224, 224, 96))
    xd = x.astype(np.float64)
    for kh in range(7):
        for kw in range(7):
            ref += (np.roll(xd, (kh, kw), (0, 1)).reshape(-1, 96) @ w[kh, kw].astype(np.float64)).reshape(224, 224, 96)
    err = bf16r(y) - bf16r(ref)
    print('max err', np.abs(err).max(), 'rms', np.sqrt((err ** 2).mean()), 'max ref', np.abs(ref).max(), 'thr', 8 * 2 ** -8 * np.abs(ref).max())
    e2 = (y - ref); print('per pixel-in-tile rms', [round(float(np.sqrt((e2[:, i:220:10] ** 2).mean())), 5) for i in range(10)])
```

```python
import re
def R(kind, base, n=1): return [(kind, base + i) for i in range(n)]
def V(b, n=1): return R('v', b, n)
def A(b, n=1): return R('a', b, n)
def rn(reg, n=4):
    k, b = reg
    return "%s%d" % (k, b) if n == 1 else "%s[%d:%d]" % (k, b, b + n - 1)
def regs(reg, n=4): return R(reg[0], reg[1], n)

class Em:
    def __init__(s):
        s.lines = []
        s.reset()
    def reset(s):
        s.pos = 0
        s.w = {}
        s.mc = {}
        s.sd = {}
        s.vm = []
        s.lg = []
        s.nwait = 0; s.nnop = 0; s.ninst = 0
    def raw(s, t): s.lines.append(t)
    def label(s, t): s.lines.append(t + ":")
    def cmt(s, t): s.lines.append("    ; " + t)
    def _e(s, t, n=1):
        s.lines.append("    " + t); s.pos += n; s.ninst += 1
    def nop(s, n):
        while n > 0:
            k = min(n, 16); s._e("s_nop %d" % (k - 1), k); n -= k; s.nnop += 1
    def salu(s, t): s._e(t)
    def _need(s, rs):
        rs = set(rs)
        nv = None; nl = None
        for i, d in enumerate(s.vm):
            if d & rs: nv = len(s.vm) - 1 - i
        for i, d in enumerate(s.lg):
            if d & rs: nl = len(s.lg) - 1 - i
        s.wait(nv, nl)
    def wait(s, nv=None, nl=None):
        p = []
        if nv is not None and len(s.vm) > nv:
            k = min(nv, 63); p.append("vmcnt(%d)" % k); s.vm = s.vm[len(s.vm) - k:] if k else []
        if nl is not None and len(s.lg) > nl:
            k = min(nl, 15); p.append("lgkmcnt(%d)" % k); s.lg = s.lg[len(s.lg) - k:] if k else []
        if p:
            s._e("s_waitcnt " + " ".join(p)); s.nwait += 1
    def wait_token(s, tok):
        s._need([tok])
    def _dist(s, rs, table, mc=False):
        need = 0
        for r in rs:
            if r in s.w:
                p, k = s.w[r]
                req = table.get(k, 0)
                need = max(need, req - (s.pos - p - 1))
        return need
    def _pad(s, n):
        if n > 0: s.nop(n)
    def mfma(s, d, a, b, c, op="v_mfma_f32_16x16x32_bf16"):
        D, Aa, Bb = regs(d), regs(a), regs(b)
        C = regs(c) if c is not None else []
        s._need(D + Aa + Bb + C)
        n = max(s._dist(Aa + Bb, {'valu': 2, 'mfma': 8}), s._dist(C, {'valu': 2}))
        if c is not None and c != d: n = max(n, s._dist(C, {'mfma': 8}))
        if c is None or c != d: n = max(n, s._dist(D, {'mfma': 6, 'valu': 0}))
        s._pad(n)
        s._e("%s %s, %s, %s, %s" % (op, rn(d), rn(a), rn(b), rn(c) if c is not None else "0"))
        for r in D: s.w[r] = (s.pos - 1, 'mfma')
        for r in C: s.mc[r] = s.pos - 1
    def valu(s, t, dst, src, dpp=(), perm=False):
        dst = list(dst); src = list(src); dpp = list(dpp)
        s._need(dst + src + dpp)
        n = max(s._dist(src + dpp + dst, {'mfma': 8}), s._dist(dpp, {'valu': 2}))
        if perm: n = max(n, s._dist(src + dst, {'valu': 2}))
        for r in dst:
            if r in s.mc: n = max(n, 3 - (s.pos - s.mc[r] - 1))
            if r in s.sd: n = max(n, 2 - (s.pos - s.sd[r] - 1))
        s._pad(n)
        s._e(t)
        for r in dst: s.w[r] = (s.pos - 1, 'valu')
    def vload(s, t, dst, src=(), tok=None):
        dst = list(dst)
        s._need(list(src))
        n = max(s._dist(dst, {'mfma': 8}), s._dist(src, {'mfma': 8}))
        for i, d in enumerate(s.lg):
            assert not (d & set(dst)), t
        s._pad(n)
        s._e(t)
        st = set(dst)
        if tok is not None: st.add(tok)
        s.vm.append(st)
        for r in dst: s.w.pop(r, None)
    def vstore(s, t, src, addr=(), tok=None):
        src = list(src)
        s._need(src + list(addr))
        s._pad(s._dist(src + list(addr), {'mfma': 8}))
        s._e(t)
        s.vm.append({tok} if tok is not None else set())
        for r in src: s.sd[r] = s.pos - 1
    def dsread(s, t, dst, src=()):
        dst = list(dst)
        s._need(list(src))
        for d in s.vm: assert not (d & set(dst)), t
        s._pad(max(s._dist(dst, {'mfma': 8}), s._dist(src, {'mfma': 8})))
        s._e(t)
        s.lg.append(set(dst))
        for r in dst: s.w.pop(r, None)
    def dswrite(s, t, src, addr=(), tok=None):
        s._need(list(src) + list(addr))
        s._pad(s._dist(list(src) + list(addr), {'mfma': 8}))
        s._e(t)
        s.lg.append({tok} if tok is not None else set())
    def barrier(s):
        s._e("s_barrier")
    def text(s): return "\n".join(s.lines) + "\n"
```

```python
import sys, os
import numpy as np
from emit import *
from consts import bf16bits, bf16r

def gen_k2(G):
    env = G['env']; cfg = G['cfg']; S = G['S']; NREG = G['NREG']; NC = G['NC']; NCH = G['NCH']
    XW, XREG, XF_SIZE, WW, WF_OFF, WF_SIZE, ST_OFF, XBYTES, ROWB = [G[k] for k in 'XW XREG XF_SIZE WW WF_OFF WF_SIZE ST_OFF XBYTES ROWB'.split()]
    STAMP = env('STAMP', 0)
    ORDER = env('ORDER', 'half'); PACE = env('PACE', 5); MAXF = env('MAXF', 2); WLAT = env('WLAT', 90)
    UNITS = 'PRR'
    E = Em(); e = E.salu
    va = lambda t, d, s_, **kw: E.valu(t, d, s_, **kw)
    class Frag:
        def __init__(s, kind, ch, c, idx, off):
            s.kind, s.ch, s.c, s.idx, s.off = kind, ch, c, idx, off
            s.first = None; s.last = None; s.reg = None; s.issue = None
        def __repr__(s): return "%s(ch%d c%d i%d)" % (s.kind, s.ch, s.c, s.idx)
    X = {}; Hf = {}; W = {}
    for ch in range(NCH):
        for c in range(NC):
            for r in range(S): X[ch, c, r] = Frag('X', ch, c, r, ((ch * NC + c) * S + r) * 1024)
            Hf[ch, c] = Frag('H', ch, c, 0, ((ch * NC + c) * S) * 1024)
            for kh in range(7): W[ch, c, kh] = Frag('W', ch, c, kh, ((ch * NC + c) * 7 + kh) * 1024)
    accs = {}
    for sl in range(5):
        for r in range(S): accs[sl, r] = len(accs)
    ops = []
    def op(sl, r, ch, c, kh, cw): ops.append(((sl, r), (ch, c, r - kh), W[ch, cw, kh]))
    def stage(ch, u):
        if u == 0:
            halves = {'half': [[0, 1, 2, 3], [4, 5, 6]], 'full': [list(range(7))], 'kh': [[i] for i in range(7)]}[ORDER]
            for hs in halves:
                for r in range(S - 1, -1, -1):
                    for kh in hs: op(0, r, ch, 0, kh, 0)
                    for kh in hs[::-1]: op(1, r, ch, 0, kh, 1)
                    for kh in hs: op(1, r, ch, 1, kh, 0)
                    for kh in hs[::-1]: op(2, r, ch, 1, kh, 1)
        else:
            fl = 0
            for r in range(S - 1, -1, -1):
                ks = list(range(7))
                for kh in (ks[::-1] if fl else ks): op(2 + u, r, ch, 1 + u, kh, 1 + u)
                fl ^= env('RFLIP', 0)
    for ch in range(NCH):
        for u in range(3): stage(ch, u)
    N = len(ops)
    use = {}
    for i, (a, xk, w) in enumerate(ops):
        use.setdefault(xk, [i, i])[1] = i
        if w.first is None: w.first = i
        w.last = i
    shifts = []
    for (ch, c, r), f in X.items():
        f.first, f.last = use[ch, c, r]
        if (ch, c, r - S) in use:
            a, b = use[ch, c, r - S]
            assert f.last < a - 12, (ch, c, r, f.last, a)
            shifts.append([f, S - r, f.last, a]); f.last = b
    for (ch, c), h in Hf.items():
        sh = [s_ for s_ in shifts if s_[0].ch == ch and s_[0].c == c]
        h.first = max(env('H0', 8), min(s_[2] for s_ in sh) - env('HEARLY', 20)); h.last = max(s_[3] for s_ in sh)
    V_L16, V_HOFF = 1, 2
    VP0 = 8
    accreg = {k: ('a', 4 * i) for k, i in accs.items()}
    vfree = [('v', x) for x in range(VP0, 253, 4)]
    afree = [('a', x) for x in range(160, 253, 4)]
    frags = list(X.values()) + list(Hf.values()) + list(W.values())
    frags.sort(key=lambda f: (f.first, {'W': 1, 'X': 0, 'H': 2}[f.kind]))
    gap = [[] for _ in range(N + 1)]
    pending = list(frags); active = []; pre = []
    def alloc(f):
        if f.kind == 'W':
            if afree: return afree.pop(0)
            return vfree.pop(0) if len(vfree) > env('VRES', 10) else None
        return vfree.pop(0) if vfree else None
    def release(upto):
        for f in list(active):
            if f.last < upto:
                active.remove(f); (afree if f.reg[0] == 'a' else vfree).append(f.reg)
    while pending and len(pre) < env('NPRE', 16):
        f = pending.pop(0); f.reg = alloc(f); f.issue = -1; pre.append(f); active.append(f)
    lastload = -100
    for i in range(1, N):
        release(i - 1)
        pace = env('PACE0', PACE) if i < env('RAMP', 0) else PACE
        if pending and (i - lastload >= pace or pending[0].first - i < env('URG', 40)):
            f = pending[0]; r = alloc(f)
            if r is not None:
                f.reg = r; f.issue = i; active.append(f); pending.pop(0); gap[i].append(('load', f)); lastload = i
            elif f.first - i < 3: raise Exception("no register for %s at %d" % (f, i))
    assert not pending
    cnt = [len(g) for g in gap]
    q = []
    for f, n, lo, hi in shifts:
        h = Hf[f.ch, f.c]
        lo2 = max(lo + 1, min(h.issue + env('HLAT', 60), hi - 20) if h.issue > 0 else 0)
        q.append(dict(lo=lo2, hi=hi - 3, ins=[('mv', f, n, d) for d in range(4)] + [('cm', f, n, d) for d in range(4)]))
    for i in range(1, N):
        k = 0
        while True:
            avail = sorted([x for x in q if x['lo'] <= i and x['ins']], key=lambda x: x['hi'])
            if not avail or k >= MAXF - cnt[i]: break
            urgent = False
            tot = 0
            for y in sorted([x for x in q if x['ins'] and x['lo'] <= i + 40], key=lambda x: x['hi']):
                tot += len(y['ins'])
                cap = sum(1 for g in range(i + 1, y['hi'] + 1) if cnt[g] == 0)
                if tot - 1 > cap * env('URGF', 0.9): urgent = True; break
            if k < 1 - cnt[i] or urgent:
                x = avail[0]
                assert i <= x['hi'], ("shift late", x['ins'][0], i, x['hi'])
                gap[i].append(x['ins'].pop(0)); k += 1
            else: break
        cnt[i] += k
    assert all(not x['ins'] for x in q)
    e("s_load_dwordx2 s[8:9], s[0:1], 32")
    e("s_load_dwordx2 s[4:5], s[0:1], 16")
    if STAMP: e("s_memtime s[70:71]"); e("s_memrealtime s[80:81]")
    e("s_getpc_b64 s[10:11]")
    E.label("K2_pc")
    e("s_cmp_ge_u32 s2, 256"); e("s_cbranch_scc1 K2_end")
    va("v_lshrrev_b32 v3, 6, v0", V(3), V(0))
    if env('CPF', 1):
        va("v_lshlrev_b32 v4, 7, v0", V(4), V(0))
        va("v_min_u32 v4, K2_code_end-K2_pc-4, v4", V(4), V(4))
    va("v_and_b32 v0, 63, v0", V(0), V(0))
    E.nop(1)
    e("v_readfirstlane_b32 s24, v3")
    if env('CPF', 1):
        e("s_cmp_ge_u32 s2, 8"); e("s_cbranch_scc1 K2_nocpf")
        E.vload("global_load_dword v5, v4, s[10:11]", V(5), V(4))
        E.label("K2_nocpf")
    e("s_and_b32 s25, s2, 7"); e("s_lshr_b32 s26, s2, 3")
    e("s_mul_i32 s27, s26, 43"); e("s_lshr_b32 s27, s27, 8"); e("s_mul_i32 s28, s27, 6"); e("s_sub_u32 s28, s26, s28")
    e("s_lshl_b32 s27, s27, 3"); e("s_add_u32 s27, s27, s25")
    e("s_cmp_lt_u32 s26, 30"); e("s_cbranch_scc1 K2_map")
    e("s_lshl_b32 s29, s25, 1"); e("s_add_u32 s29, s29, s26"); e("s_sub_u32 s29, s29, 30")
    e("s_mul_i32 s27, s29, 43"); e("s_lshr_b32 s27, s27, 8"); e("s_mul_i32 s28, s27, 6"); e("s_sub_u32 s28, s29, s28"); e("s_add_u32 s27, s27, 40")
    E.label("K2_map")
    e("s_cmp_ge_u32 s27, %d" % NREG); e("s_cbranch_scc1 K2_end")
    va("v_lshlrev_b32 v%d, 4, v0" % V_L16, V(V_L16), V(0))
    va("v_and_b32 v3, 15, v0", V(3), V(0))
    va("v_cmp_ne_u32 vcc, 0, v3", [], V(3))
    va("v_min_u32 v3, 5, v3", V(3), V(3))
    va("v_add_u32 v3, %d, v3" % (S - 6), V(3), V(3))
    va("v_lshlrev_b32 v3, 10, v3", V(3), V(3))
    va("v_lshrrev_b32 v4, 4, v0", V(4), V(0))
    va("v_lshl_add_u32 v3, v4, 8, v3", V(3), V(3) + V(4))
    va("v_add_u32 v%d, 240, v3" % V_HOFF, V(V_HOFF), V(3))
    for j in range(1, 24): e("s_mov_b32 s%d, %d" % (39 + j, j * 4096))
    e("s_lshl_b32 s29, s27, 2"); e("s_add_u32 s29, s29, s24"); e("s_mul_i32 s29, s29, %d" % XW)
    e("s_max_u32 s30, s27, 1"); e("s_sub_u32 s30, s30, 1"); e("s_lshl_b32 s30, s30, 2"); e("s_add_u32 s30, s30, s24"); e("s_mul_i32 s30, s30, %d" % XW)
    e("s_lshl_b32 s31, s28, 2"); e("s_add_u32 s31, s31, s24"); e("s_mul_i32 s31, s31, %d" % WW); e("s_add_u32 s31, s31, %d" % WF_OFF)
    e("s_waitcnt lgkmcnt(0)")
    for sr, o, sz in ((12, 29, XW), (16, 31, WW), (20, 30, XW)):
        e("s_add_u32 s%d, s8, s%d" % (sr, o)); e("s_addc_u32 s%d, s9, 0" % (sr + 1)); e("s_and_b32 s%d, s%d, 0xffff" % (sr + 1, sr + 1))
        e("s_mov_b32 s%d, %d" % (sr + 2, sz)); e("s_mov_b32 s%d, 0x00020000" % (sr + 3))
    slotof = {}
    def load(f, slot):
        so = f.off // 4096; io = f.off % 4096
        sreg = "0" if so == 0 else "s%d" % (39 + so)
        srd, vo = {'X': ("s[12:15]", V_L16), 'W': ("s[16:19]", V_L16), 'H': ("s[20:23]", V_HOFF)}[f.kind]
        E.vload("buffer_load_dwordx4 %s, v%d, %s, %s offen offset:%d" % (rn(f.reg), vo, srd, sreg, io), regs(f.reg), V(vo), tok=('slot', slot))
    def prewait(rs, cur):
        rs = set(rs); idx = None
        for i, d in enumerate(E.vm):
            if d & rs: idx = i
        if idx is None: return
        while idx + 1 < len(E.vm):
            sl = [t[1] for t in E.vm[idx + 1] if t[0] == 'slot']
            if sl and sl[0] >= 0 and sl[0] + WLAT <= cur: idx += 1
            else: break
        E.wait(len(E.vm) - 1 - idx, None)
    for f in pre: load(f, -1)
    if STAMP: e("s_memtime s[72:73]")
    started = set()
    for i in range(N):
        for x in gap[i]:
            if x[0] == 'load': load(x[1], i)
            elif x[0] == 'mv':
                r = x[1].reg[1] + x[3]; prewait(V(r), i)
                va("v_mov_b32_dpp v%d, v%d row_shr:1 row_mask:0xf bank_mask:0xf" % (r, r), V(r), [], dpp=V(r))
            elif x[0] == 'cm':
                r = x[1].reg[1] + x[3]; h = Hf[x[1].ch, x[1].c].reg[1] + x[3]; n = 6 - x[2]
                prewait(V(h), i)
                if n > 0: va("v_cndmask_b32_dpp v%d, v%d, v%d, vcc row_shl:%d row_mask:0xf bank_mask:0xf" % (r, h, r, n), V(r), V(r), dpp=V(h))
                else: va("v_cndmask_b32 v%d, v%d, v%d, vcc" % (r, h, r), V(r), V(r) + V(h))
        a, (ch, c, rho), w = ops[i]
        xf = X[ch, c, rho if rho >= 0 else rho + S]
        prewait(regs(xf.reg) + regs(w.reg), i)
        if STAMP:
            if i == 0: e("s_memtime s[74:75]"); e("s_memrealtime s[88:89]")
            if i == N // 3: e("s_memtime s[84:85]"); e("s_memrealtime s[90:91]")
            if i == 2 * N // 3: e("s_memtime s[86:87]"); e("s_memrealtime s[92:93]")
        E.mfma(accreg[a], xf.reg, w.reg, accreg[a] if a in started else None)
        started.add(a)
    if STAMP: e("s_memtime s[76:77]"); e("s_memrealtime s[82:83]")
    PL = 32768
    STG = 3 * PL
    LDS = STG + 4 * 16384
    va("v_lshlrev_b32 v3, 4, v0", V(3), V(0))
    e("s_add_u32 s10, s10, K2_at-K2_pc"); e("s_addc_u32 s11, s11, 0")
    E.vload("global_load_dwordx4 v[8:11], v3, s[10:11]", V(8, 4), V(3))
    va("v_and_b32 v3, 15, v0", V(3), V(0))
    va("v_lshrrev_b32 v4, 4, v0", V(4), V(0))
    va("v_lshlrev_b32 v4, 10, v4", V(4), V(4))
    va("v_lshl_add_u32 v4, v3, 4, v4", V(4), V(4) + V(3))
    e("s_lshr_b32 s33, s24, 1"); e("s_mul_i32 s33, s33, %d" % PL); e("s_and_b32 s34, s24, 1"); e("s_lshl_b32 s34, s34, 3"); e("s_add_u32 s33, s33, s34")
    va("v_add_u32 v5, s33, v4", V(5), V(4))
    e("s_lshl_b32 s33, s24, 2"); e("s_add_u32 s33, s33, %d" % (2 * PL))
    va("v_add_u32 v6, s33, v4", V(6), V(4))
    T0 = 16
    for r in range(S):
        for j in range(4):
            t = T0 + 8 * ((r * 4 + j) % 8)
            for sl in range(5):
                ar = accreg[sl, r][1] + j
                va("v_accvgpr_read_b32 v%d, a%d" % (t + sl, ar), V(t + sl), A(ar))
            va("v_cvt_pk_bf16_f32 v%d, v%d, v%d" % (t, t, t + 1), V(t), V(t, 2))
            va("v_cvt_pk_bf16_f32 v%d, v%d, v%d" % (t + 1, t + 2, t + 3), V(t + 1), V(t + 2, 2))
            va("v_cvt_pk_bf16_f32 v%d, v%d, 0" % (t + 2, t + 4), V(t + 2), V(t + 4))
            off = (r * 16 + j) * 256
            E.dswrite("ds_write_b64 v5, v[%d:%d] offset:%d" % (t, t + 1, off), V(t, 2), V(5))
            E.dswrite("ds_write_b32 v6, v%d offset:%d" % (t + 2, off), V(t + 2), V(6))
    va("v_lshrrev_b32 v12, 5, v0", V(12), V(0))
    va("v_bfe_u32 v13, v0, 1, 4", V(13), V(0))
    va("v_and_b32 v14, 1, v0", V(14), V(0))
    e("s_mov_b32 s38, 224"); e("s_mov_b32 s35, 2260"); e("s_mov_b32 s36, %d" % ROWB); e("s_mov_b32 s37, 192")
    for p in range(2):
        o = 80 + p
        e("s_lshl_b32 s33, s27, 4"); e("s_lshl_b32 s34, s24, 2"); e("s_add_u32 s33, s33, s34"); e("s_add_u32 s33, s33, %d" % (2 * p))
        va("v_add_u32 v82, s33, v12", V(82), V(12))
        va("v_mul_u32_u24 v83, s35, v82", V(83), V(82))
        va("v_lshrrev_b32 v83, 16, v83", V(83), V(83))
        va("v_mul_u32_u24 v84, 29, v83", V(84), V(83))
        va("v_sub_u32 v84, v82, v84", V(84), V(82) + V(84))
        va("v_mul_u32_u24 v85, 10, v83", V(85), V(83))
        va("v_add_u32 v85, v85, v13", V(85), V(85) + V(13))
        va("v_subrev_u32 v86, 1, v84", V(86), V(84))
        va("v_mul_u32_u24 v86, %d, v86" % (8 * 224), V(86), V(86))
        va("v_add_u32 v86, v86, v85", V(86), V(86) + V(85))
        va("v_mul_lo_u32 v86, v86, s37", V(86), V(86))
        va("v_lshl_add_u32 v86, v14, 4, v86", V(86), V(86) + V(14))
        e("s_lshl_b32 s34, s28, 5")
        va("v_add_u32 v86, s34, v86", V(86), V(86))
        va("v_mov_b32 v87, 0x7fffffff", V(87), [])
        va("v_cmp_ne_u32 s[60:61], 0, v84", [], V(84))
        va("v_cmp_gt_u32 s[62:63], 10, v13", [], V(13))
        va("v_cmp_gt_u32 s[64:65], s38, v85", [], V(85))
        E.nop(4)
        e("s_and_b64 s[60:61], s[60:61], s[62:63]"); e("s_and_b64 s[60:61], s[60:61], s[64:65]")
        E.nop(1)
        va("v_cndmask_b32 v%d, v87, v86, s[60:61]" % o, V(o), V(86) + V(87))
    e("s_mov_b32 s6, %d" % XBYTES); e("s_mov_b32 s7, 0x00020000"); e("s_and_b32 s5, s5, 0xffff")
    va("v_lshrrev_b32 v3, 4, v0", V(3), V(0))
    va("v_min_u32 v3, 2, v3", V(3), V(3))
    va("v_lshlrev_b32 v3, 15, v3", V(3), V(3))
    va("v_and_b32 v4, 15, v0", V(4), V(0))
    va("v_lshl_add_u32 v3, v4, 4, v3", V(3), V(3) + V(4))
    e("s_lshl_b32 s33, s24, 10")
    va("v_add_u32 v7, s33, v3", V(7), V(3))
    e("s_lshl_b32 s33, s24, 14"); e("s_add_u32 s33, s33, %d" % STG)
    va("v_lshrrev_b32 v3, 4, v0", V(3), V(0))
    va("v_lshlrev_b32 v3, 3, v3", V(3), V(3))
    va("v_lshl_add_u32 v3, v4, 5, v3", V(3), V(3) + V(4))
    va("v_add_u32 v88, s33, v3", V(88), V(3))
    va("v_lshlrev_b32 v3, 4, v0", V(3), V(0))
    va("v_add_u32 v89, s33, v3", V(89), V(3))
    E.wait(None, 0)
    E.barrier()
    for r in range(S):
        AF = 96 + 32 * (r % 2)
        for a in range(4):
            E.dsread("ds_read_b128 v[%d:%d], v7 offset:%d" % (AF + 4 * a, AF + 4 * a + 3, (r * 16 + a) * 256), V(AF + 4 * a, 4), V(7))
        for a in range(4):
            E.mfma(('v', AF + 16 + 4 * a), ('v', AF + 4 * a), ('v', 8), None)
        for a in range(4):
            d = AF + 16 + 4 * a
            va("v_cvt_pk_bf16_f32 v%d, v%d, v%d" % (d, d, d + 1), V(d), V(d, 2))
            va("v_cvt_pk_bf16_f32 v%d, v%d, v%d" % (d + 1, d + 2, d + 3), V(d + 1), V(d + 2, 2))
            E.dswrite("ds_write_b64 v88, v[%d:%d] offset:%d" % (d, d + 1, (r * 4 + a) * 512), V(d, 2), V(88))
        for p in range(2):
            o = 160 + 4 * ((2 * r + p) % 8)
            E.dsread("ds_read_b128 v[%d:%d], v89 offset:%d" % (o, o + 3, (r * 4 + 2 * p) * 512), V(o, 4), V(89))
        for p in range(2):
            o = 160 + 4 * ((2 * r + p) % 8)
            e("s_mov_b32 s33, %d" % (r * ROWB))
            E.vstore("buffer_store_dwordx4 v[%d:%d], v%d, s[4:7], s33 offen%s" % (o, o + 3, 80 + p, env('OSF', '')), V(o, 4), V(80 + p))
    if STAMP:
        e("s_memtime s[94:95]"); e("s_memrealtime s[66:67]"); e("s_waitcnt lgkmcnt(0)")
        e("s_add_u32 s4, s8, %d" % ST_OFF); e("s_addc_u32 s5, s9, 0"); e("s_and_b32 s5, s5, 0xffff"); e("s_mov_b32 s6, %d" % (256 * 4 * 64))
        e("s_lshl_b32 s33, s2, 2"); e("s_add_u32 s33, s33, s24"); e("s_lshl_b32 s33, s33, 6")
        for k2, sr in enumerate((70, 72, 74, 76, 80, 82, 84, 86, 88, 90, 92, 94, 66)):
            e("v_mov_b32 v6, s%d" % sr); e("v_mov_b32 v5, %d" % (4 * k2)); e("s_mov_b64 exec, 1")
            e("buffer_store_dword v6, v5, s[4:7], s33 offen"); e("s_mov_b64 exec, -1")
    E.label("K2_end")
    e("s_endpgm")
    tb = np.zeros((64, 8), dtype=np.float64)
    for l in range(64):
        n, kg = l % 16, l // 16
        if n >= cfg.m: continue
        if kg < 2:
            for ww in range(2):
                for sl in range(4): tb[l, 4 * ww + sl] = cfg.ATs[2 * kg + ww, sl, n]
        elif kg == 2:
            for ww in range(4): tb[l, 2 * ww] = cfg.ATs[ww, 4, n]
    E.raw(".p2align 8"); E.label("K2_at"); E.raw(G['table'](bf16bits(tb).reshape(-1)))
    E.label("K2_code_end")
    sys.stderr.write("K2: %d MFMA main, %d instr, %d waits, %d nops\n" % (N, E.ninst, E.nwait, E.nnop))
    return G['head']("k2_kernel") + E.text() + G['KD'] % ("k2_kernel", 512, 96, 256), LDS
```

```python
import sys, os, struct
import numpy as np
sys.path.insert(0, os.path.dirname(os.path.abspath(__file__)))
from emit import *
from consts import cfg16, bf16bits, bf16r
def env(k, d): return type(d)(os.environ.get(k, d))
cfg = cfg16()
S = 8; NREG = 42; NC = 4; NCH = 3
XW = NCH * NC * S * 1024
XREG = 4 * XW
XF_SIZE = NREG * XREG
WW = NCH * NC * 7 * 1024
WF_OFF = XF_SIZE
WF_SIZE = 24 * WW
ST_OFF = WF_OFF + WF_SIZE
XBYTES = 224 * 224 * 96 * 2
WBYTES = 49 * 96 * 96 * 2
ROWB = 224 * 192
NXWG = 672; NWWG = 504
K1_LDS = 8 * 3088
STAMP = env('STAMP', 0)
K1SF = env('K1SF', ' sc1')
def f2h(x): return '0x%08x' % struct.unpack('<I', struct.pack('<f', float(x)))[0]

KD = """.section .rodata,"a"
.p2align 6
.amdhsa_kernel %s
  .amdhsa_next_free_vgpr %d
  .amdhsa_next_free_sgpr %d
  .amdhsa_accum_offset %d
  .amdhsa_group_segment_fixed_size 0
  .amdhsa_kernarg_size 40
  .amdhsa_user_sgpr_count 2
  .amdhsa_user_sgpr_kernarg_segment_ptr 1
  .amdhsa_system_sgpr_workgroup_id_x 1
.end_amdhsa_kernel
"""
def head(name):
    return ".text\n.globl %s\n.p2align 8\n.type %s,@function\n%s:\n" % (name, name, name)
def table(vals16):
    v = np.asarray(vals16, dtype=np.uint16).reshape(-1, 2)
    d = v[:, 0].astype(np.uint32) | (v[:, 1].astype(np.uint32) << 16)
    return "".join("    .long " + ", ".join("0x%08x" % x for x in d[i:i + 8]) + "\n" for i in range(0, len(d), 8))

def gen_k1():
    E = Em(); e = E.salu
    e("s_load_dwordx4 s[4:7], s[0:1], 0")
    e("s_load_dwordx2 s[8:9], s[0:1], 32")
    if STAMP: e("s_memrealtime s[60:61]")
    e("s_getpc_b64 s[10:11]")
    E.label("K1_pc")
    e("s_cmp_ge_u32 s2, %d" % (NXWG + NWWG))
    e("s_cbranch_scc1 K1_end")
    e("s_cmp_ge_u32 s2, %d" % NXWG)
    e("s_cbranch_scc1 K1_w")
    va = lambda t, d, s_: E.valu(t, d, s_)
    va("v_lshlrev_b32 v1, 4, v0", V(1), V(0))
    e("s_add_u32 s10, s10, K1_bt-K1_pc"); e("s_addc_u32 s11, s11, 0")
    E.vload("global_load_dwordx4 v[20:23], v1, s[10:11]", V(20, 4), V(1))
    if env('K1PF', 1):
        e("s_cmp_ge_u32 s2, 8"); e("s_cbranch_scc1 K1_nopf")
        e("s_lshl_b32 s34, s2, 13")
        va("v_lshlrev_b32 v2, 7, v0", V(2), V(0))
        va("v_add_u32 v2, s34, v2", V(2), V(2))
        va("v_min_u32 v2, K2_code_end-K1_bt-4, v2", V(2), V(2))
        E.vload("global_load_dword v24, v2, s[10:11]", V(24), V(2))
        E.label("K1_nopf")
        E.vm[-1].add(('x', 'never'))
    e("s_and_b32 s20, s2, 7")
    e("s_lshr_b32 s21, s2, 3")
    e("s_lshl_b32 s22, s21, 3")
    for n in range(3):
        va("v_add_u32 v8, %d, v0" % (64 * n), V(8), V(0))
        va("v_mul_u32_u24 v9, 5462, v8", V(9), V(8))
        va("v_lshrrev_b32 v%d, 16, v9" % (2 + n), V(2 + n), V(9))
        va("v_mul_u32_u24 v9, 12, v%d" % (2 + n), V(9), V(2 + n))
        va("v_sub_u32 v8, v8, v9", V(8), V(8) + V(9))
        va("v_bfe_u32 v9, v%d, 1, 2" % (2 + n), V(9), V(2 + n))
        va("v_xor_b32 v8, v8, v9", V(8), V(8) + V(9))
        va("v_lshlrev_b32 v%d, 4, v8" % (5 + n), V(5 + n), V(8))
    e("s_mov_b32 s23, 192")
    for a in range(8):
        e("s_add_u32 s24, s22, %d" % a)
        e("s_mul_i32 s25, s24, 2260"); e("s_lshr_b32 s25, s25, 16")
        e("s_mul_i32 s26, s25, 29"); e("s_sub_u32 s26, s24, s26")
        e("s_min_u32 s25, s25, 22")
        e("s_mul_i32 s25, s25, 10"); e("s_add_u32 s%d, s25, 218" % (48 + a))
        e("s_lshl_b32 s27, s26, 3"); e("s_add_u32 s27, s27, s20")
        e("s_add_u32 s28, s27, 216"); e("s_sub_u32 s27, s27, 8")
        e("s_cmp_eq_u32 s26, 0"); e("s_cselect_b32 s27, s28, s27")
        e("s_mul_i32 s%d, s27, %d" % (40 + a, ROWB))
    e("s_waitcnt lgkmcnt(0)")
    e("s_mov_b32 s12, s4"); e("s_and_b32 s13, s5, 0xffff"); e("s_mov_b32 s14, %d" % XBYTES); e("s_mov_b32 s15, 0x00020000")
    for a in range(8):
        for n in range(3):
            va("v_add_u32 v8, s%d, v%d" % (48 + a, 2 + n), V(8), V(2 + n))
            va("v_subrev_u32 v9, 224, v8", V(9), V(8)); va("v_min_u32 v8, v8, v9", V(8), V(8) + V(9))
            va("v_subrev_u32 v9, 224, v8", V(9), V(8)); va("v_min_u32 v8, v8, v9", V(8), V(8) + V(9))
            e("s_mov_b32 m0, %d" % (a * 3088 + n * 1024))
            va("v_mad_u32_u24 v%d, v8, s23, v%d" % (10 + n, 5 + n), V(10 + n), V(8) + V(5 + n))
            E.vload("buffer_load_dwordx4 v%d, s[12:15], s%d offen lds" % (10 + n, 40 + a), [], V(10 + n), tok=('x', a))
    va("v_lshrrev_b32 v2, 4, v0", V(2), V(0))
    va("v_and_b32 v3, 15, v0", V(3), V(0))
    va("v_lshrrev_b32 v4, 2, v3", V(4), V(3))
    va("v_and_b32 v5, 3, v0", V(5), V(0))
    va("v_and_b32 v6, 1, v2", V(6), V(2))
    va("v_lshl_add_u32 v6, v6, 3, v4", V(6), V(6) + V(4))
    va("v_mul_u32_u24 v7, 193, v5", V(7), V(5))
    va("v_mul_u32_u24 v8, 12, v6", V(8), V(6))
    va("v_add_u32 v7, v7, v8", V(7), V(7) + V(8))
    va("v_lshrrev_b32 v8, 1, v4", V(8), V(4))
    for kg in range(4):
        va("v_xor_b32 v9, %d, v8" % kg, V(9), V(8))
        va("v_add_lshl_u32 v%d, v7, v9, 4" % (24 + kg), V(24 + kg), V(7) + V(9))
        va("v_xor_b32 v9, %d, v8" % (kg ^ 2), V(9), V(8))
        va("v_add_u32 v9, 48, v9", V(9), V(9))
        va("v_add_lshl_u32 v%d, v7, v9, 4" % (28 + kg), V(28 + kg), V(7) + V(9))
    va("v_mul_u32_u24 v7, 193, v2", V(7), V(2))
    va("v_mul_u32_u24 v8, 12, v3", V(8), V(3))
    va("v_add_u32 v7, v7, v8", V(7), V(7) + V(8))
    va("v_bfe_u32 v8, v3, 1, 2", V(8), V(3))
    for kg in range(4):
        va("v_xor_b32 v9, %d, v8" % kg, V(9), V(8))
        va("v_add_lshl_u32 v%d, v7, v9, 4" % (144 + kg), V(144 + kg), V(7) + V(9))
    va("v_lshrrev_b32 v2, 5, v0", V(2), V(0))
    va("v_bfe_u32 v3, v0, 3, 2", V(3), V(0))
    va("v_and_b32 v4, 7, v0", V(4), V(0))
    va("v_mul_u32_u24 v7, 193, v4", V(7), V(4))
    va("v_mul_u32_u24 v8, 12, v2", V(8), V(2))
    va("v_add_u32 v7, v7, v8", V(7), V(7) + V(8))
    for v in range(4):
        va("v_xor_b32 v9, %d, v3" % v, V(9), V(3))
        va("v_add_lshl_u32 v%d, v7, v9, 4" % (148 + v), V(148 + v), V(7) + V(9))
    va("v_lshlrev_b32 v7, 13, v2", V(7), V(2))
    va("v_lshl_add_u32 v7, v3, 8, v7", V(7), V(3) + V(7))
    va("v_lshl_add_u32 v152, v4, 4, v7", V(152), V(4) + V(7))
    e("s_lshr_b32 s24, s21, 1"); e("s_mul_i32 s24, s24, %d" % XREG)
    e("s_lshl_b32 s25, s20, 10"); e("s_add_u32 s24, s24, s25")
    e("s_and_b32 s25, s21, 1"); e("s_lshl_b32 s25, s25, 7"); e("s_add_u32 s24, s24, s25")
    e("s_mov_b32 s16, s8"); e("s_and_b32 s17, s9, 0xffff"); e("s_mov_b32 s18, %d" % XF_SIZE); e("s_mov_b32 s19, 0x00020000")
    AF, DD, PK, RB = 32, 64, 96, 112
    def compute(quad, k):
        base = quad * 4 * 3088 + k * 64
        for kg in range(4):
            for hf in range(2):
                a = AF + 4 * (2 * kg + hf)
                E.dsread("ds_read_b64_tr_b16 v[%d:%d], v%d offset:%d" % (a, a + 1, 24 + kg, base + 8 * hf), V(a, 2), V(24 + kg))
                E.dsread("ds_read_b64_tr_b16 v[%d:%d], v%d offset:%d" % (a + 2, a + 3, 28 + kg, base + 8 * hf), V(a + 2, 2), V(28 + kg))
        for i in range(8):
            E.mfma(('v', DD + 4 * i), ('v', AF + 4 * i), ('v', 20), None)
        for kg in range(4):
            d0 = DD + 8 * kg; p = PK + 4 * kg
            for i in range(4):
                va("v_cvt_pk_bf16_f32 v%d, v%d, v%d" % (p + i, d0 + 2 * i, d0 + 2 * i + 1), V(p + i), V(d0 + 2 * i, 2))
            E.dswrite("ds_write_b128 v%d, v[%d:%d] offset:%d" % (144 + kg, p, p + 3, base), V(p, 4), V(144 + kg))
    def output(k):
        for n in range(8):
            r = RB + 4 * n
            E.dsread("ds_read_b128 v[%d:%d], v%d offset:%d" % (r, r + 3, 148 + (n & 3), 384 * n + 64 * k), V(r, 4), V(148 + (n & 3)))
        for n in range(8):
            r = RB + 4 * n
            e("s_add_u32 s25, s24, %d" % ((n // 2) * XW + k * 32768 + (n % 2) * 16384))
            E.vstore("buffer_store_dwordx4 v[%d:%d], v152, s[16:19], s25 offen%s" % (r, r + 3, K1SF), V(r, 4), V(152))
    def stamps():
        if not STAMP: return
        e("s_waitcnt vmcnt(0)")
        e("s_memrealtime s[68:69]"); e("s_waitcnt lgkmcnt(0)")
        e("s_add_u32 s12, s8, %d" % (ST_OFF + 65536)); e("s_addc_u32 s13, s9, 0"); e("s_and_b32 s13, s13, 0xffff"); e("s_mov_b32 s14, %d" % (1200 * 32)); e("s_mov_b32 s15, 0x00020000")
        e("s_lshl_b32 s33, s2, 5")
        for k2, sr in enumerate((60, 62, 64, 66, 68)):
            e("v_mov_b32 v6, s%d" % sr); e("v_mov_b32 v5, %d" % (4 * k2)); e("s_mov_b64 exec, 1")
            e("buffer_store_dword v6, v5, s[12:15], s33 offen"); e("s_mov_b64 exec, -1")
    if STAMP: e("s_memrealtime s[62:63]")
    E.wait_token(('x', 3))
    if STAMP: e("s_memrealtime s[64:65]")
    for k in range(3): compute(0, k)
    E.wait_token(('x', 7))
    if STAMP: e("s_memrealtime s[66:67]")
    for k in range(3):
        compute(1, k)
        output(k)
    stamps()
    e("s_endpgm")
    E.label("K1_w")
    E.reset()
    e("s_sub_u32 s20, s2, %d" % NXWG)
    e("s_and_b32 s21, s20, 3")
    e("s_lshr_b32 s22, s20, 2")
    e("s_mul_i32 s23, s22, 43"); e("s_lshr_b32 s23, s23, 8")
    e("s_mul_i32 s24, s23, 6"); e("s_sub_u32 s24, s22, s24")
    e("s_mul_i32 s25, s23, 86"); e("s_lshr_b32 s25, s25, 8")
    e("s_mul_i32 s26, s25, 3"); e("s_sub_u32 s26, s23, s26")
    va("v_lshrrev_b32 v2, 1, v0", V(2), V(0))
    va("v_mul_u32_u24 v2, 192, v2", V(2), V(2))
    va("v_and_b32 v3, 1, v0", V(3), V(0))
    va("v_lshl_add_u32 v2, v3, 4, v2", V(2), V(2) + V(3))
    e("s_mul_i32 s27, s25, %d" % (7 * 18432))
    e("s_mul_i32 s28, s26, %d" % (32 * 192)); e("s_add_u32 s27, s27, s28")
    e("s_lshl_b32 s28, s24, 5"); e("s_add_u32 s27, s27, s28")
    e("s_waitcnt lgkmcnt(0)")
    e("s_mov_b32 s12, s6"); e("s_and_b32 s13, s7, 0xffff"); e("s_mov_b32 s14, %d" % WBYTES); e("s_mov_b32 s15, 0x00020000")
    for kw in range(7):
        e("s_mov_b32 m0, %d" % (kw * 1024))
        e("s_add_u32 s28, s27, %d" % (kw * 18432))
        E.vload("buffer_load_dwordx4 v2, s[12:15], s28 offen lds", [], V(2), tok=('w', kw))
    va("v_lshrrev_b32 v3, 4, v0", V(3), V(0))
    va("v_bfe_u32 v4, v0, 2, 2", V(4), V(0))
    va("v_lshl_add_u32 v3, v3, 3, v4", V(3), V(3) + V(4))
    va("v_and_b32 v4, 3, v0", V(4), V(0))
    va("v_lshlrev_b32 v4, 3, v4", V(4), V(4))
    va("v_lshl_add_u32 v3, v3, 5, v4", V(3), V(3) + V(4))
    va("v_lshlrev_b32 v1, 4, v0", V(1), V(0))
    e("s_lshl_b32 s28, s24, 2"); e("s_add_u32 s28, s28, s21"); e("s_mul_i32 s28, s28, 3"); e("s_add_u32 s28, s28, s26")
    e("s_mul_i32 s28, s28, 28"); e("s_add_u32 s28, s28, s25"); e("s_lshl_b32 s28, s28, 10")
    e("s_add_u32 s16, s8, %d" % WF_OFF); e("s_addc_u32 s17, s9, 0"); e("s_and_b32 s17, s17, 0xffff"); e("s_mov_b32 s18, %d" % WF_SIZE); e("s_mov_b32 s19, 0x00020000")
    RAW, F = 8, 40
    for kw in range(7):
        E.wait_token(('w', kw))
        E.dsread("ds_read_b64_tr_b16 v[%d:%d], v3 offset:%d" % (RAW + 4 * kw, RAW + 4 * kw + 1, kw * 1024), V(RAW + 4 * kw, 2), V(3))
        E.dsread("ds_read_b64_tr_b16 v[%d:%d], v3 offset:%d" % (RAW + 4 * kw + 2, RAW + 4 * kw + 3, kw * 1024 + 128), V(RAW + 4 * kw + 2, 2), V(3))
    for kw in range(7):
        for d in range(4):
            va("v_lshlrev_b32 v%d, 16, v%d" % (F + 8 * kw + 2 * d, RAW + 4 * kw + d), V(F + 8 * kw + 2 * d), V(RAW + 4 * kw + d))
            va("v_and_b32 v%d, 0xffff0000, v%d" % (F + 8 * kw + 2 * d + 1, RAW + 4 * kw + d), V(F + 8 * kw + 2 * d + 1), V(RAW + 4 * kw + d))
    for w in range(1, 4):
        e("s_cmp_eq_u32 s21, %d" % w); e("s_cbranch_scc1 K1_w%d" % w)
    import copy
    st = copy.deepcopy((E.pos, E.w, E.mc, E.sd, E.vm, E.lg))
    for w in range(4):
        if w: E.label("K1_w%d" % w)
        E.pos, E.w, E.mc, E.sd, E.vm, E.lg = copy.deepcopy(st)
        ACC = 96
        for j in range(4):
            g = cfg.G[4 * w + j]
            ac = ACC + 8 * (j % 2)
            taps = [kw for kw in range(7) if g[6 - kw] != 0]
            for ti, kw in enumerate(taps):
                for ee in range(8):
                    src = F + 8 * kw + ee
                    if ti == 0: va("v_mul_f32 v%d, %s, v%d" % (ac + ee, f2h(g[6 - kw]), src), V(ac + ee), V(src))
                    else: va("v_fmac_f32 v%d, %s, v%d" % (ac + ee, f2h(g[6 - kw]), src), V(ac + ee), V(src) + V(ac + ee))
            p = 112 + 4 * j
            for i in range(4):
                va("v_cvt_pk_bf16_f32 v%d, v%d, v%d" % (p + i, ac + 2 * i, ac + 2 * i + 1), V(p + i), V(ac + 2 * i, 2))
            e("s_add_u32 s29, s28, %d" % (j * 7 * 1024))
            E.vstore("buffer_store_dwordx4 v[%d:%d], v1, s[16:19], s29 offen%s" % (p, p + 3, K1SF), V(p, 4), V(1))
        stamps()
        e("s_endpgm")
    E.label("K1_end")
    e("s_endpgm")
    hi = bf16r(cfg.BT); lo = bf16r(cfg.BT - hi.astype(np.float64))
    tb = np.zeros((64, 8), dtype=np.uint16)
    for l in range(64):
        n, kg = l % 16, l // 16
        src = hi if kg < 2 else lo
        tb[l] = bf16bits(src[n, 8 * (kg % 2):8 * (kg % 2) + 8])
    E.raw(".p2align 8"); E.label("K1_bt"); E.raw(table(tb.reshape(-1)))
    sys.stderr.write("K1: %d instr, %d waits, %d nops\n" % (E.ninst, E.nwait, E.nnop))
    return head("k1_kernel") + E.text() + KD % ("k1_kernel", 160, 80, 160)

from k2gen import gen_k2
if __name__ == '__main__':
    hdr = []
    for l in open('standalone__fft_conv__vision.s.ref').read().split('\n'):
        if l.startswith('; @launch'): break
        if l.startswith('; Override') or l.startswith('; grid=ceil'): continue
        hdr.append(l)
    k2, k2lds = gen_k2(globals())
    hdr.append("; @launch kernel=k1_kernel grid=(%d,1,1) block=(64,1,1) lds=%d" % (NXWG + NWWG, K1_LDS))
    hdr.append("; @launch kernel=k2_kernel grid=(256,1,1) block=(256,1,1) lds=%d" % k2lds)
    hdr.append('.amdgcn_target "amdgcn-amd-amdhsa--gfx950"')
    txt = "\n".join(hdr) + "\n" + gen_k1() + k2
    open(sys.argv[1], 'w').write(txt)
```

```python
import re
def R(kind, base, n=1): return [(kind, base + i) for i in range(n)]
def V(b, n=1): return R('v', b, n)
def A(b, n=1): return R('a', b, n)
def rn(reg, n=4):
    k, b = reg
    return "%s%d" % (k, b) if n == 1 else "%s[%d:%d]" % (k, b, b + n - 1)
def regs(reg, n=4): return R(reg[0], reg[1], n)

class Em:
    def __init__(s):
        s.lines = []
        s.reset()
    def reset(s):
        s.pos = 0
        s.w = {}
        s.mc = {}
        s.sd = {}
        s.vm = []
        s.lg = []
        s.nwait = 0; s.nnop = 0; s.ninst = 0
    def raw(s, t): s.lines.append(t)
    def label(s, t): s.lines.append(t + ":")
    def cmt(s, t): s.lines.append("    ; " + t)
    def _e(s, t, n=1):
        s.lines.append("    " + t); s.pos += n; s.ninst += 1
    def nop(s, n):
        while n > 0:
            k = min(n, 16); s._e("s_nop %d" % (k - 1), k); n -= k; s.nnop += 1
    def salu(s, t): s._e(t)
    def _need(s, rs):
        rs = set(rs)
        nv = None; nl = None
        for i, d in enumerate(s.vm):
            if d & rs: nv = len(s.vm) - 1 - i
        for i, d in enumerate(s.lg):
            if d & rs: nl = len(s.lg) - 1 - i
        s.wait(nv, nl)
    def wait(s, nv=None, nl=None):
        p = []
        if nv is not None and len(s.vm) > nv:
            k = min(nv, 63); p.append("vmcnt(%d)" % k); s.vm = s.vm[len(s.vm) - k:] if k else []
        if nl is not None and len(s.lg) > nl:
            k = min(nl, 15); p.append("lgkmcnt(%d)" % k); s.lg = s.lg[len(s.lg) - k:] if k else []
        if p:
            s._e("s_waitcnt " + " ".join(p)); s.nwait += 1
    def wait_token(s, tok):
        s._need([tok])
    def _dist(s, rs, table, mc=False):
        need = 0
        for r in rs:
            if r in s.w:
                p, k = s.w[r]
                req = table.get(k, 0)
                need = max(need, req - (s.pos - p - 1))
        return need
    def _pad(s, n):
        if n > 0: s.nop(n)
    def mfma(s, d, a, b, c, op="v_mfma_f32_16x16x32_bf16"):
        D, Aa, Bb = regs(d), regs(a), regs(b)
        C = regs(c) if c is not None else []
        s._need(D + Aa + Bb + C)
        n = max(s._dist(Aa + Bb, {'valu': 2, 'mfma': 8}), s._dist(C, {'valu': 2}))
        if c is not None and c != d: n = max(n, s._dist(C, {'mfma': 8}))
        if c is None or c != d: n = max(n, s._dist(D, {'mfma': 6, 'valu': 0}))
        s._pad(n)
        s._e("%s %s, %s, %s, %s" % (op, rn(d), rn(a), rn(b), rn(c) if c is not None else "0"))
        for r in D: s.w[r] = (s.pos - 1, 'mfma')
        for r in C: s.mc[r] = s.pos - 1
    def mfma16(s, d, a, b, c):
        D, Aa, Bb = regs(d), regs(a, 2), regs(b, 2)
        C = regs(c) if c is not None else []
        s._need(D + Aa + Bb + C)
        n = max(s._dist(Aa + Bb, {'valu': 2, 'mfma': 8}), s._dist(C, {'valu': 2}))
        if c is None or c != d: n = max(n, s._dist(D, {'mfma': 6, 'valu': 0}))
        s._pad(n)
        s._e("v_mfma_f32_16x16x16_bf16 %s, %s, %s, %s" % (rn(d), rn(a, 2), rn(b, 2), rn(c) if c is not None else "0"))
        for r in D: s.w[r] = (s.pos - 1, 'mfma')
        for r in C: s.mc[r] = s.pos - 1
    def valu(s, t, dst, src, dpp=(), perm=False):
        dst = list(dst); src = list(src); dpp = list(dpp)
        s._need(dst + src + dpp)
        n = max(s._dist(src + dpp + dst, {'mfma': 8}), s._dist(dpp, {'valu': 2}))
        if perm: n = max(n, s._dist(src + dst, {'valu': 2}))
        for r in dst:
            if r in s.mc: n = max(n, 3 - (s.pos - s.mc[r] - 1))
            if r in s.sd: n = max(n, 2 - (s.pos - s.sd[r] - 1))
        s._pad(n)
        s._e(t)
        for r in dst: s.w[r] = (s.pos - 1, 'valu')
    def vload(s, t, dst, src=(), tok=None):
        dst = list(dst)
        s._need(list(src))
        n = max(s._dist(dst, {'mfma': 8}), s._dist(src, {'mfma': 8}))
        for i, d in enumerate(s.lg):
            assert not (d & set(dst)), t
        s._pad(n)
        s._e(t)
        st = set(dst)
        if tok is not None: st.add(tok)
        s.vm.append(st)
        for r in dst: s.w.pop(r, None)
    def vstore(s, t, src, addr=(), tok=None):
        src = list(src)
        s._need(src + list(addr))
        s._pad(s._dist(src + list(addr), {'mfma': 8}))
        s._e(t)
        s.vm.append({tok} if tok is not None else set())
        for r in src: s.sd[r] = s.pos - 1
    def dsread(s, t, dst, src=()):
        dst = list(dst)
        s._need(list(src))
        for d in s.vm: assert not (d & set(dst)), t
        s._pad(max(s._dist(dst, {'mfma': 8}), s._dist(src, {'mfma': 8})))
        s._e(t)
        s.lg.append(set(dst))
        for r in dst: s.w.pop(r, None)
    def dswrite(s, t, src, addr=(), tok=None):
        s._need(list(src) + list(addr))
        s._pad(s._dist(list(src) + list(addr), {'mfma': 8}))
        s._e(t)
        s.lg.append({tok} if tok is not None else set())
    def barrier(s):
        s._e("s_barrier")
    def text(s): return "\n".join(s.lines) + "\n"
```

```python
import sys
import numpy as np
from emit import *
from consts import bf16bits, bf16r

def gen_k1(G):
    env = G['env']; cfg = G['cfg']; f2h = G['f2h']
    XW, XREG, XF_SIZE, WF_OFF, WF_SIZE, ST_OFF, XBYTES, WBYTES, ROWB = [G[k] for k in 'XW XREG XF_SIZE WF_OFF WF_SIZE ST_OFF XBYTES WBYTES ROWB'.split()]
    STAMP = env('STAMP', 0); K1SF = env('K1SF', ' sc1')
    NX, NW = 672, 84
    WFIRST = env('WFIRST', 0)
    E = Em(); e = E.salu
    va = lambda t, d, s_, **kw: E.valu(t, d, s_, **kw)
    def stamp(n):
        if STAMP: e("s_memtime s[%d:%d]" % (70 + 2 * n, 71 + 2 * n))
    e("s_load_dwordx4 s[4:7], s[0:1], 0")
    e("s_load_dwordx2 s[8:9], s[0:1], 32")
    if STAMP: e("s_memrealtime s[88:89]"); e("s_memtime s[90:91]")
    if STAMP: e("s_mov_b32 s3, s2")
    e("s_getpc_b64 s[10:11]")
    E.label("K1_pc")
    va("v_lshrrev_b32 v1, 6, v0", V(1), V(0))
    va("v_and_b32 v0, 63, v0", V(0), V(0))
    e("s_cmp_ge_u32 s2, %d" % (NX + NW))
    e("v_readfirstlane_b32 s19, v1")
    e("s_cbranch_scc1 K1_end")
    if WFIRST:
        e("s_cmp_lt_u32 s2, %d" % NW); e("s_cbranch_scc1 K1_w")
        e("s_sub_u32 s2, s2, %d" % NW)
    else:
        e("s_cmp_ge_u32 s2, %d" % NX); e("s_cbranch_scc1 K1_w")
    e("s_and_b32 s20, s2, 7")
    e("s_lshr_b32 s21, s2, 3")
    e("s_lshl_b32 s22, s21, 3"); e("s_lshl_b32 s23, s19, 2"); e("s_add_u32 s22, s22, s23")
    va("v_and_b32 v1, 3, v0", V(1), V(0))
    va("v_add_u32 v1, s22, v1", V(1), V(1))
    va("v_mul_u32_u24 v2, 2260, v1", V(2), V(1))
    va("v_lshrrev_b32 v2, 16, v2", V(2), V(2))
    va("v_mul_u32_u24 v3, 29, v2", V(3), V(2))
    va("v_sub_u32 v3, v1, v3", V(3), V(1) + V(3))
    va("v_min_u32 v2, 22, v2", V(2), V(2))
    va("v_lshlrev_b32 v4, 3, v3", V(4), V(3))
    va("v_add_u32 v4, 216, v4", V(4), V(4))
    va("v_subrev_u32 v5, 224, v4", V(5), V(4))
    va("v_min_u32 v4, v4, v5", V(4), V(4) + V(5))
    va("v_add_u32 v4, s20, v4", V(4), V(4))
    va("v_mul_u32_u24 v4, %d, v4" % ROWB, V(4), V(4))
    va("v_mul_u32_u24 v6, 1920, v2", V(6), V(2))
    va("v_add_u32 v7, v4, v6", V(7), V(4) + V(6))
    va("v_cmp_eq_u32 vcc, 0, v2", [], V(2))
    va("v_mov_b32 v5, %d" % ROWB, V(5), [])
    va("v_mov_b32 v6, 0", V(6), [])
    va("v_cndmask_b32 v3, v6, v5, vcc", V(3), V(5) + V(6))
    E.nop(1)
    for a in range(4): e("v_readlane_b32 s%d, v7, %d" % (40 + a, a))
    for a in range(4): e("v_readlane_b32 s%d, v3, %d" % (44 + a, a))
    for n in range(3):
        va("v_add_u32 v8, %d, v0" % (64 * n), V(8), V(0))
        va("v_mul_u32_u24 v9, 5462, v8", V(9), V(8))
        va("v_bfe_u32 v10, v9, 18, 2", V(10), V(9))
        va("v_xor_b32 v8, v8, v10", V(8), V(8) + V(10))
        va("v_lshlrev_b32 v%d, 4, v8" % (12 + n), V(12 + n), V(8))
        va("v_lshrrev_b32 v9, 16, v9", V(9), V(9))
        if n < 2:
            va("v_cmp_gt_u32 vcc, 6, v9", [], V(9))
            E.nop(2)
            va("v_cndmask_b32 v%d, 0, 1, vcc" % (16 + n), V(16 + n), [])
    stamp(0)
    e("s_mul_i32 s24, s19, %d" % (4 * 3088))
    e("s_waitcnt lgkmcnt(0)")
    stamp(1)
    if env('TLBP', 0):
        e("s_lshr_b32 s26, s21, 1"); e("s_mul_i32 s26, s26, %d" % XREG)
        e("s_load_dword s86, s[8:9], s26")
        e("s_add_u32 s26, s26, %d" % (XREG - 4))
        e("s_load_dword s87, s[8:9], s26")
    e("s_sub_u32 s12, s4, 1152"); e("s_subb_u32 s13, s5, 0"); e("s_and_b32 s13, s13, 0xffff"); e("s_mov_b32 s14, %d" % (XBYTES + 1152)); e("s_mov_b32 s15, 0x00020000")
    for a in range(4):
        for n in range(3):
            t = 8 + (3 * a + n) % 2
            e("s_add_u32 m0, s24, %d" % (a * 3088 + n * 1024))
            if n < 2:
                va("v_mad_i32_i24 v%d, v%d, s%d, v%d" % (t, 16 + n, 44 + a, 12 + n), V(t), V(16 + n) + V(12 + n))
            else:
                t = 14
                E.nop(1)
            E.vload("buffer_load_dwordx4 v%d, s[12:15], s%d offen lds" % (t, 40 + a), [], V(t), tok=('x', a))
    stamp(2)
    va("v_lshlrev_b32 v1, 3, v0", V(1), V(0))
    e("s_add_u32 s10, s10, K1_bt-K1_pc"); e("s_addc_u32 s11, s11, 0")
    E.vload("global_load_dwordx2 v[20:21], v1, s[10:11]", V(20, 2), V(1))
    va("v_lshrrev_b32 v2, 4, v0", V(2), V(0))
    va("v_and_b32 v3, 15, v0", V(3), V(0))
    va("v_lshrrev_b32 v4, 2, v3", V(4), V(3))
    va("v_and_b32 v5, 3, v0", V(5), V(0))
    va("v_lshl_add_u32 v6, v2, 2, v4", V(6), V(2) + V(4))
    va("v_mul_u32_u24 v7, 193, v5", V(7), V(5))
    va("v_mul_u32_u24 v8, 12, v6", V(8), V(6))
    va("v_add_u32 v7, v7, v8", V(7), V(7) + V(8))
    va("v_mov_b32 v10, s24", V(10), [])
    for kg in range(4):
        va("v_xor_b32 v9, %d, v2" % kg, V(9), V(2))
        va("v_add_u32 v9, v7, v9", V(9), V(7) + V(9))
        va("v_lshl_add_u32 v%d, v9, 4, v10" % (24 + kg), V(24 + kg), V(9) + V(10))
    va("v_mul_u32_u24 v7, 193, v2", V(7), V(2))
    va("v_mul_u32_u24 v8, 12, v3", V(8), V(3))
    va("v_add_u32 v7, v7, v8", V(7), V(7) + V(8))
    va("v_lshrrev_b32 v8, 2, v3", V(8), V(3))
    for kg in range(4):
        va("v_xor_b32 v9, %d, v8" % kg, V(9), V(8))
        va("v_add_u32 v9, v7, v9", V(9), V(7) + V(9))
        va("v_lshl_add_u32 v%d, v9, 4, v10" % (12 + kg), V(12 + kg), V(9) + V(10))
    va("v_lshrrev_b32 v2, 5, v0", V(2), V(0))
    va("v_bfe_u32 v3, v0, 3, 2", V(3), V(0))
    va("v_and_b32 v4, 7, v0", V(4), V(0))
    va("v_mul_u32_u24 v7, 193, v4", V(7), V(4))
    va("v_mul_u32_u24 v8, 12, v2", V(8), V(2))
    va("v_add_u32 v7, v7, v8", V(7), V(7) + V(8))
    e("s_mul_i32 s25, s19, %d" % (384 * 4))
    va("v_mov_b32 v10, s25", V(10), [])
    e("s_lshl_b32 s25, s19, 1")
    for v in range(2):
        e("s_add_u32 s27, s25, %d" % v)
        va("v_xor_b32 v9, s27, v3", V(9), V(3))
        va("v_add_u32 v9, v7, v9", V(9), V(7) + V(9))
        va("v_lshl_add_u32 v%d, v9, 4, v10" % (16 + v), V(16 + v), V(9) + V(10))
    va("v_lshlrev_b32 v7, 13, v2", V(7), V(2))
    va("v_lshl_add_u32 v7, v3, 8, v7", V(7), V(3) + V(7))
    va("v_lshl_add_u32 v11, v4, 4, v7", V(11), V(4) + V(7))
    e("s_lshr_b32 s26, s21, 1"); e("s_mul_i32 s26, s26, %d" % XREG)
    e("s_lshl_b32 s25, s20, 10"); e("s_add_u32 s26, s26, s25")
    e("s_and_b32 s25, s21, 1"); e("s_lshl_b32 s25, s25, 7"); e("s_add_u32 s26, s26, s25")
    e("s_mul_i32 s25, s19, %d" % (2 * XW)); e("s_add_u32 s26, s26, s25")
    e("s_mov_b32 s16, s8"); e("s_and_b32 s17, s9, 0xffff"); e("s_mov_b32 s18, %d" % XF_SIZE); e("s_mov_b32 s19, 0x00020000")
    AF, DD, RB = 32, 80, 112
    def reads(k):
        for kg in range(4):
            for hf in range(2):
                a = 32 + 16 * k + 2 * (2 * kg + hf)
                E.dsread("ds_read_b64_tr_b16 v[%d:%d], v%d offset:%d" % (a, a + 1, 24 + kg, k * 64 + 8 * hf), V(a, 2), V(24 + kg))
    def mm(k):
        a0 = 32 + 16 * k; d = 80 + 32 * (k % 2)
        for i in range(8):
            E.mfma16(('v', d + 4 * i), ('v', a0 + 2 * i), ('v', 20), None)
    def pack(k):
        for kg in range(4):
            d0 = 80 + 32 * (k % 2) + 8 * kg
            for i in range(4):
                va("v_cvt_pk_bf16_f32 v%d, v%d, v%d" % (d0 + i, d0 + 2 * i, d0 + 2 * i + 1), V(d0 + i), V(d0 + 2 * i, 2))
            E.dswrite("ds_write_b128 v%d, v[%d:%d] offset:%d" % (12 + kg, d0, d0 + 3, k * 64), V(d0, 4), V(12 + kg))
    def rback(k):
        for i in range(4):
            r = 144 + 4 * i
            E.dsread("ds_read_b128 v[%d:%d], v%d offset:%d" % (r, r + 3, 16 + i // 2, 384 * i + 64 * k), V(r, 4), V(16 + i // 2))
    def stores(k):
        for i in range(4):
            r = 144 + 4 * i
            e("s_add_u32 s25, s26, %d" % ((i // 2) * XW + k * 32768 + (i % 2) * 16384))
            if env('NOST', 0): E.wait(None, 0); continue
            E.vstore("buffer_store_dwordx4 v[%d:%d], v11, s[16:19], s25 offen%s" % (r, r + 3, K1SF), V(r, 4), V(11))
    def stamps():
        if not STAMP: return
        e("s_waitcnt vmcnt(0)")
        e("s_memrealtime s[68:69]"); e("s_waitcnt lgkmcnt(0)")
        e("s_add_u32 s12, s8, %d" % (ST_OFF + 65536)); e("s_addc_u32 s13, s9, 0"); e("s_and_b32 s13, s13, 0xffff"); e("s_mov_b32 s14, %d" % (1200 * 64)); e("s_mov_b32 s15, 0x00020000")
        e("s_lshl_b32 s33, s3, 6")
        if WFIRST: pass
        e("s_getreg_b32 s84, hwreg(HW_REG_HW_ID)"); e("s_getreg_b32 s85, hwreg(HW_REG_XCC_ID)")
        for k2, sr in enumerate((88, 92, 64, 66, 68, 90, 70, 72, 74, 76, 78, 80, 82, 84, 85)):
            e("v_mov_b32 v6, s%d" % sr); e("v_mov_b32 v5, %d" % (4 * k2)); e("s_mov_b64 exec, 1")
            e("buffer_store_dword v6, v5, s[12:15], s33 offen"); e("s_mov_b64 exec, -1")
    if STAMP: e("s_memrealtime s[92:93]")
    stamp(3)
    E.wait_token(('x', 3))
    if STAMP: e("s_memrealtime s[64:65]")
    stamp(4)
    reads(0)
    reads(1)
    reads(2)
    mm(0)
    mm(1)
    pack(0)
    E.wait(None, 0); E.barrier()
    if STAMP: e("s_memrealtime s[66:67]")
    stamp(5)
    rback(0)
    mm(2)
    stores(0)
    pack(1)
    E.wait(None, 0); E.barrier()
    rback(1)
    stores(1)
    pack(2)
    E.wait(None, 0); E.barrier()
    rback(2)
    stores(2)
    stamp(6)
    stamps()
    e("s_endpgm")
    E.label("K1_w")
    E.reset()
    if env('NOW', 0): e("s_endpgm")
    e("s_sub_u32 s20, s2, %d" % (0 if WFIRST else NX))
    e("s_mov_b32 s33, s19")
    e("s_and_b32 s25, s20, 3")
    e("s_lshr_b32 s23, s20, 2")
    e("s_mul_i32 s26, s23, 86"); e("s_lshr_b32 s26, s26, 8")
    e("s_mul_i32 s27, s26, 3"); e("s_sub_u32 s27, s23, s27")
    va("v_lshlrev_b32 v1, 4, v0", V(1), V(0))
    va("v_add_u32 v2, 1024, v1", V(2), V(1))
    e("s_mul_i32 s28, s26, %d" % (7 * 18432))
    e("s_mul_i32 s29, s27, %d" % (32 * 192)); e("s_add_u32 s28, s28, s29")
    e("s_mul_i32 s29, s25, %d" % (8 * 192)); e("s_add_u32 s28, s28, s29")
    KS = 2080
    e("s_lshl_b32 s29, s19, 10"); e("s_add_u32 s28, s28, s29")
    e("s_mov_b32 s30, s29")
    e("s_waitcnt lgkmcnt(0)")
    if env('TLBP', 0):
        e("s_mov_b32 s86, %d" % WF_OFF); e("s_load_dword s87, s[8:9], s86")
    e("s_mov_b32 s12, s6"); e("s_and_b32 s13, s7, 0xffff"); e("s_mov_b32 s14, %d" % WBYTES); e("s_mov_b32 s15, 0x00020000")
    for kw in range(7):
        e("s_add_u32 m0, s30, %d" % (kw * KS))
        e("s_add_u32 s29, s28, %d" % (kw * 18432))
        E.vload("buffer_load_dwordx4 v1, s[12:15], s29 offen lds", [], V(1), tok=('w', kw))
    va("v_lshlrev_b32 v2, 3, v0", V(2), V(0))
    e("s_add_u32 s10, s10, K1_gt-K1_pc"); e("s_addc_u32 s11, s11, 0")
    E.vload("global_load_dwordx2 v[20:21], v2, s[10:11]", V(20, 2), V(2))
    va("v_bfe_u32 v3, v0, 4, 1", V(3), V(0))
    va("v_bfe_u32 v4, v0, 2, 2", V(4), V(0))
    va("v_lshl_add_u32 v3, v3, 2, v4", V(3), V(3) + V(4))
    va("v_min_u32 v3, 6, v3", V(3), V(3))
    va("v_mul_u32_u24 v3, %d, v3" % KS, V(3), V(3))
    va("v_and_b32 v4, 3, v0", V(4), V(0))
    va("v_lshl_add_u32 v3, v4, 3, v3", V(3), V(3) + V(4))
    e("s_mul_i32 s29, s19, 96")
    va("v_add_u32 v3, s29, v3", V(3), V(3))
    va("v_lshrrev_b32 v4, 4, v0", V(4), V(0))
    va("v_mul_u32_u24 v1, %d, v4" % (3 * 28 * 1024), V(1), V(4))
    va("v_and_b32 v4, 15, v0", V(4), V(0))
    va("v_lshl_add_u32 v1, v4, 4, v1", V(1), V(1) + V(4))
    e("s_mul_i32 s28, s19, %d" % (3 * 4 * 3 * 28 * 1024))
    e("s_mul_i32 s29, s27, %d" % (28 * 1024)); e("s_add_u32 s28, s28, s29")
    e("s_lshl_b32 s29, s26, 10"); e("s_add_u32 s28, s28, s29")
    e("s_lshl_b32 s29, s25, 8"); e("s_add_u32 s28, s28, s29")
    e("s_add_u32 s16, s8, %d" % WF_OFF); e("s_addc_u32 s17, s9, 0"); e("s_and_b32 s17, s17, 0xffff"); e("s_mov_b32 s18, %d" % WF_SIZE); e("s_mov_b32 s19, 0x00020000")
    E.wait(0, None); E.barrier()
    for u in range(3):
        for i in range(8):
            a = 32 + 16 * u + 2 * i
            E.dsread("ds_read_b64_tr_b16 v[%d:%d], v3 offset:%d" % (a, a + 1, i * 192 + u * 32), V(a, 2), V(3))
    for u in range(3):
        d = 80 + 32 * (u % 2)
        for i in range(8):
            E.mfma16(('v', d + 4 * i), ('v', 20), ('v', 32 + 16 * u + 2 * i), None)
        for j in range(4):
            p = 144 + 4 * j
            for dd in range(4):
                va("v_cvt_pk_bf16_f32 v%d, v%d, v%d" % (p + dd, d + 8 * dd + j, d + 8 * dd + 4 + j), V(p + dd), V(d + 8 * dd + j) + V(d + 8 * dd + 4 + j))
            e("s_add_u32 s29, s28, %d" % (u * 4 * 3 * 28 * 1024 + j * 7 * 1024))
            E.vstore("buffer_store_dwordx4 v[%d:%d], v1, s[16:19], s29 offen%s" % (p, p + 3, K1SF), V(p, 4), V(1))
    if env('K1PF', 1):
        e("s_cmp_ge_u32 s20, 4"); e("s_cbranch_scc1 K1_nopf")
        e("s_getpc_b64 s[10:11]")
        E.label("K1_pc2")
        e("s_lshl_b32 s34, s20, 1"); e("s_add_u32 s34, s34, s33"); e("s_lshl_b32 s34, s34, 13")
        va("v_lshlrev_b32 v2, 7, v0", V(2), V(0))
        va("v_add_u32 v2, s34, v2", V(2), V(2))
        va("v_min_u32 v2, K2_code_end-K1_pc2-4, v2", V(2), V(2))
        E.vload("global_load_dword v4, v2, s[10:11]", V(4), V(2))
        E.label("K1_nopf")
    stamps()
    E.label("K1_end")
    e("s_endpgm")
    tb = np.zeros((64, 4), dtype=np.uint16)
    for l in range(64):
        n, g = l % 16, l // 16
        tb[l] = bf16bits(cfg.BT[n, 4 * g:4 * g + 4])
    E.raw(".p2align 8"); E.label("K1_bt"); E.raw(G['table'](tb.reshape(-1)))
    gc = np.zeros((16, 8)); gc[:, :7] = cfg.G[:, ::-1]
    ghi = bf16r(gc); glo = bf16r(gc - ghi.astype(np.float64))
    tg = np.zeros((64, 4), dtype=np.uint16)
    for l in range(64):
        n, g = l % 16, l // 16
        tg[l] = bf16bits((ghi if g < 2 else glo)[n, 4 * (g % 2):4 * (g % 2) + 4])
    E.label("K1_gt"); E.raw(G['table'](tg.reshape(-1)))
    sys.stderr.write("K1: %d instr, %d waits, %d nops\n" % (E.ninst, E.nwait, E.nnop))
    return G['head']("k1_kernel") + E.text() + G['KD'] % ("k1_kernel", 160, 96, 160), NX + NW, 128, 8 * 3088
```

```python
import sys, os
import numpy as np
from emit import *
from consts import bf16bits, bf16r

class Task:
    def __init__(s, name, ins, lo, hi, deps=()):
        s.name, s.ins, s.lo, s.hi = name, list(ins), lo, hi
        s.deps = [d if isinstance(d, tuple) else (d, 0) for d in deps]
        s.done_at = None

def gen_k2(G):
    env = G['env']; cfg = G['cfg']; S = G['S']; NREG = G['NREG']; NC = G['NC']; NCH = G['NCH']
    XW, XREG, XF_SIZE, WW, WF_OFF, WF_SIZE, ST_OFF, XBYTES, ROWB = [G[k] for k in 'XW XREG XF_SIZE WW WF_OFF WF_SIZE ST_OFF XBYTES ROWB'.split()]
    STAMP = env('STAMP', 0)
    PACE = env('PACE', 5); WLAT = env('WLAT', 90)
    E = Em(); e = E.salu
    va = lambda t, d, s_, **kw: E.valu(t, d, s_, **kw)
    class Frag:
        def __init__(s, kind, ch, c, idx, off):
            s.kind, s.ch, s.c, s.idx, s.off = kind, ch, c, idx, off
            s.first = None; s.last = None; s.reg = None; s.issue = None
        def __repr__(s): return "%s(ch%d c%d i%d)" % (s.kind, s.ch, s.c, s.idx)
    X = {}; Hf = {}; W = {}
    for ch in range(NCH):
        for c in range(NC):
            for r in range(S): X[ch, c, r] = Frag('X', ch, c, r, ((ch * NC + c) * S + r) * 1024)
            Hf[ch, c] = Frag('H', ch, c, 0, ((ch * NC + c) * S) * 1024)
            for kh in range(7): W[ch, c, kh] = Frag('W', ch, c, kh, ((ch * NC + c) * 7 + kh) * 1024)
    SHL = set([(NCH - 1, 2), (NCH - 1, 3)]) if env('SHL', 1) else set()
    XS = {}
    for (ch_, c_) in SHL:
        for n in range(1, 7): XS[ch_, c_, -n] = Frag('S', ch_, c_, -n, ((ch_ * NC + c_) * S + S - n) * 1024)
    ops = []
    def op(sl, r, ch, c, kh, cw): ops.append(((sl, r), (ch, c, r - kh), W[ch, cw, kh]))
    marks = {}
    def pstage(ch):
        for hi_, hs in enumerate([[0, 1, 2, 3], [4, 5, 6]]):
            marks['P%d_%d' % (ch, hi_)] = len(ops)
            if ch == 0 and hi_ == 0 and env('WAVEF', 1):
                prs = sorted([(max(7 - (r - kh), kh + env('WFB', 0)), -r, kh) for r in range(S) for kh in hs])
                fl = 0
                for lev, mr, kh in prs:
                    r = -mr
                    seq = [(0, 0, 0), (1, 0, 1), (1, 1, 0), (2, 1, 1)]
                    if fl: seq = seq[::-1]
                    for sl, cx, cw in seq: op(sl, r, ch, cx, kh, cw)
                    fl ^= 1
                continue
            for r in range(S - 1, -1, -1):
                for kh in hs: op(0, r, ch, 0, kh, 0)
                for kh in hs[::-1]: op(1, r, ch, 0, kh, 1)
                for kh in hs: op(1, r, ch, 1, kh, 0)
                for kh in hs[::-1]: op(2, r, ch, 1, kh, 1)
    def rstage(ch, u):
        for r in range(S - 1, -1, -1):
            for kh in range(7): op(2 + u, r, ch, 1 + u, kh, 1 + u)
    for ch in range(NCH - 1):
        pstage(ch); rstage(ch, 1); rstage(ch, 2)
    ch = NCH - 1
    pstage(ch)
    FIN = env('FIN', 2)
    step_end = {}
    if FIN == 1:
        rstage(ch, 1)
        marks['F'] = len(ops)
        for r in range(S - 1, -1, -1):
            for kh in range(7): op(4, r, ch, 3, kh, 3)
            step_end[r] = len(ops) - 1
    else:
        marks['F'] = len(ops)
        for r in range(S - 1, -1, -1):
            for kh in range(7): op(3, r, ch, 2, kh, 2)
            for kh in range(6, -1, -1): op(4, r, ch, 3, kh, 3)
            step_end[r] = len(ops) - 1
    N = len(ops)
    use = {}; acc_last = {}
    for i, (a, xk, w) in enumerate(ops):
        use.setdefault(xk, [i, i])[1] = i
        if w.first is None: w.first = i
        w.last = i
        acc_last[a] = i
    shifts = []
    for (ch, c, r), f in X.items():
        f.first, f.last = use[ch, c, r]
        if (ch, c) in SHL: continue
        if (ch, c, r - S) in use:
            a, b = use[ch, c, r - S]
            assert f.last < a - 12, (ch, c, r, f.last, a)
            shifts.append([f, S - r, f.last, a]); f.last = b
    for key, f in XS.items(): f.first, f.last = use[key]
    for key in SHL: del Hf[key]
    for (ch, c), h in Hf.items():
        sh = [s_ for s_ in shifts if s_[0].ch == ch and s_[0].c == c]
        h.first = max(env('H0', 50), min(s_[2] for s_ in sh) - env('HEARLY', 20)); h.last = max(s_[3] for s_ in sh)
    V_L16, V_HOFF = 1, 2
    accreg = {}
    for sl in range(3):
        for r in range(S): accreg[sl, r] = ('a', 4 * (sl * S + r))
    RV = env('RV', 1)
    vbase = 8
    abase = 96
    for sl in (3, 4):
        for r in range(S):
            if RV: accreg[sl, r] = ('v', vbase); vbase += 4
            else: accreg[sl, r] = ('a', abase); abase += 4
    vfree = [('v', x) for x in range(vbase, 253, 4) if x not in (244, 248)]
    afree = [('a', x) for x in range(abase, 253, 4)]
    vlast = {r: -1 for r in vfree}
    frags = list(X.values()) + list(Hf.values()) + list(W.values()) + list(XS.values())
    frags.sort(key=lambda f: (f.first - (env('SEARLY', 30) if f.kind == 'S' else 0), {'W': 1, 'X': 0, 'H': 2, 'S': 3}[f.kind]))
    gap = [[] for _ in range(N + 1)]
    pending = list(frags); active = []; pre = []
    TEMP_T = marks['P2_1'] - env('TEMPE', 60)
    NTEMP = env('NTEMP', 4)
    reserved = vfree[-NTEMP:]
    def alloc(f):
        if f.kind in 'WS':
            if afree: return afree.pop(0)
            return None
        for r in vfree:
            if r in reserved and f.last >= TEMP_T: continue
            vfree.remove(r); return r
        return None
    def release(upto):
        for f in list(active):
            if f.last < upto:
                active.remove(f); (afree if f.reg[0] == 'a' else vfree).append(f.reg)
    while pending and len(pre) < env('NPRE', 16):
        f = pending.pop(0); f.reg = alloc(f); f.issue = -1; pre.append(f); active.append(f)
    lastload = -100
    for i in range(1, N):
        release(i - 1)
        pace = env('PACE0', PACE) if i < env('RAMP', 0) else PACE
        if pending and (i - lastload >= pace or pending[0].first - i < env('URG', 40)):
            f = pending[0]; r = alloc(f)
            if r is not None:
                f.reg = r; f.issue = i; active.append(f); pending.pop(0); gap[i].append(('load', f)); lastload = i
            elif f.first - i < 3: raise Exception("no register for %s at %d" % (f, i))
    assert not pending
    for f in frags:
        if f.reg[0] == 'v': vlast[f.reg] = max(vlast[f.reg], f.last)
    la = [f.first - f.issue for f in frags if f.issue > 0]
    sys.stderr.write("K2 lookahead (slots): min %d p10 %d median %d\n" % (min(la), np.percentile(la, 10), np.median(la)))
    TPF = env('TPF', 0); TP = env('TP', 6); TLEAD = env('TLEAD', 90); NT0 = env('NT0', 14)
    touches = []
    if TPF:
        cand = []
        for m in range(768 // 6):
            line = 6 * m + 3
            f = X[(6 * m // 8) // (NC * S), ((6 * m // 8) // S) % NC, (6 * m // 8) % S]
            cand.append((f.issue, 'X', m * 768))
        for m in range(672 // 5):
            fi = 5 * m // 8
            f = W[fi // (NC * 7), (fi // 7) % NC, fi % 7]
            cand.append((f.issue, 'W', m * 640))
        cand.sort()
        cand = [c for c in cand if c[0] > env('TSKIP', 0)]
        pre_t = cand[:NT0]; rest = cand[NT0:]
        touches = pre_t
        i = env('T0', 40)
        while rest and i < N:
            while rest and rest[0][0] - i < TLEAD: rest.pop(0)
            if not rest: break
            gap[i].append(('touch', rest.pop(0))); i += TP
        sys.stderr.write("K2 touches: %d in prologue, %d in loop\n" % (len(pre_t), sum(1 for g in gap for x in g if x[0] == 'touch')))
    cnt = [len(g) for g in gap]
    if env('PREDW', 1):
        order_ = pre + [x[1] for g in gap for x in g if x[0] == 'load']
        posn = {id(f): k for k, f in enumerate(order_)}
        done_ = -1; nw_ = 0
        for i, (a_, xk, w_) in enumerate(ops):
            ch_, c_, rho_ = xk
            xf_ = XS[xk] if (rho_ < 0 and (ch_, c_) in SHL) else X[ch_, c_, rho_ if rho_ >= 0 else rho_ + S]
            k = max(posn[id(xf_)], posn[id(w_)])
            if k > done_:
                while k + 1 < len(order_) and order_[k + 1].issue >= 0 and order_[k + 1].issue + WLAT <= i and order_[k + 1].issue < i: k += 1
                done_ = k; cnt[i] += 1; nw_ += 1
        sys.stderr.write("K2 predicted waits: %d\n" % nw_)
    tasks = []
    slot_now = [0]
    def prewait(rs):
        rs = set(rs); idx = None; cur = slot_now[0]
        for i, d in enumerate(E.vm):
            if d & rs: idx = i
        if idx is None: return
        while idx + 1 < len(E.vm):
            sl = [t[1] for t in E.vm[idx + 1] if t[0] == 'slot']
            if sl and sl[0] >= 0 and sl[0] + WLAT <= cur: idx += 1
            else: break
        E.wait(len(E.vm) - 1 - idx, None)
    def mk_shift(f, n):
        h = Hf[f.ch, f.c]
        ins = []
        for d in range(4):
            def mv(d=d):
                r = f.reg[1] + d; prewait(V(r))
                va("v_mov_b32_dpp v%d, v%d row_shr:1 row_mask:0xf bank_mask:0xf" % (r, r), V(r), [], dpp=V(r))
            ins.append(mv)
        for d in range(4):
            def cm(d=d):
                r = f.reg[1] + d; hr = h.reg[1] + d; k = 6 - n
                prewait(V(hr))
                if k > 0: va("v_cndmask_b32_dpp v%d, v%d, v%d, vcc row_shl:%d row_mask:0xf bank_mask:0xf" % (r, hr, r, k), V(r), V(r), dpp=V(hr))
                else: va("v_cndmask_b32 v%d, v%d, v%d, vcc" % (r, hr, r), V(r), V(r) + V(hr))
            ins.append(cm)
        return ins
    for f, n, lo, hi in shifts:
        h = Hf[f.ch, f.c]
        lo2 = max(lo + 1, min(h.issue + env('HLAT', 60), hi - 20) if h.issue > 0 else 0)
        tasks.append(Task('sh', mk_shift(f, n), lo2, hi - 3))
    PL = 32768; STG = 3 * PL; LDS = STG + 4 * 16384
    tmp = [r[1] for r in reserved]
    late = sorted([r[1] for r, l in vlast.items() if r not in reserved and l < marks['F'] + 2])
    a0, a1 = 244, 248
    AT = 4
    V_WP, V_WR, V_IR, V_SW = a0, a0 + 1, a0 + 2, a0 + 3
    V_SR, V_O0, V_O1, V_SH = a1, a1 + 1, a1 + 2, a1 + 3
    sc = [236 + i for i in range(8)]
    PT = [tmp[0], tmp[1], tmp[2], tmp[3]]
    setup = []
    MK = 64 if STAMP else 70
    def S_(fn): setup.append(fn)
    t0, t1, t2, t3, t4, t5, t6, t7 = sc
    vv = lambda t, d, s_: S_(lambda: va(t, d, s_))
    ss = lambda t: S_(lambda: e(t))
    vv("v_and_b32 v%d, 15, v0" % t1, V(t1), V(0))
    vv("v_lshrrev_b32 v%d, 4, v0" % t2, V(t2), V(0))
    vv("v_lshlrev_b32 v%d, 10, v%d" % (t3, t2), V(t3), V(t2))
    vv("v_lshl_add_u32 v%d, v%d, 4, v%d" % (t3, t1, t3), V(t3), V(t1) + V(t3))
    ss("s_lshr_b32 s33, s24, 1"); ss("s_mul_i32 s33, s33, %d" % PL); ss("s_and_b32 s34, s24, 1"); ss("s_lshl_b32 s34, s34, 3"); ss("s_add_u32 s33, s33, s34")
    vv("v_add_u32 v%d, s33, v%d" % (V_WP, t3), V(V_WP), V(t3))
    vv("v_xor_b32 v%d, s24, v%d" % (t4, t2), V(t4), V(t2))
    vv("v_lshl_add_u32 v%d, v%d, 2, v%d" % (t4, t4, t3), V(t4), V(t4) + V(t3))
    vv("v_add_u32 v%d, %d, v%d" % (V_WR, 2 * PL, t4), V(V_WR), V(t4))
    vv("v_min_u32 v%d, 2, v%d" % (t3, t2), V(t3), V(t2))
    vv("v_lshlrev_b32 v%d, 15, v%d" % (t3, t3), V(t3), V(t3))
    vv("v_lshl_add_u32 v%d, v%d, 4, v%d" % (t3, t1, t3), V(t3), V(t1) + V(t3))
    ss("s_lshl_b32 s33, s24, 10")
    vv("v_add_u32 v%d, s33, v%d" % (V_IR, t3), V(V_IR), V(t3))
    ss("s_lshl_b32 s33, s24, 14"); ss("s_add_u32 s33, s33, %d" % STG)
    vv("v_and_b32 v%d, 15, v0" % t1, V(t1), V(0))
    vv("v_lshrrev_b32 v%d, 1, v%d" % (t3, t2), V(t3), V(t2))
    vv("v_lshl_add_u32 v%d, v%d, 1, v%d" % (t3, t1, t3), V(t3), V(t1) + V(t3))
    vv("v_bfe_u32 v%d, v%d, 2, 1" % (t4, t1), V(t4), V(t1))
    vv("v_xor_b32 v%d, v%d, v%d" % (t3, t3, t4), V(t3), V(t3) + V(t4))
    vv("v_and_b32 v%d, 1, v%d" % (t4, t2), V(t4), V(t2))
    vv("v_lshlrev_b32 v%d, %d, v%d" % (t4, 9 if env('B128', 1) else 3, t4), V(t4), V(t4))
    vv("v_lshl_add_u32 v%d, v%d, 4, v%d" % (t3, t3, t4), V(t3), V(t3) + V(t4))
    vv("v_add_u32 v%d, s33, v%d" % (V_SW, t3), V(V_SW), V(t3))
    vv("v_bfe_u32 v%d, v0, 3, 1" % t4, V(t4), V(0))
    vv("v_xor_b32 v%d, v0, v%d" % (t4, t4), V(t4), V(0) + V(t4))
    vv("v_lshl_add_u32 v%d, v%d, 4, s33" % (V_SR, t4), V(V_SR), V(t4))
    if env('DST', 1):
        vv("v_bfe_u32 v%d, v0, 4, 1" % t0, V(t0), V(0))
        vv("v_and_b32 v%d, 15, v0" % t1, V(t1), V(0))
        vv("v_lshrrev_b32 v%d, 5, v0" % t2, V(t2), V(0))
    else:
        vv("v_lshrrev_b32 v%d, 5, v0" % t0, V(t0), V(0))
        vv("v_bfe_u32 v%d, v0, 1, 4" % t1, V(t1), V(0))
        vv("v_and_b32 v%d, 1, v0" % t2, V(t2), V(0))
    ss("s_mov_b32 s38, 224"); ss("s_mov_b32 s35, 2260"); ss("s_mov_b32 s37, 192")
    for p in range(2):
        o = V_O0 + p
        ss("s_lshl_b32 s33, s27, 4"); ss("s_lshl_b32 s34, s24, 2"); ss("s_add_u32 s33, s33, s34"); ss("s_add_u32 s33, s33, %d" % (2 * p))
        vv("v_add_u32 v%d, s33, v%d" % (t3, t0), V(t3), V(t0))
        vv("v_mul_u32_u24 v%d, s35, v%d" % (t4, t3), V(t4), V(t3))
        vv("v_lshrrev_b32 v%d, 16, v%d" % (t4, t4), V(t4), V(t4))
        vv("v_mul_u32_u24 v%d, 29, v%d" % (t5, t4), V(t5), V(t4))
        vv("v_sub_u32 v%d, v%d, v%d" % (t5, t3, t5), V(t5), V(t3) + V(t5))
        vv("v_mul_u32_u24 v%d, 10, v%d" % (t6, t4), V(t6), V(t4))
        vv("v_add_u32 v%d, v%d, v%d" % (t6, t6, t1), V(t6), V(t6) + V(t1))
        vv("v_subrev_u32 v%d, 1, v%d" % (t7, t5), V(t7), V(t5))
        vv("v_mul_u32_u24 v%d, %d, v%d" % (t7, 8 * 224, t7), V(t7), V(t7))
        vv("v_add_u32 v%d, v%d, v%d" % (t7, t7, t6), V(t7), V(t7) + V(t6))
        vv("v_mul_lo_u32 v%d, v%d, s37" % (t7, t7), V(t7), V(t7))
        vv("v_lshl_add_u32 v%d, v%d, 4, v%d" % (t7, t2, t7), V(t7), V(t7) + V(t2))
        ss("s_lshl_b32 s34, s28, 5")
        vv("v_add_u32 v%d, s34, v%d" % (t7, t7), V(t7), V(t7))
        vv("v_cmp_ne_u32 s[%d:%d], 0, v%d" % (MK, MK + 1, t5), [], V(t5))
        vv("v_cmp_gt_u32 s[%d:%d], 10, v%d" % (MK + 2, MK + 3, t1), [], V(t1))
        vv("v_cmp_gt_u32 s[%d:%d], s38, v%d" % (MK + 4, MK + 5, t6), [], V(t6))
        vv("v_mov_b32 v%d, 0x7fffffff" % t3, V(t3), [])
        S_(lambda: E.nop(3))
        ss("s_and_b64 s[%d:%d], s[%d:%d], s[%d:%d]" % (MK, MK + 1, MK, MK + 1, MK + 2, MK + 3)); ss("s_and_b64 s[%d:%d], s[%d:%d], s[%d:%d]" % (MK, MK + 1, MK, MK + 1, MK + 4, MK + 5))
        S_(lambda: E.nop(1))
        vv("v_cndmask_b32 v%d, v%d, v%d, s[%d:%d]" % (o, t3, t7, MK, MK + 1), V(o), V(t3) + V(t7))
    ss("s_cmp_eq_u32 s27, 0"); ss("s_cselect_b32 s33, 0, %d" % XREG); ss("s_sub_u32 s33, s33, 16")
    vv("v_add_u32 v%d, s33, v%d" % (t3, V_L16), V(t3), V(V_L16))
    vv("v_lshrrev_b32 v%d, 4, v0" % t4, V(t4), V(0))
    vv("v_lshlrev_b32 v%d, 8, v%d" % (t4, t4), V(t4), V(t4))
    vv("v_add_u32 v%d, 240, v%d" % (t4, t4), V(t4), V(t4))
    vv("v_cndmask_b32 v%d, v%d, v%d, vcc" % (V_SH, t4, t3), V(V_SH), V(t4) + V(t3))
    ss("s_mov_b32 s6, %d" % XBYTES); ss("s_mov_b32 s7, 0x00020000"); ss("s_and_b32 s5, s5, 0xffff")
    mreg = 64 if STAMP else 94
    ss("s_mov_b32 s%d, 0x03ff03ff" % mreg); ss("s_mov_b32 s%d, 0x03ff03ff" % (mreg + 1))
    T_setup = Task('setup', [], 0, 0); T_setup.done_at = 0
    T_pp = {}
    prev = T_setup
    for r in range(S - 1, -1, -1):
        rd = {}; cv = {}; wr = {}
        for j in range(4):
            t = PT[j]
            rd[j] = [(lambda t=t, sl=sl, ar=accreg[sl, r][1] + j: va("v_accvgpr_read_b32 v%d, a%d" % (t + sl, ar), V(t + sl), A(ar))) for sl in range(3)]
            cv[j] = [lambda t=t: va("v_cvt_pk_bf16_f32 v%d, v%d, v%d" % (t, t, t + 1), V(t), V(t, 2)), lambda t=t: va("v_cvt_pk_bf16_f32 v%d, v%d, 0" % (t + 1, t + 2), V(t + 1), V(t + 2))]
            wr[j] = [lambda t=t, j=j, r=r: E.dswrite("ds_write_b64 v%d, v[%d:%d] offset:%d" % (V_WP, t, t + 1, (r * 16 + j) * 256), V(t, 2), V(V_WP))]
        ins = rd[0] + rd[1] + cv[0] + rd[2] + wr[0] + cv[1] + rd[3] + wr[1] + cv[2] + cv[3] + wr[2] + wr[3]
        lo = max(acc_last[sl, r] for sl in range(3)) + 6
        T_pp[r] = Task('pp%d' % r, ins, lo, step_end[r] + 4, [prev]); prev = T_pp[r]; tasks.append(T_pp[r])
    RT = late[0:2]
    order = list(range(S - 1, -1, -1))
    T_rp = {}
    for si, r in enumerate(order):
        se = step_end[r]
        ins = []
        for j in range(4):
            t = RT[si % 2] + j
            r1 = accreg[3, r][1] + j; r2 = accreg[4, r][1] + j
            ins.append(lambda t=t, r1=r1, r2=r2: va("v_cvt_pk_bf16_f32 v%d, v%d, v%d" % (t, r1, r2), V(t), V(r1) + V(r2)))
        for j in range(4):
            t = RT[si % 2] + j
            ins.append(lambda t=t, j=j, r=r: E.dswrite("ds_write_b32 v%d, v%d offset:%d" % (V_WR, t, (r * 16 + j) * 256), V(t), V(V_WR), tok=('rp', r)))
        T_rp[r] = Task('rp%d' % r, ins, se + 4, se + 10, [T_pp[r]])
        tasks.append(T_rp[r])
    B128 = env('B128', 1)
    lateA = [x for x in late if x not in RT]
    def inv_seq(rows, AFp, DIp, OUTp):
        na, nd, no = len(AFp) // 4, len(DIp) // 4, len(OUTp) // 2
        def reads(si):
            r = rows[si]
            return [lambda a=a, r=r, f=AFp[4 * (si % na) + a]: E.dsread("ds_read_b128 v[%d:%d], v%d offset:%d" % (f, f + 3, V_IR, (r * 16 + a) * 256), V(f, 4), V(V_IR)) for a in range(4)]
        def mm(si):
            return [lambda a=a: E.mfma(('v', DIp[4 * (si % nd) + a]), ('v', AFp[4 * (si % na) + a]), ('v', AT), None) for a in range(4)]
        def cw(si):
            r = rows[si]; ins = []
            D = [DIp[4 * (si % nd) + a] for a in range(4)]
            if not B128:
                for a in range(4):
                    d = D[a]
                    ins.append(lambda d=d: va("v_cvt_pk_bf16_f32 v%d, v%d, v%d" % (d, d, d + 1), V(d), V(d, 2)))
                    ins.append(lambda d=d: va("v_cvt_pk_bf16_f32 v%d, v%d, v%d" % (d + 1, d + 2, d + 3), V(d + 1), V(d + 2, 2)))
            if B128:
                for p in range(2):
                    d0 = D[2 * p]
                    ins.append(lambda d0=d0: va("v_cvt_pk_bf16_f32 v%d, v%d, v%d" % (d0, d0, d0 + 1), V(d0), V(d0, 2)))
                    ins.append(lambda d0=d0: va("v_cvt_pk_bf16_f32 v%d, v%d, v%d" % (d0 + 1, d0 + 2, d0 + 3), V(d0 + 1), V(d0 + 2, 2)))
                for p in range(2):
                    d0, d1 = D[2 * p], D[2 * p + 1]
                    ins.append(lambda d0=d0, d1=d1: va("v_cvt_pk_bf16_f32 v%d, v%d, v%d" % (d0 + 2, d1, d1 + 1), V(d0 + 2), V(d1, 2)))
                    ins.append(lambda d0=d0, d1=d1: va("v_cvt_pk_bf16_f32 v%d, v%d, v%d" % (d0 + 3, d1 + 2, d1 + 3), V(d0 + 3), V(d1 + 2, 2)))
                for p in range(2):
                    d0 = D[2 * p]
                    ins.append(lambda d0=d0: va("v_permlane16_swap_b32 v%d, v%d" % (d0, d0 + 2), V(d0) + V(d0 + 2), V(d0) + V(d0 + 2), perm=True))
                    ins.append(lambda d0=d0: va("v_permlane16_swap_b32 v%d, v%d" % (d0 + 1, d0 + 3), V(d0 + 1) + V(d0 + 3), V(d0 + 1) + V(d0 + 3), perm=True))
                if env('DST', 1):
                    def both(r=r, D=D):
                        e("s_mov_b32 s33, %d" % (r * ROWB))
                        E._need(V(D[0], 4) + V(D[2], 4))
                        E._pad(max(E._dist(V(D[0], 4) + V(D[2], 4), {'mfma': 8}), 0))
                        if env('XM', 1): e("s_mov_b64 exec, s[94:95]" if not STAMP else "s_mov_b64 exec, s[64:65]")
                        for p in range(2):
                            d0 = D[2 * p]
                            if env('NOOUT', 0) == 1 or (env('NOOUT', 0) == 2 and p): continue
                            E.vstore("buffer_store_dwordx4 v[%d:%d], v%d, s[4:7], s33 offen%s" % (d0, d0 + 3, V_O0 + p, env('OSF', '')), V(d0, 4), V(V_O0 + p))
                        if env('XM', 1): e("s_mov_b64 exec, -1")
                    ins.append(both)
                    return ins
                for p in range(2):
                    d0 = D[2 * p]
                    ins.append(lambda d0=d0, p=p, r=r: E.dswrite("ds_write_b128 v%d, v[%d:%d] offset:%d" % (V_SW, d0, d0 + 3, (r * 4 + 2 * p) * 512), V(d0, 4), V(V_SW)))
            else:
                for a in range(4):
                    d = D[a]
                    ins.append(lambda d=d, a=a, r=r: E.dswrite("ds_write_b64 v%d, v[%d:%d] offset:%d" % (V_SW, d, d + 1, (r * 4 + a) * 512), V(d, 2), V(V_SW)))
            for p in range(2):
                o = OUTp[2 * (si % no) + p]
                ins.append(lambda o=o, p=p, r=r: E.dsread("ds_read_b128 v[%d:%d], v%d offset:%d" % (o, o + 3, V_SR, (r * 4 + 2 * p) * 512), V(o, 4), V(V_SR)))
            return ins
        def st(si):
            if env('DST', 1): return []
            r = rows[si]; ins = [lambda r=r: e("s_mov_b32 s33, %d" % (r * ROWB))]
            for p in range(2):
                o = OUTp[2 * (si % no) + p]
                if env('NOOUT', 0): continue
                ins.append(lambda o=o, p=p: E.vstore("buffer_store_dwordx4 v[%d:%d], v%d, s[4:7], s33 offen%s" % (o, o + 3, V_O0 + p, env('OSF', '')), V(o, 4), V(V_O0 + p)))
            return ins
        n = len(rows); seq = []
        head = []
        for si in range(min(na, n)): head += reads(si)
        for si in range(n + 2):
            if si < n: seq += mm(si)
            if si + na < n: seq += reads(si + na)
            if no == 1 and 0 <= si - 2 < n: seq += st(si - 2)
            if 0 <= si - 1 < n: seq += cw(si - 1)
            if no > 1 and 0 <= si - 2 < n: seq += st(si - 2)
        return head, seq
    NA = env('NA', 4 if FIN == 1 else 7)
    rowsA = order[:NA]; rowsB = order[NA:]
    T_A = None
    if NA and FIN == 1:
        assert len(lateA) >= 16, lateA
        hA, sA = inv_seq(rowsA, lateA[0:8], lateA[8:16], [lateA[16], lateA[17]] if len(lateA) >= 18 else [0, 0])
        def barA(): E._need([('rp', rowsA[-1])]); E.barrier()
        T_barA = Task('barA', [barA], 0, step_end[rowsA[-1]] + 12, [(T_rp[rowsA[-1]], env('LBA', 4))])
        T_A = Task('invA', hA + sA, 0, N + 500, [T_barA])
        tasks += [T_barA, T_A]
    if NA and FIN == 2:
        assert len(lateA) >= 16, lateA
        AF2 = lateA[0:8]; DI2 = lateA[8:16]
        L1, L2, L3 = env('L1', 4), env('L2', 7), env('L3', 3)
        pb = None; pm = {}; pc = {}
        for si, r in enumerate(rowsA):
            se = step_end[r]
            def bar(r=r):
                if env('NOBAR', 0) in (1, 2):
                    if env('NOBAR', 0) == 2: E._need([('rp', r)])
                    return
                E._need([('rp', r)]); E.barrier()
            tb_ = Task('bar%d' % r, [bar], 0, se + 12, [(T_rp[r], L1)] + ([pb] if pb else []))
            pb = tb_
            af = AF2[4 * (si % 2):4 * (si % 2) + 4]; di = DI2[4 * (si % 2):4 * (si % 2) + 4]
            h_, s_ = inv_seq([r], af, di, [0, 0])
            mms, rest = s_[:4], s_[4:]
            t1_ = Task('rd%d' % r, h_, 0, se + 16, [tb_] + ([pm[si - 2]] if si >= 2 else []))
            t2_ = Task('mm%d' % r, mms, 0, se + 26, [(t1_, L2)] + ([pc[si - 2]] if si >= 2 else []))
            t3_ = Task('cw%d' % r, rest, 0, se + 40, [(t2_, L3)])
            pm[si] = t2_; pc[si] = t3_
            tasks += [tb_, t1_, t2_, t3_]
    def final():
        used = set(lateA[:18]) if NA else set()
        pool = sorted(set([accreg[sl, r][1] for sl in (3, 4) for r in rowsA] + [r_[1] for r_ in vlast.keys() if r_ not in reserved]) - set(RT) - used)
        nb = len(rowsB)
        hB, sB = inv_seq(rowsB, pool[0:4 * min(nb, 4)], pool[16:24], pool[24:28])
        E.wait(None, 0)
        if STAMP == 3: e("s_memtime s[72:73]")
        E.barrier()
        if STAMP == 3: e("s_memtime s[74:75]")
        for f in hB: f()
        if T_A is not None:
            for f in T_A.rest: f()
        for x in deferred:
            for f in x: f()
        if STAMP == 3: e("s_memtime s[84:85]")
        for k_, f in enumerate(sB):
            f()
            if STAMP == 3 and k_ == len(sB) // 2: e("s_memtime s[86:87]")
    deferred = []
    def budget(i):
        if i >= marks['F']: return env('BF', 3)
        if i >= TEMP_T: return env('BP', 2)
        return 1
    MAXF = env('MAXF', 2)
    delay = {}
    for i in range(1, N + 1):
        k = 0
        while True:
            avail = [x for x in tasks if x.ins and (x.lo <= i or i == N) and all(d.done_at is not None and (i == N or i >= d.done_at + lg) for d, lg in x.deps)]
            if not avail: break
            avail.sort(key=lambda x: x.hi)
            if i < N:
                b = budget(i) - cnt[i]
                urgent = False
                if b <= k:
                    if k >= max(MAXF, budget(i)) - cnt[i]: break
                    tot = 0
                    for y in sorted([x for x in tasks if x.ins and x.lo <= i + 40 and x.name == 'sh'], key=lambda x: x.hi):
                        tot += len(y.ins)
                        cap = sum(1 for g in range(i + 1, min(y.hi + 1, N)) if cnt[g] == 0)
                        if tot - 1 > cap * env('URGF', 0.9): urgent = True; break
                    if not urgent: break
            x = avail[0]
            if i == N and x.name == 'invA':
                x.rest = list(x.ins); x.ins = []; x.done_at = i; continue
            if i == N and x.name[:2] in ('mm', 'cw'):
                deferred.append(list(x.ins)); x.ins = []; x.done_at = i; continue
            if x.name == 'sh': assert i <= x.hi, ("shift late", i, x.hi)
            gap[i].append(('ins', x.ins.pop(0), x.name)); k += 1
            if not x.ins: x.done_at = i
        cnt[i] += k
    if T_A is not None and not hasattr(T_A, 'rest'): T_A.rest = []
    assert all(not x.ins for x in tasks), [x.name for x in tasks if x.ins]
    sys.stderr.write("K2 tail after last MFMA: %d instr; done: %s\n" % (len(gap[N]), " ".join("%s@%d" % (x.name, x.done_at - marks['F']) for x in tasks if x.name[:2] in ('pp', 'ba', 'cw'))))
    e("s_load_dwordx2 s[8:9], s[0:1], 32")
    e("s_load_dwordx2 s[4:5], s[0:1], 16")
    if STAMP: e("s_memtime s[70:71]"); e("s_memrealtime s[80:81]")
    e("s_getpc_b64 s[10:11]")
    E.label("K2_pc")
    e("s_cmp_ge_u32 s2, 256"); e("s_cbranch_scc1 K2_end")
    va("v_lshrrev_b32 v3, 6, v0", V(3), V(0))
    if env('CPF', 1):
        va("v_lshlrev_b32 v4, 7, v0", V(4), V(0))
        va("v_min_u32 v4, K2_code_end-K2_pc-4, v4", V(4), V(4))
    va("v_and_b32 v0, 63, v0", V(0), V(0))
    E.nop(1)
    e("v_readfirstlane_b32 s24, v3")
    if env('CPF', 1):
        e("s_cmp_ge_u32 s2, 8"); e("s_cbranch_scc1 K2_nocpf")
        E.vload("global_load_dword v255, v4, s[10:11]", V(255), V(4))
        E.label("K2_nocpf")
    e("s_and_b32 s25, s2, 7"); e("s_lshr_b32 s26, s2, 3")
    e("s_mul_i32 s27, s26, 43"); e("s_lshr_b32 s27, s27, 8"); e("s_mul_i32 s28, s27, 6"); e("s_sub_u32 s28, s26, s28")
    e("s_lshl_b32 s27, s27, 3"); e("s_add_u32 s27, s27, s25")
    e("s_cmp_lt_u32 s26, 30"); e("s_cbranch_scc1 K2_map")
    e("s_lshl_b32 s29, s25, 1"); e("s_add_u32 s29, s29, s26"); e("s_sub_u32 s29, s29, 30")
    e("s_mul_i32 s27, s29, 43"); e("s_lshr_b32 s27, s27, 8"); e("s_mul_i32 s28, s27, 6"); e("s_sub_u32 s28, s29, s28"); e("s_add_u32 s27, s27, 40")
    E.label("K2_map")
    e("s_cmp_ge_u32 s27, %d" % NREG); e("s_cbranch_scc1 K2_end")
    va("v_lshlrev_b32 v%d, 4, v0" % V_L16, V(V_L16), V(0))
    va("v_and_b32 v3, 15, v0", V(3), V(0))
    va("v_cmp_ne_u32 vcc, 0, v3", [], V(3))
    va("v_min_u32 v3, 5, v3", V(3), V(3))
    va("v_add_u32 v3, %d, v3" % (S - 6), V(3), V(3))
    va("v_lshlrev_b32 v3, 10, v3", V(3), V(3))
    va("v_lshrrev_b32 v4, 4, v0", V(4), V(0))
    va("v_lshl_add_u32 v3, v4, 8, v3", V(3), V(3) + V(4))
    va("v_add_u32 v%d, 240, v3" % V_HOFF, V(V_HOFF), V(3))
    e("s_lshl_b32 s29, s27, 2"); e("s_add_u32 s29, s29, s24"); e("s_mul_i32 s29, s29, %d" % XW)
    e("s_max_u32 s30, s27, 1"); e("s_sub_u32 s30, s30, 1"); e("s_lshl_b32 s30, s30, 2"); e("s_add_u32 s30, s30, s24"); e("s_mul_i32 s30, s30, %d" % XW)
    e("s_lshl_b32 s31, s28, 2"); e("s_add_u32 s31, s31, s24"); e("s_mul_i32 s31, s31, %d" % WW); e("s_add_u32 s31, s31, %d" % WF_OFF)
    ROT = env('ROT', 0)
    if ROT:
        e("s_lshr_b32 s33, s27, 3"); e("s_add_u32 s33, s33, s28")
        if ROT == 2:
            e("s_and_b32 s32, s33, 1"); e("s_xor_b32 s36, s32, 1"); e("s_mov_b32 s39, 2")
        else:
            e("s_mul_i32 s34, s33, 86"); e("s_lshr_b32 s34, s34, 8"); e("s_mul_i32 s34, s34, 3"); e("s_sub_u32 s32, s33, s34")
            e("s_add_u32 s36, s32, 1"); e("s_cmp_eq_u32 s36, 3"); e("s_cselect_b32 s36, 0, s36")
            e("s_add_u32 s39, s36, 1"); e("s_cmp_eq_u32 s39, 3"); e("s_cselect_b32 s39, 0, s39")
    else:
        e("s_mov_b32 s32, 0"); e("s_mov_b32 s36, 1"); e("s_mov_b32 s39, 2")
    SRD = {'X': [12, 40, 44], 'W': [16, 48, 52], 'H': [20, 56, 60]}
    CH = [32, 36, 39]
    def srd_off(kind, ch):
        base = {'X': 29, 'W': 31, 'H': 30}[kind]; stride = {'X': 32768, 'W': 28672, 'H': 32768}[kind]
        sr = SRD[kind][ch]
        e("s_mul_i32 s%d, s%d, %d" % (sr + 2, CH[ch], stride)); e("s_add_u32 s%d, s%d, s%d" % (sr + 2, sr + 2, base))
    def srd_fin(kind, ch):
        sr = SRD[kind][ch]; sz = {'X': 32768, 'W': 28672, 'H': XREG + 32768}[kind]
        e("s_add_u32 s%d, s8, s%d" % (sr, sr + 2)); e("s_addc_u32 s%d, s9, 0" % (sr + 1)); e("s_and_b32 s%d, s%d, 0xffff" % (sr + 1, sr + 1))
        e("s_mov_b32 s%d, %d" % (sr + 2, sz)); e("s_mov_b32 s%d, 0x00020000" % (sr + 3))
    for kind in 'XW': srd_off(kind, 0)
    e("s_waitcnt lgkmcnt(0)")
    for kind in 'XW': srd_fin(kind, 0)
    CST = [None, 25, 26, 64, 65, 66, 67, 68] if not STAMP else [None, 25, 26, 96, 97, 98, 99, 100]
    need0 = sorted(set((f.off % (32768 if f.kind != 'W' else 28672)) // 4096 for f in pre) - {0})
    for j in need0: e("s_mov_b32 s%d, %d" % (CST[j], j * 4096))
    def late_srds():
        for j in range(1, 8):
            if j not in need0: e("s_mov_b32 s%d, %d" % (CST[j], j * 4096))
        for kind, ch in [('H', 0), ('X', 1), ('W', 1), ('H', 1), ('X', 2), ('W', 2), ('H', 2)]:
            srd_off(kind, ch); srd_fin(kind, ch)
    def load(f, slot):
        stride = 28672 if f.kind == 'W' else 32768
        off = f.off % stride
        assert f.off // stride == f.ch
        so = off // 4096; io = off % 4096
        sreg = "0" if so == 0 else "s%d" % CST[so]
        kind = {'X': 'X', 'W': 'W', 'H': 'H', 'S': 'H'}[f.kind]
        sr = SRD[kind][f.ch]
        vo = {'X': V_L16, 'W': V_L16, 'H': V_HOFF, 'S': V_SH}[f.kind]
        E.vload("buffer_load_dwordx4 %s, v%d, s[%d:%d], %s offen offset:%d" % (rn(f.reg), vo, sr, sr + 3, sreg, io), regs(f.reg), V(vo), tok=('slot', slot))
    assert all(f.kind in 'XW' and f.ch == 0 for f in pre), pre
    e("s_add_u32 s10, s10, K2_at-K2_pc"); e("s_addc_u32 s11, s11, 0")
    e("s_lshl_b32 s33, s24, 10")
    va("v_add_u32 v3, s33, v%d" % V_L16, V(3), V(V_L16))
    def touch(c): raise Exception('touch disabled')
    npre0 = env('ATPOS', 99)
    NP1 = env('NP1', 12)
    for f in pre[:NP1]: load(f, -1)
    late_srds()
    for fn in setup: fn()
    for f in pre[NP1:]: load(f, -1)
    E.vload("global_load_dwordx4 v[4:7], v3, s[10:11]", V(4, 4), V(3), tok=('slot', -1))
    if STAMP and STAMP != 3: e("s_memtime s[72:73]")
    started = set()
    for i in range(N + 1):
        slot_now[0] = i
        if i == N and STAMP: e("s_memtime s[76:77]"); e("s_memrealtime s[82:83]")
        for x in gap[i]:
            if x[0] == 'load': load(x[1], i)
            elif x[0] == 'touch': touch(x[1])
            else: x[1]()
        if i == N:
            final(); break
        a, (ch, c, rho), w = ops[i]
        xf = XS[ch, c, rho] if (rho < 0 and (ch, c) in SHL) else X[ch, c, rho if rho >= 0 else rho + S]
        prewait(regs(xf.reg) + regs(w.reg))
        if STAMP:
            if i == 0 and STAMP != 3: e("s_memtime s[74:75]")
            if i == 0: e("s_memrealtime s[88:89]")
            m1, m2 = (N // 3, 2 * N // 3) if STAMP == 1 else (env('M1', 0), env('M2', 0))
            if STAMP != 3 and i == m1: e("s_memtime s[84:85]"); e("s_memrealtime s[90:91]")
            if STAMP != 3 and i == m2: e("s_memtime s[86:87]"); e("s_memrealtime s[92:93]")
        E.mfma(accreg[a], xf.reg, w.reg, accreg[a] if a in started else None)
        started.add(a)
    if STAMP:
        e("s_memtime s[94:95]"); e("s_memrealtime s[66:67]"); e("s_waitcnt lgkmcnt(0)")
        e("s_add_u32 s4, s8, %d" % ST_OFF); e("s_addc_u32 s5, s9, 0"); e("s_and_b32 s5, s5, 0xffff"); e("s_mov_b32 s6, %d" % (256 * 4 * 64))
        e("s_lshl_b32 s33, s2, 2"); e("s_add_u32 s33, s33, s24"); e("s_lshl_b32 s33, s33, 6")
        for k2, sr in enumerate((70, 72, 74, 76, 80, 82, 84, 86, 88, 90, 92, 94, 66)):
            e("v_mov_b32 v6, s%d" % sr); e("v_mov_b32 v5, %d" % (4 * k2)); e("s_mov_b64 exec, 1")
            e("buffer_store_dword v6, v5, s[4:7], s33 offen"); e("s_mov_b64 exec, -1")
    E.label("K2_end")
    e("s_endpgm")
    tb = np.zeros((4, 64, 8), dtype=np.float64)
    for v in range(4):
        for l in range(64):
            n, kg = l % 16, l // 16
            if n >= cfg.m: continue
            if kg < 2:
                for ww in range(2):
                    for sl in range(3): tb[v, l, 4 * ww + sl] = cfg.ATs[2 * kg + ww, sl, n]
            elif kg == 2:
                for p in range(4):
                    ww = p ^ v
                    tb[v, l, 2 * p] = cfg.ATs[ww, 3, n]; tb[v, l, 2 * p + 1] = cfg.ATs[ww, 4, n]
    E.raw(".p2align 8"); E.label("K2_at"); E.raw(G['table'](bf16bits(tb).reshape(-1)))
    E.label("K2_code_end")
    sys.stderr.write("K2: %d MFMA main, %d instr, %d waits, %d nops\n" % (N, E.ninst, E.nwait, E.nnop))
    return G['head']("k2_kernel") + E.text() + G['KD'] % ("k2_kernel", 512, 102, 256), LDS
```

```python
import sys, os, struct
import numpy as np
sys.path.insert(0, os.path.dirname(os.path.abspath(__file__)))
from emit import *
from consts import cfg16, bf16bits, bf16r
def env(k, d): return type(d)(os.environ.get(k, d))
cfg = cfg16()
S = 8; NREG = 42; NC = 4; NCH = 3
XW = NCH * NC * S * 1024
XREG = 4 * XW
XF_SIZE = NREG * XREG
WW = NCH * NC * 7 * 1024
WF_OFF = XF_SIZE
WF_SIZE = 24 * WW
ST_OFF = WF_OFF + WF_SIZE
XBYTES = 224 * 224 * 96 * 2
WBYTES = 49 * 96 * 96 * 2
ROWB = 224 * 192
NXWG = 672; NWWG = 504
K1_LDS = 8 * 3088
STAMP = env('STAMP', 0)
K1SF = env('K1SF', ' sc1')
def f2h(x): return '0x%08x' % struct.unpack('<I', struct.pack('<f', float(x)))[0]

KD = """.section .rodata,"a"
.p2align 6
.amdhsa_kernel %s
  .amdhsa_next_free_vgpr %d
  .amdhsa_next_free_sgpr %d
  .amdhsa_accum_offset %d
  .amdhsa_group_segment_fixed_size 0
  .amdhsa_kernarg_size 40
  .amdhsa_user_sgpr_count 2
  .amdhsa_user_sgpr_kernarg_segment_ptr 1
  .amdhsa_system_sgpr_workgroup_id_x 1
.end_amdhsa_kernel
"""
def head(name):
    return ".text\n.globl %s\n.p2align 8\n.type %s,@function\n%s:\n" % (name, name, name)
def table(vals16):
    v = np.asarray(vals16, dtype=np.uint16).reshape(-1, 2)
    d = v[:, 0].astype(np.uint32) | (v[:, 1].astype(np.uint32) << 16)
    return "".join("    .long " + ", ".join("0x%08x" % x for x in d[i:i + 8]) + "\n" for i in range(0, len(d), 8))

from k1gen import gen_k1
from k2gen import gen_k2
if __name__ == '__main__':
    hdr = []
    for l in open('standalone__fft_conv__vision.s.ref').read().split('\n'):
        if l.startswith('; @launch'): break
        if l.startswith('; Override') or l.startswith('; grid=ceil'): continue
        hdr.append(l)
    k2, k2lds = gen_k2(globals())
    k1, k1grid, k1blk, k1lds = gen_k1(globals())
    hdr.append("; @launch kernel=k1_kernel grid=(%d,1,1) block=(%d,1,1) lds=%d" % (k1grid, k1blk, k1lds))
    hdr.append("; @launch kernel=k2_kernel grid=(256,1,1) block=(256,1,1) lds=%d" % k2lds)
    hdr.append('.amdgcn_target "amdgcn-amd-amdhsa--gfx950"')
    txt = "\n".join(hdr) + "\n" + k1 + k2
    open(sys.argv[1], 'w').write(txt)
```

```python
import sys
import numpy as np
from emit import *
from consts import bf16bits, bf16r

def gen_k1(G):
    env = G['env']; cfg = G['cfg']; f2h = G['f2h']
    XW, XREG, XF_SIZE, WF_OFF, WF_SIZE, ST_OFF, XBYTES, WBYTES, ROWB = [G[k] for k in 'XW XREG XF_SIZE WF_OFF WF_SIZE ST_OFF XBYTES WBYTES ROWB'.split()]
    STAMP = env('STAMP', 0); K1SF = env('K1SF', ' sc1')
    NX, NW = 672, 84
    WFIRST = env('WFIRST', 0)
    E = Em(); e = E.salu
    va = lambda t, d, s_, **kw: E.valu(t, d, s_, **kw)
    def stamp(n):
        if STAMP: e("s_memtime s[%d:%d]" % (70 + 2 * n, 71 + 2 * n))
    e("s_load_dwordx4 s[4:7], s[0:1], 0")
    e("s_load_dwordx2 s[8:9], s[0:1], 32")
    if STAMP: e("s_memrealtime s[88:89]"); e("s_memtime s[90:91]")
    if STAMP: e("s_mov_b32 s3, s2")
    e("s_getpc_b64 s[10:11]")
    E.label("K1_pc")
    va("v_lshrrev_b32 v1, 6, v0", V(1), V(0))
    va("v_and_b32 v0, 63, v0", V(0), V(0))
    e("s_cmp_ge_u32 s2, %d" % (NX + NW))
    e("v_readfirstlane_b32 s19, v1")
    e("s_cbranch_scc1 K1_end")
    if WFIRST:
        e("s_cmp_lt_u32 s2, %d" % NW); e("s_cbranch_scc1 K1_w")
        e("s_sub_u32 s2, s2, %d" % NW)
    else:
        e("s_cmp_ge_u32 s2, %d" % NX); e("s_cbranch_scc1 K1_w")
    e("s_and_b32 s20, s2, 7")
    e("s_lshr_b32 s21, s2, 3")
    e("s_lshl_b32 s22, s21, 3"); e("s_lshl_b32 s23, s19, 2"); e("s_add_u32 s22, s22, s23")
    va("v_and_b32 v1, 3, v0", V(1), V(0))
    va("v_add_u32 v1, s22, v1", V(1), V(1))
    va("v_mul_u32_u24 v2, 2260, v1", V(2), V(1))
    va("v_lshrrev_b32 v2, 16, v2", V(2), V(2))
    va("v_mul_u32_u24 v3, 29, v2", V(3), V(2))
    va("v_sub_u32 v3, v1, v3", V(3), V(1) + V(3))
    va("v_min_u32 v2, 22, v2", V(2), V(2))
    va("v_lshlrev_b32 v4, 3, v3", V(4), V(3))
    va("v_add_u32 v4, 216, v4", V(4), V(4))
    va("v_subrev_u32 v5, 224, v4", V(5), V(4))
    va("v_min_u32 v4, v4, v5", V(4), V(4) + V(5))
    va("v_add_u32 v4, s20, v4", V(4), V(4))
    va("v_mul_u32_u24 v4, %d, v4" % ROWB, V(4), V(4))
    va("v_mul_u32_u24 v6, 1920, v2", V(6), V(2))
    va("v_add_u32 v7, v4, v6", V(7), V(4) + V(6))
    va("v_cmp_eq_u32 vcc, 0, v2", [], V(2))
    va("v_mov_b32 v5, %d" % ROWB, V(5), [])
    va("v_mov_b32 v6, 0", V(6), [])
    va("v_cndmask_b32 v3, v6, v5, vcc", V(3), V(5) + V(6))
    E.nop(1)
    for a in range(4): e("v_readlane_b32 s%d, v7, %d" % (40 + a, a))
    for a in range(4): e("v_readlane_b32 s%d, v3, %d" % (44 + a, a))
    for n in range(3):
        va("v_add_u32 v8, %d, v0" % (64 * n), V(8), V(0))
        va("v_mul_u32_u24 v9, 5462, v8", V(9), V(8))
        va("v_bfe_u32 v10, v9, 18, 2", V(10), V(9))
        va("v_xor_b32 v8, v8, v10", V(8), V(8) + V(10))
        va("v_lshlrev_b32 v%d, 4, v8" % (12 + n), V(12 + n), V(8))
        va("v_lshrrev_b32 v9, 16, v9", V(9), V(9))
        if n < 2:
            va("v_cmp_gt_u32 vcc, 6, v9", [], V(9))
            E.nop(2)
            va("v_cndmask_b32 v%d, 0, 1, vcc" % (16 + n), V(16 + n), [])
    stamp(0)
    e("s_mul_i32 s24, s19, %d" % (4 * 3088))
    e("s_waitcnt lgkmcnt(0)")
    stamp(1)
    if env('TLBP', 0):
        e("s_lshr_b32 s26, s21, 1"); e("s_mul_i32 s26, s26, %d" % XREG)
        e("s_load_dword s86, s[8:9], s26")
        e("s_add_u32 s26, s26, %d" % (XREG - 4))
        e("s_load_dword s87, s[8:9], s26")
    e("s_sub_u32 s12, s4, 1152"); e("s_subb_u32 s13, s5, 0"); e("s_and_b32 s13, s13, 0xffff"); e("s_mov_b32 s14, %d" % (XBYTES + 1152)); e("s_mov_b32 s15, 0x00020000")
    for a in range(4):
        for n in range(3):
            t = 8 + (3 * a + n) % 2
            e("s_add_u32 m0, s24, %d" % (a * 3088 + n * 1024))
            if n < 2:
                va("v_mad_i32_i24 v%d, v%d, s%d, v%d" % (t, 16 + n, 44 + a, 12 + n), V(t), V(16 + n) + V(12 + n))
            else:
                t = 14
                E.nop(1)
            E.vload("buffer_load_dwordx4 v%d, s[12:15], s%d offen lds" % (t, 40 + a), [], V(t), tok=('x', a))
    stamp(2)
    va("v_lshlrev_b32 v1, 3, v0", V(1), V(0))
    e("s_add_u32 s10, s10, K1_bt-K1_pc"); e("s_addc_u32 s11, s11, 0")
    E.vload("global_load_dwordx2 v[20:21], v1, s[10:11]", V(20, 2), V(1))
    va("v_lshrrev_b32 v2, 4, v0", V(2), V(0))
    va("v_and_b32 v3, 15, v0", V(3), V(0))
    va("v_lshrrev_b32 v4, 2, v3", V(4), V(3))
    va("v_and_b32 v5, 3, v0", V(5), V(0))
    va("v_lshl_add_u32 v6, v2, 2, v4", V(6), V(2) + V(4))
    va("v_mul_u32_u24 v7, 193, v5", V(7), V(5))
    va("v_mul_u32_u24 v8, 12, v6", V(8), V(6))
    va("v_add_u32 v7, v7, v8", V(7), V(7) + V(8))
    va("v_mov_b32 v10, s24", V(10), [])
    for kg in range(4):
        va("v_xor_b32 v9, %d, v2" % kg, V(9), V(2))
        va("v_add_u32 v9, v7, v9", V(9), V(7) + V(9))
        va("v_lshl_add_u32 v%d, v9, 4, v10" % (24 + kg), V(24 + kg), V(9) + V(10))
    va("v_mul_u32_u24 v7, 193, v2", V(7), V(2))
    va("v_mul_u32_u24 v8, 12, v3", V(8), V(3))
    va("v_add_u32 v7, v7, v8", V(7), V(7) + V(8))
    va("v_lshrrev_b32 v8, 2, v3", V(8), V(3))
    for kg in range(4):
        va("v_xor_b32 v9, %d, v8" % kg, V(9), V(8))
        va("v_add_u32 v9, v7, v9", V(9), V(7) + V(9))
        va("v_lshl_add_u32 v%d, v9, 4, v10" % (12 + kg), V(12 + kg), V(9) + V(10))
    va("v_lshrrev_b32 v2, 4, v0", V(2), V(0))
    va("v_bfe_u32 v3, v0, 2, 2", V(3), V(0))
    va("v_and_b32 v4, 3, v0", V(4), V(0))
    va("v_mul_u32_u24 v7, 193, v4", V(7), V(4))
    va("v_mul_u32_u24 v8, 12, v2", V(8), V(2))
    va("v_add_u32 v7, v7, v8", V(7), V(7) + V(8))
    va("v_mov_b32 v10, s24", V(10), [])
    for v in range(4):
        va("v_xor_b32 v9, %d, v3" % v, V(9), V(3))
        va("v_add_u32 v9, v7, v9", V(9), V(7) + V(9))
        va("v_lshl_add_u32 v%d, v9, 4, v10" % (16 + v), V(16 + v), V(9) + V(10))
    va("v_lshlrev_b32 v7, 13, v2", V(7), V(2))
    va("v_lshl_add_u32 v7, v3, 6, v7", V(7), V(3) + V(7))
    va("v_lshl_add_u32 v11, v4, 4, v7", V(11), V(4) + V(7))
    e("s_lshl_b32 s27, s21, 1"); e("s_add_u32 s27, s27, s19")
    e("s_lshr_b32 s26, s27, 2"); e("s_mul_i32 s26, s26, %d" % XREG)
    e("s_lshl_b32 s25, s20, 10"); e("s_add_u32 s26, s26, s25")
    e("s_and_b32 s25, s27, 3"); e("s_lshl_b32 s25, s25, 8"); e("s_add_u32 s26, s26, s25")
    e("s_mov_b32 s16, s8"); e("s_and_b32 s17, s9, 0xffff"); e("s_mov_b32 s18, %d" % XF_SIZE); e("s_mov_b32 s19, 0x00020000")
    AF, DD, RB = 32, 80, 112
    def reads(k):
        for kg in range(4):
            for hf in range(2):
                a = 32 + 16 * k + 2 * (2 * kg + hf)
                E.dsread("ds_read_b64_tr_b16 v[%d:%d], v%d offset:%d" % (a, a + 1, 24 + kg, k * 64 + 8 * hf), V(a, 2), V(24 + kg))
    def mm(k):
        a0 = 32 + 16 * k; d = 80 + 32 * (k % 2)
        for i in range(8):
            E.mfma16(('v', d + 4 * i), ('v', a0 + 2 * i), ('v', 20), None)
    def pack(k):
        for kg in range(4):
            d0 = 80 + 32 * (k % 2) + 8 * kg
            for i in range(4):
                va("v_cvt_pk_bf16_f32 v%d, v%d, v%d" % (d0 + i, d0 + 2 * i, d0 + 2 * i + 1), V(d0 + i), V(d0 + 2 * i, 2))
            E.dswrite("ds_write_b128 v%d, v[%d:%d] offset:%d" % (12 + kg, d0, d0 + 3, k * 64), V(d0, 4), V(12 + kg))
    def rback(k):
        for i in range(4):
            r = 144 + 4 * i
            E.dsread("ds_read_b128 v[%d:%d], v%d offset:%d" % (r, r + 3, 16 + i, 768 * i + 64 * k), V(r, 4), V(16 + i))
    def stores(k):
        for i in range(4):
            r = 144 + 4 * i
            e("s_add_u32 s25, s26, %d" % (i * XW + k * 32768))
            if env('NOST', 0): E.wait(None, 0); continue
            E.vstore("buffer_store_dwordx4 v[%d:%d], v11, s[16:19], s25 offen%s" % (r, r + 3, K1SF), V(r, 4), V(11))
    def stamps():
        if not STAMP: return
        e("s_waitcnt vmcnt(0)")
        e("s_memrealtime s[68:69]"); e("s_waitcnt lgkmcnt(0)")
        e("s_add_u32 s12, s8, %d" % (ST_OFF + 65536)); e("s_addc_u32 s13, s9, 0"); e("s_and_b32 s13, s13, 0xffff"); e("s_mov_b32 s14, %d" % (1200 * 64)); e("s_mov_b32 s15, 0x00020000")
        e("s_lshl_b32 s33, s3, 6")
        if WFIRST: pass
        e("s_getreg_b32 s84, hwreg(HW_REG_HW_ID)"); e("s_getreg_b32 s85, hwreg(HW_REG_XCC_ID)")
        for k2, sr in enumerate((88, 92, 64, 66, 68, 90, 70, 72, 74, 76, 78, 80, 82, 84, 85)):
            e("v_mov_b32 v6, s%d" % sr); e("v_mov_b32 v5, %d" % (4 * k2)); e("s_mov_b64 exec, 1")
            e("buffer_store_dword v6, v5, s[12:15], s33 offen"); e("s_mov_b64 exec, -1")
    if STAMP: e("s_memrealtime s[92:93]")
    stamp(3)
    E.wait_token(('x', 3))
    if STAMP: e("s_memrealtime s[64:65]")
    stamp(4)
    reads(0)
    reads(1)
    reads(2)
    mm(0)
    mm(1)
    pack(0)
    if STAMP: e("s_memrealtime s[66:67]")
    stamp(5)
    rback(0)
    mm(2)
    pack(1)
    stores(0)
    rback(1)
    pack(2)
    stores(1)
    rback(2)
    stores(2)
    stamp(6)
    stamps()
    e("s_endpgm")
    E.label("K1_w")
    E.reset()
    if env('NOW', 0): e("s_endpgm")
    e("s_sub_u32 s20, s2, %d" % (0 if WFIRST else NX))
    e("s_mov_b32 s33, s19")
    e("s_and_b32 s25, s20, 3")
    e("s_lshr_b32 s23, s20, 2")
    e("s_mul_i32 s26, s23, 86"); e("s_lshr_b32 s26, s26, 8")
    e("s_mul_i32 s27, s26, 3"); e("s_sub_u32 s27, s23, s27")
    va("v_lshlrev_b32 v1, 4, v0", V(1), V(0))
    va("v_add_u32 v2, 1024, v1", V(2), V(1))
    e("s_mul_i32 s28, s26, %d" % (7 * 18432))
    e("s_mul_i32 s29, s27, %d" % (32 * 192)); e("s_add_u32 s28, s28, s29")
    e("s_mul_i32 s29, s25, %d" % (8 * 192)); e("s_add_u32 s28, s28, s29")
    KS = 2080
    e("s_lshl_b32 s29, s19, 10"); e("s_add_u32 s28, s28, s29")
    e("s_mov_b32 s30, s29")
    e("s_waitcnt lgkmcnt(0)")
    if env('TLBP', 0):
        e("s_mov_b32 s86, %d" % WF_OFF); e("s_load_dword s87, s[8:9], s86")
    e("s_mov_b32 s12, s6"); e("s_and_b32 s13, s7, 0xffff"); e("s_mov_b32 s14, %d" % WBYTES); e("s_mov_b32 s15, 0x00020000")
    for kw in range(7):
        e("s_add_u32 m0, s30, %d" % (kw * KS))
        e("s_add_u32 s29, s28, %d" % (kw * 18432))
        E.vload("buffer_load_dwordx4 v1, s[12:15], s29 offen lds", [], V(1), tok=('w', kw))
    va("v_lshlrev_b32 v2, 3, v0", V(2), V(0))
    e("s_add_u32 s10, s10, K1_gt-K1_pc"); e("s_addc_u32 s11, s11, 0")
    E.vload("global_load_dwordx2 v[20:21], v2, s[10:11]", V(20, 2), V(2))
    va("v_bfe_u32 v3, v0, 4, 1", V(3), V(0))
    va("v_bfe_u32 v4, v0, 2, 2", V(4), V(0))
    va("v_lshl_add_u32 v3, v3, 2, v4", V(3), V(3) + V(4))
    va("v_min_u32 v3, 6, v3", V(3), V(3))
    va("v_mul_u32_u24 v3, %d, v3" % KS, V(3), V(3))
    va("v_and_b32 v4, 3, v0", V(4), V(0))
    va("v_lshl_add_u32 v3, v4, 3, v3", V(3), V(3) + V(4))
    e("s_mul_i32 s29, s19, 96")
    va("v_add_u32 v3, s29, v3", V(3), V(3))
    va("v_lshrrev_b32 v4, 4, v0", V(4), V(0))
    va("v_mul_u32_u24 v1, %d, v4" % (3 * 28 * 1024), V(1), V(4))
    va("v_and_b32 v4, 15, v0", V(4), V(0))
    va("v_lshl_add_u32 v1, v4, 4, v1", V(1), V(1) + V(4))
    e("s_mul_i32 s28, s19, %d" % (3 * 4 * 3 * 28 * 1024))
    e("s_mul_i32 s29, s27, %d" % (28 * 1024)); e("s_add_u32 s28, s28, s29")
    e("s_lshl_b32 s29, s26, 10"); e("s_add_u32 s28, s28, s29")
    e("s_lshl_b32 s29, s25, 8"); e("s_add_u32 s28, s28, s29")
    e("s_add_u32 s16, s8, %d" % WF_OFF); e("s_addc_u32 s17, s9, 0"); e("s_and_b32 s17, s17, 0xffff"); e("s_mov_b32 s18, %d" % WF_SIZE); e("s_mov_b32 s19, 0x00020000")
    E.wait(0, None); E.barrier()
    for u in range(3):
        for i in range(8):
            a = 32 + 16 * u + 2 * i
            E.dsread("ds_read_b64_tr_b16 v[%d:%d], v3 offset:%d" % (a, a + 1, i * 192 + u * 32), V(a, 2), V(3))
    for u in range(3):
        d = 80 + 32 * (u % 2)
        for i in range(8):
            E.mfma16(('v', d + 4 * i), ('v', 20), ('v', 32 + 16 * u + 2 * i), None)
        for j in range(4):
            p = 144 + 4 * j
            for dd in range(4):
                va("v_cvt_pk_bf16_f32 v%d, v%d, v%d" % (p + dd, d + 8 * dd + j, d + 8 * dd + 4 + j), V(p + dd), V(d + 8 * dd + j) + V(d + 8 * dd + 4 + j))
            e("s_add_u32 s29, s28, %d" % (u * 4 * 3 * 28 * 1024 + j * 7 * 1024))
            E.vstore("buffer_store_dwordx4 v[%d:%d], v1, s[16:19], s29 offen%s" % (p, p + 3, K1SF), V(p, 4), V(1))
    if env('K1PF', 1):
        e("s_cmp_ge_u32 s20, 4"); e("s_cbranch_scc1 K1_nopf")
        e("s_getpc_b64 s[10:11]")
        E.label("K1_pc2")
        e("s_lshl_b32 s34, s20, 1"); e("s_add_u32 s34, s34, s33"); e("s_lshl_b32 s34, s34, 13")
        va("v_lshlrev_b32 v2, 7, v0", V(2), V(0))
        va("v_add_u32 v2, s34, v2", V(2), V(2))
        va("v_min_u32 v2, K2_code_end-K1_pc2-4, v2", V(2), V(2))
        E.vload("global_load_dword v4, v2, s[10:11]", V(4), V(2))
        E.label("K1_nopf")
    stamps()
    E.label("K1_end")
    e("s_endpgm")
    tb = np.zeros((64, 4), dtype=np.uint16)
    for l in range(64):
        n, g = l % 16, l // 16
        tb[l] = bf16bits(cfg.BT[n, 4 * g:4 * g + 4])
    E.raw(".p2align 8"); E.label("K1_bt"); E.raw(G['table'](tb.reshape(-1)))
    gc = np.zeros((16, 8)); gc[:, :7] = cfg.G[:, ::-1]
    ghi = bf16r(gc); glo = bf16r(gc - ghi.astype(np.float64))
    tg = np.zeros((64, 4), dtype=np.uint16)
    for l in range(64):
        n, g = l % 16, l // 16
        tg[l] = bf16bits((ghi if g < 2 else glo)[n, 4 * (g % 2):4 * (g % 2) + 4])
    E.label("K1_gt"); E.raw(G['table'](tg.reshape(-1)))
    sys.stderr.write("K1: %d instr, %d waits, %d nops\n" % (E.ninst, E.nwait, E.nnop))
    return G['head']("k1_kernel") + E.text() + G['KD'] % ("k1_kernel", 160, 96, 160), NX + NW, 128, 8 * 3088
```

```python
import sys, os
import numpy as np
from emit import *
from consts import bf16bits, bf16r

class Task:
    def __init__(s, name, ins, lo, hi, deps=()):
        s.name, s.ins, s.lo, s.hi = name, list(ins), lo, hi
        s.deps = [d if isinstance(d, tuple) else (d, 0) for d in deps]
        s.done_at = None

def gen_k2(G):
    env = G['env']; cfg = G['cfg']; S = G['S']; NREG = G['NREG']; NC = G['NC']; NCH = G['NCH']
    XW, XREG, XF_SIZE, WW, WF_OFF, WF_SIZE, ST_OFF, XBYTES, ROWB = [G[k] for k in 'XW XREG XF_SIZE WW WF_OFF WF_SIZE ST_OFF XBYTES ROWB'.split()]
    STAMP = env('STAMP', 0)
    PACE = env('PACE', 5); WLAT = env('WLAT', 90)
    E = Em(); e = E.salu
    va = lambda t, d, s_, **kw: E.valu(t, d, s_, **kw)
    class Frag:
        def __init__(s, kind, ch, c, idx, off):
            s.kind, s.ch, s.c, s.idx, s.off = kind, ch, c, idx, off
            s.first = None; s.last = None; s.reg = None; s.issue = None
        def __repr__(s): return "%s(ch%d c%d i%d)" % (s.kind, s.ch, s.c, s.idx)
    X = {}; Hf = {}; W = {}
    for ch in range(NCH):
        for c in range(NC):
            for r in range(S): X[ch, c, r] = Frag('X', ch, c, r, ((ch * NC + c) * S + r) * 1024)
            Hf[ch, c] = Frag('H', ch, c, 0, ((ch * NC + c) * S) * 1024)
            for kh in range(7): W[ch, c, kh] = Frag('W', ch, c, kh, ((ch * NC + c) * 7 + kh) * 1024)
    SHL = set([(NCH - 1, 2), (NCH - 1, 3)]) if env('SHL', 1) else set()
    XS = {}
    for (ch_, c_) in SHL:
        for n in range(1, 7): XS[ch_, c_, -n] = Frag('S', ch_, c_, -n, ((ch_ * NC + c_) * S + S - n) * 1024)
    ops = []
    def op(sl, r, ch, c, kh, cw): ops.append(((sl, r), (ch, c, r - kh), W[ch, cw, kh]))
    marks = {}
    def pstage(ch):
        for hi_, hs in enumerate([[0, 1, 2, 3], [4, 5, 6]]):
            marks['P%d_%d' % (ch, hi_)] = len(ops)
            if ch == 0 and hi_ == 0 and env('WAVEF', 1):
                prs = sorted([(max(7 - (r - kh), kh + env('WFB', 0)), -r, kh) for r in range(S) for kh in hs])
                fl = 0
                for lev, mr, kh in prs:
                    r = -mr
                    seq = [(0, 0, 0), (1, 0, 1), (1, 1, 0), (2, 1, 1)]
                    if fl: seq = seq[::-1]
                    for sl, cx, cw in seq: op(sl, r, ch, cx, kh, cw)
                    fl ^= 1
                continue
            for r in range(S - 1, -1, -1):
                for kh in hs: op(0, r, ch, 0, kh, 0)
                for kh in hs[::-1]: op(1, r, ch, 0, kh, 1)
                for kh in hs: op(1, r, ch, 1, kh, 0)
                for kh in hs[::-1]: op(2, r, ch, 1, kh, 1)
    def rstage(ch, u):
        for r in range(S - 1, -1, -1):
            for kh in range(7): op(2 + u, r, ch, 1 + u, kh, 1 + u)
    for ch in range(NCH - 1):
        pstage(ch); rstage(ch, 1); rstage(ch, 2)
    ch = NCH - 1
    pstage(ch)
    FIN = env('FIN', 2)
    step_end = {}
    if FIN == 1:
        rstage(ch, 1)
        marks['F'] = len(ops)
        for r in range(S - 1, -1, -1):
            for kh in range(7): op(4, r, ch, 3, kh, 3)
            step_end[r] = len(ops) - 1
    else:
        marks['F'] = len(ops)
        for r in range(S - 1, -1, -1):
            for kh in range(7): op(3, r, ch, 2, kh, 2)
            for kh in range(6, -1, -1): op(4, r, ch, 3, kh, 3)
            step_end[r] = len(ops) - 1
    N = len(ops)
    use = {}; acc_last = {}
    for i, (a, xk, w) in enumerate(ops):
        use.setdefault(xk, [i, i])[1] = i
        if w.first is None: w.first = i
        w.last = i
        acc_last[a] = i
    shifts = []
    for (ch, c, r), f in X.items():
        f.first, f.last = use[ch, c, r]
        if (ch, c) in SHL: continue
        if (ch, c, r - S) in use:
            a, b = use[ch, c, r - S]
            assert f.last < a - 12, (ch, c, r, f.last, a)
            shifts.append([f, S - r, f.last, a]); f.last = b
    for key, f in XS.items(): f.first, f.last = use[key]
    for key in SHL: del Hf[key]
    for (ch, c), h in Hf.items():
        sh = [s_ for s_ in shifts if s_[0].ch == ch and s_[0].c == c]
        h.first = max(env('H0', 50), min(s_[2] for s_ in sh) - env('HEARLY', 20)); h.last = max(s_[3] for s_ in sh)
    V_L16, V_HOFF, V_FR = 1, 2, 247
    accreg = {}
    for sl in range(3):
        for r in range(S): accreg[sl, r] = ('a', 4 * (sl * S + r))
    RV = env('RV', 1)
    vbase = 8
    abase = 96
    for sl in (3, 4):
        for r in range(S):
            if RV: accreg[sl, r] = ('v', vbase); vbase += 4
            else: accreg[sl, r] = ('a', abase); abase += 4
    vfree = [('v', x) for x in range(vbase, 253, 4) if x not in (244, 248)]
    afree = [('a', x) for x in range(abase, 253, 4)]
    vlast = {r: -1 for r in vfree}
    frags = list(X.values()) + list(Hf.values()) + list(W.values()) + list(XS.values())
    frags.sort(key=lambda f: (f.first - (env('SEARLY', 30) if f.kind == 'S' else 0), {'W': 1, 'X': 0, 'H': 2, 'S': 3}[f.kind]))
    gap = [[] for _ in range(N + 1)]
    pending = list(frags); active = []; pre = []
    TEMP_T = marks['P2_1'] - env('TEMPE', 60)
    NTEMP = env('NTEMP', 4)
    reserved = vfree[-NTEMP:]
    def alloc(f):
        if f.kind in 'WS':
            if afree: return afree.pop(0)
            return None
        for r in vfree:
            if r in reserved and f.last >= TEMP_T: continue
            vfree.remove(r); return r
        return None
    def release(upto):
        for f in list(active):
            if f.last < upto:
                active.remove(f); (afree if f.reg[0] == 'a' else vfree).append(f.reg)
    while pending and len(pre) < env('NPRE', 16):
        f = pending.pop(0); f.reg = alloc(f); f.issue = -1; pre.append(f); active.append(f)
    lastload = -100
    for i in range(1, N):
        release(i - 1)
        pace = env('PACE0', PACE) if i < env('RAMP', 0) else PACE
        if pending and (i - lastload >= pace or pending[0].first - i < env('URG', 40)):
            f = pending[0]; r = alloc(f)
            if r is not None:
                f.reg = r; f.issue = i; active.append(f); pending.pop(0); gap[i].append(('load', f)); lastload = i
            elif f.first - i < 3: raise Exception("no register for %s at %d" % (f, i))
    assert not pending
    for f in frags:
        if f.reg[0] == 'v': vlast[f.reg] = max(vlast[f.reg], f.last)
    la = [f.first - f.issue for f in frags if f.issue > 0]
    sys.stderr.write("K2 lookahead (slots): min %d p10 %d median %d\n" % (min(la), np.percentile(la, 10), np.median(la)))
    TPF = env('TPF', 0); TP = env('TP', 6); TLEAD = env('TLEAD', 90); NT0 = env('NT0', 14)
    touches = []
    if TPF:
        cand = []
        for m in range(768 // 6):
            line = 6 * m + 3
            f = X[(6 * m // 8) // (NC * S), ((6 * m // 8) // S) % NC, (6 * m // 8) % S]
            cand.append((f.issue, 'X', m * 768))
        for m in range(672 // 5):
            fi = 5 * m // 8
            f = W[fi // (NC * 7), (fi // 7) % NC, fi % 7]
            cand.append((f.issue, 'W', m * 640))
        cand.sort()
        cand = [c for c in cand if c[0] > env('TSKIP', 0)]
        pre_t = cand[:NT0]; rest = cand[NT0:]
        touches = pre_t
        i = env('T0', 40)
        while rest and i < N:
            while rest and rest[0][0] - i < TLEAD: rest.pop(0)
            if not rest: break
            gap[i].append(('touch', rest.pop(0))); i += TP
        sys.stderr.write("K2 touches: %d in prologue, %d in loop\n" % (len(pre_t), sum(1 for g in gap for x in g if x[0] == 'touch')))
    cnt = [len(g) for g in gap]
    if env('PREDW', 1):
        order_ = pre + [x[1] for g in gap for x in g if x[0] == 'load']
        posn = {id(f): k for k, f in enumerate(order_)}
        done_ = -1; nw_ = 0
        for i, (a_, xk, w_) in enumerate(ops):
            ch_, c_, rho_ = xk
            xf_ = XS[xk] if (rho_ < 0 and (ch_, c_) in SHL) else X[ch_, c_, rho_ if rho_ >= 0 else rho_ + S]
            k = max(posn[id(xf_)], posn[id(w_)])
            if k > done_:
                while k + 1 < len(order_) and order_[k + 1].issue >= 0 and order_[k + 1].issue + WLAT <= i and order_[k + 1].issue < i: k += 1
                done_ = k; cnt[i] += 1; nw_ += 1
        sys.stderr.write("K2 predicted waits: %d\n" % nw_)
    tasks = []
    slot_now = [0]
    def prewait(rs):
        rs = set(rs); idx = None; cur = slot_now[0]
        for i, d in enumerate(E.vm):
            if d & rs: idx = i
        if idx is None: return
        while idx + 1 < len(E.vm):
            sl = [t[1] for t in E.vm[idx + 1] if t[0] == 'slot']
            if sl and sl[0] >= 0 and sl[0] + WLAT <= cur: idx += 1
            else: break
        E.wait(len(E.vm) - 1 - idx, None)
    def mk_shift(f, n):
        h = Hf[f.ch, f.c]
        ins = []
        for d in range(4):
            def mv(d=d):
                r = f.reg[1] + d; prewait(V(r))
                va("v_mov_b32_dpp v%d, v%d row_shr:1 row_mask:0xf bank_mask:0xf" % (r, r), V(r), [], dpp=V(r))
            ins.append(mv)
        for d in range(4):
            def cm(d=d):
                r = f.reg[1] + d; hr = h.reg[1] + d; k = 6 - n
                prewait(V(hr))
                if k > 0: va("v_cndmask_b32_dpp v%d, v%d, v%d, vcc row_shl:%d row_mask:0xf bank_mask:0xf" % (r, hr, r, k), V(r), V(r), dpp=V(hr))
                else: va("v_cndmask_b32 v%d, v%d, v%d, vcc" % (r, hr, r), V(r), V(r) + V(hr))
            ins.append(cm)
        return ins
    for f, n, lo, hi in shifts:
        h = Hf[f.ch, f.c]
        lo2 = max(lo + 1, min(h.issue + env('HLAT', 60), hi - 20) if h.issue > 0 else 0)
        tasks.append(Task('sh', mk_shift(f, n), lo2, hi - 3))
    PL = 32768; STG = 3 * PL; LDS = STG + 4 * 16384
    tmp = [r[1] for r in reserved]
    late = sorted([r[1] for r, l in vlast.items() if r not in reserved and l < marks['F'] + 2])
    a0, a1 = 244, 248
    AT = 4
    V_WP, V_WR, V_IR, V_SW = a0, a0 + 1, a0 + 2, a0 + 3
    assert env('DST', 1)
    V_SW = 240
    V_SR, V_O0, V_O1, V_SH = a1, a1 + 1, a1 + 2, a1 + 3
    V_SR = 241
    sc = [236 + i for i in range(8)]
    PT = [tmp[0], tmp[1], tmp[2], tmp[3]]
    setup = []
    MK = 64 if STAMP else 70
    def S_(fn): setup.append(fn)
    t0, t1, t2, t3, t4, t5, t6, t7 = sc
    vv = lambda t, d, s_: S_(lambda: va(t, d, s_))
    ss = lambda t: S_(lambda: e(t))
    vv("v_and_b32 v%d, 15, v0" % t1, V(t1), V(0))
    vv("v_lshrrev_b32 v%d, 4, v0" % t2, V(t2), V(0))
    vv("v_lshlrev_b32 v%d, 10, v%d" % (t3, t2), V(t3), V(t2))
    vv("v_lshl_add_u32 v%d, v%d, 4, v%d" % (t3, t1, t3), V(t3), V(t1) + V(t3))
    ss("s_lshr_b32 s33, s24, 1"); ss("s_mul_i32 s33, s33, %d" % PL); ss("s_and_b32 s34, s24, 1"); ss("s_lshl_b32 s34, s34, 3"); ss("s_add_u32 s33, s33, s34")
    vv("v_add_u32 v%d, s33, v%d" % (V_WP, t3), V(V_WP), V(t3))
    vv("v_xor_b32 v%d, s24, v%d" % (t4, t2), V(t4), V(t2))
    vv("v_lshl_add_u32 v%d, v%d, 2, v%d" % (t4, t4, t3), V(t4), V(t4) + V(t3))
    vv("v_add_u32 v%d, %d, v%d" % (V_WR, 2 * PL, t4), V(V_WR), V(t4))
    vv("v_min_u32 v%d, 2, v%d" % (t3, t2), V(t3), V(t2))
    vv("v_lshlrev_b32 v%d, 15, v%d" % (t3, t3), V(t3), V(t3))
    vv("v_lshl_add_u32 v%d, v%d, 4, v%d" % (t3, t1, t3), V(t3), V(t1) + V(t3))
    ss("s_lshl_b32 s33, s24, 10")
    vv("v_add_u32 v%d, s33, v%d" % (V_IR, t3), V(V_IR), V(t3))
    ss("s_lshl_b32 s33, s24, 14"); ss("s_add_u32 s33, s33, %d" % STG)
    vv("v_and_b32 v%d, 15, v0" % t1, V(t1), V(0))
    vv("v_lshrrev_b32 v%d, 1, v%d" % (t3, t2), V(t3), V(t2))
    vv("v_lshl_add_u32 v%d, v%d, 1, v%d" % (t3, t1, t3), V(t3), V(t1) + V(t3))
    vv("v_bfe_u32 v%d, v%d, 2, 1" % (t4, t1), V(t4), V(t1))
    vv("v_xor_b32 v%d, v%d, v%d" % (t3, t3, t4), V(t3), V(t3) + V(t4))
    vv("v_and_b32 v%d, 1, v%d" % (t4, t2), V(t4), V(t2))
    vv("v_lshlrev_b32 v%d, %d, v%d" % (t4, 9 if env('B128', 1) else 3, t4), V(t4), V(t4))
    vv("v_lshl_add_u32 v%d, v%d, 4, v%d" % (t3, t3, t4), V(t3), V(t3) + V(t4))
    vv("v_add_u32 v%d, s33, v%d" % (V_SW, t3), V(V_SW), V(t3))
    vv("v_bfe_u32 v%d, v0, 3, 1" % t4, V(t4), V(0))
    vv("v_xor_b32 v%d, v0, v%d" % (t4, t4), V(t4), V(0) + V(t4))
    vv("v_lshl_add_u32 v%d, v%d, 4, s33" % (V_SR, t4), V(V_SR), V(t4))
    if env('DST', 1):
        vv("v_bfe_u32 v%d, v0, 4, 1" % t0, V(t0), V(0))
        vv("v_and_b32 v%d, 15, v0" % t1, V(t1), V(0))
        vv("v_lshrrev_b32 v%d, 5, v0" % t2, V(t2), V(0))
    else:
        vv("v_lshrrev_b32 v%d, 5, v0" % t0, V(t0), V(0))
        vv("v_bfe_u32 v%d, v0, 1, 4" % t1, V(t1), V(0))
        vv("v_and_b32 v%d, 1, v0" % t2, V(t2), V(0))
    ss("s_mov_b32 s38, 224"); ss("s_mov_b32 s35, 2260"); ss("s_mov_b32 s37, 192")
    for p in range(2):
        o = V_O0 + p
        ss("s_lshl_b32 s33, s27, 4"); ss("s_lshl_b32 s34, s24, 2"); ss("s_add_u32 s33, s33, s34"); ss("s_add_u32 s33, s33, %d" % (2 * p))
        vv("v_add_u32 v%d, s33, v%d" % (t3, t0), V(t3), V(t0))
        vv("v_mul_u32_u24 v%d, s35, v%d" % (t4, t3), V(t4), V(t3))
        vv("v_lshrrev_b32 v%d, 16, v%d" % (t4, t4), V(t4), V(t4))
        vv("v_mul_u32_u24 v%d, 29, v%d" % (t5, t4), V(t5), V(t4))
        vv("v_sub_u32 v%d, v%d, v%d" % (t5, t3, t5), V(t5), V(t3) + V(t5))
        vv("v_mul_u32_u24 v%d, 10, v%d" % (t6, t4), V(t6), V(t4))
        vv("v_add_u32 v%d, v%d, v%d" % (t6, t6, t1), V(t6), V(t6) + V(t1))
        vv("v_subrev_u32 v%d, 1, v%d" % (t7, t5), V(t7), V(t5))
        vv("v_mul_u32_u24 v%d, %d, v%d" % (t7, 8 * 224, t7), V(t7), V(t7))
        vv("v_add_u32 v%d, v%d, v%d" % (t7, t7, t6), V(t7), V(t7) + V(t6))
        vv("v_mul_lo_u32 v%d, v%d, s37" % (t7, t7), V(t7), V(t7))
        vv("v_lshl_add_u32 v%d, v%d, 4, v%d" % (t7, t2, t7), V(t7), V(t7) + V(t2))
        ss("s_lshl_b32 s34, s28, 5")
        vv("v_add_u32 v%d, s34, v%d" % (t7, t7), V(t7), V(t7))
        vv("v_cmp_ne_u32 s[%d:%d], 0, v%d" % (MK, MK + 1, t5), [], V(t5))
        vv("v_cmp_gt_u32 s[%d:%d], 10, v%d" % (MK + 2, MK + 3, t1), [], V(t1))
        vv("v_cmp_gt_u32 s[%d:%d], s38, v%d" % (MK + 4, MK + 5, t6), [], V(t6))
        vv("v_mov_b32 v%d, 0x7fffffff" % t3, V(t3), [])
        S_(lambda: E.nop(3))
        ss("s_and_b64 s[%d:%d], s[%d:%d], s[%d:%d]" % (MK, MK + 1, MK, MK + 1, MK + 2, MK + 3)); ss("s_and_b64 s[%d:%d], s[%d:%d], s[%d:%d]" % (MK, MK + 1, MK, MK + 1, MK + 4, MK + 5))
        S_(lambda: E.nop(1))
        vv("v_cndmask_b32 v%d, v%d, v%d, s[%d:%d]" % (o, t3, t7, MK, MK + 1), V(o), V(t3) + V(t7))
    ss("s_cmp_eq_u32 s27, 0"); ss("s_cselect_b32 s33, 0, %d" % XREG)
    vv("v_and_b32 v%d, 15, v0" % t3, V(t3), V(0))
    vv("v_add_u32 v%d, -1, v%d" % (t3, t3), V(t3), V(t3))
    vv("v_lshrrev_b32 v%d, 2, v%d" % (t4, t3), V(t4), V(t3))
    vv("v_lshlrev_b32 v%d, 8, v%d" % (t4, t4), V(t4), V(t4))
    vv("v_and_b32 v%d, 3, v%d" % (t3, t3), V(t3), V(t3))
    vv("v_lshl_add_u32 v%d, v%d, 4, v%d" % (t3, t3, t4), V(t3), V(t3) + V(t4))
    vv("v_lshrrev_b32 v%d, 4, v0" % t4, V(t4), V(0))
    vv("v_lshlrev_b32 v%d, 6, v%d" % (t4, t4), V(t4), V(t4))
    vv("v_add3_u32 v%d, v%d, v%d, s33" % (t3, t3, t4), V(t3), V(t3) + V(t4))
    vv("v_add_u32 v%d, 816, v%d" % (t4, t4), V(t4), V(t4))
    vv("v_cndmask_b32 v%d, v%d, v%d, vcc" % (V_SH, t4, t3), V(V_SH), V(t4) + V(t3))
    ss("s_mov_b32 s6, %d" % XBYTES); ss("s_mov_b32 s7, 0x00020000"); ss("s_and_b32 s5, s5, 0xffff")
    mreg = 64 if STAMP else 94
    ss("s_mov_b32 s%d, 0x03ff03ff" % mreg); ss("s_mov_b32 s%d, 0x03ff03ff" % (mreg + 1))
    T_setup = Task('setup', [], 0, 0); T_setup.done_at = 0
    T_pp = {}
    prev = T_setup
    for r in range(S - 1, -1, -1):
        rd = {}; cv = {}; wr = {}
        for j in range(4):
            t = PT[j]
            rd[j] = [(lambda t=t, sl=sl, ar=accreg[sl, r][1] + j: va("v_accvgpr_read_b32 v%d, a%d" % (t + sl, ar), V(t + sl), A(ar))) for sl in range(3)]
            cv[j] = [lambda t=t: va("v_cvt_pk_bf16_f32 v%d, v%d, v%d" % (t, t, t + 1), V(t), V(t, 2)), lambda t=t: va("v_cvt_pk_bf16_f32 v%d, v%d, 0" % (t + 1, t + 2), V(t + 1), V(t + 2))]
            wr[j] = [lambda t=t, j=j, r=r: E.dswrite("ds_write_b64 v%d, v[%d:%d] offset:%d" % (V_WP, t, t + 1, (r * 16 + j) * 256), V(t, 2), V(V_WP))]
        ins = rd[0] + rd[1] + cv[0] + rd[2] + wr[0] + cv[1] + rd[3] + wr[1] + cv[2] + cv[3] + wr[2] + wr[3]
        lo = max(acc_last[sl, r] for sl in range(3)) + 6
        T_pp[r] = Task('pp%d' % r, ins, lo, step_end[r] + 4, [prev]); prev = T_pp[r]; tasks.append(T_pp[r])
    RT = late[0:2]
    order = list(range(S - 1, -1, -1))
    T_rp = {}
    for si, r in enumerate(order):
        se = step_end[r]
        ins = []
        for j in range(4):
            t = RT[si % 2] + j
            r1 = accreg[3, r][1] + j; r2 = accreg[4, r][1] + j
            ins.append(lambda t=t, r1=r1, r2=r2: va("v_cvt_pk_bf16_f32 v%d, v%d, v%d" % (t, r1, r2), V(t), V(r1) + V(r2)))
        for j in range(4):
            t = RT[si % 2] + j
            ins.append(lambda t=t, j=j, r=r: E.dswrite("ds_write_b32 v%d, v%d offset:%d" % (V_WR, t, (r * 16 + j) * 256), V(t), V(V_WR), tok=('rp', r)))
        T_rp[r] = Task('rp%d' % r, ins, se + 4, se + 10, [T_pp[r]])
        tasks.append(T_rp[r])
    B128 = env('B128', 1)
    lateA = [x for x in late if x not in RT]
    def inv_seq(rows, AFp, DIp, OUTp):
        na, nd, no = len(AFp) // 4, len(DIp) // 4, len(OUTp) // 2
        def reads(si):
            r = rows[si]
            return [lambda a=a, r=r, f=AFp[4 * (si % na) + a]: E.dsread("ds_read_b128 v[%d:%d], v%d offset:%d" % (f, f + 3, V_IR, (r * 16 + a) * 256), V(f, 4), V(V_IR)) for a in range(4)]
        def mm(si):
            return [lambda a=a: E.mfma(('v', DIp[4 * (si % nd) + a]), ('v', AFp[4 * (si % na) + a]), ('v', AT), None) for a in range(4)]
        def cw(si):
            r = rows[si]; ins = []
            D = [DIp[4 * (si % nd) + a] for a in range(4)]
            if not B128:
                for a in range(4):
                    d = D[a]
                    ins.append(lambda d=d: va("v_cvt_pk_bf16_f32 v%d, v%d, v%d" % (d, d, d + 1), V(d), V(d, 2)))
                    ins.append(lambda d=d: va("v_cvt_pk_bf16_f32 v%d, v%d, v%d" % (d + 1, d + 2, d + 3), V(d + 1), V(d + 2, 2)))
            if B128:
                for p in range(2):
                    d0 = D[2 * p]
                    ins.append(lambda d0=d0: va("v_cvt_pk_bf16_f32 v%d, v%d, v%d" % (d0, d0, d0 + 1), V(d0), V(d0, 2)))
                    ins.append(lambda d0=d0: va("v_cvt_pk_bf16_f32 v%d, v%d, v%d" % (d0 + 1, d0 + 2, d0 + 3), V(d0 + 1), V(d0 + 2, 2)))
                for p in range(2):
                    d0, d1 = D[2 * p], D[2 * p + 1]
                    ins.append(lambda d0=d0, d1=d1: va("v_cvt_pk_bf16_f32 v%d, v%d, v%d" % (d0 + 2, d1, d1 + 1), V(d0 + 2), V(d1, 2)))
                    ins.append(lambda d0=d0, d1=d1: va("v_cvt_pk_bf16_f32 v%d, v%d, v%d" % (d0 + 3, d1 + 2, d1 + 3), V(d0 + 3), V(d1 + 2, 2)))
                for p in range(2):
                    d0 = D[2 * p]
                    ins.append(lambda d0=d0: va("v_permlane16_swap_b32 v%d, v%d" % (d0, d0 + 2), V(d0) + V(d0 + 2), V(d0) + V(d0 + 2), perm=True))
                    ins.append(lambda d0=d0: va("v_permlane16_swap_b32 v%d, v%d" % (d0 + 1, d0 + 3), V(d0 + 1) + V(d0 + 3), V(d0 + 1) + V(d0 + 3), perm=True))
                if env('DST', 1):
                    def both(r=r, D=D):
                        e("s_mov_b32 s33, %d" % (r * ROWB))
                        E._need(V(D[0], 4) + V(D[2], 4))
                        E._pad(max(E._dist(V(D[0], 4) + V(D[2], 4), {'mfma': 8}), 0))
                        if env('XM', 1): e("s_mov_b64 exec, s[94:95]" if not STAMP else "s_mov_b64 exec, s[64:65]")
                        for p in range(2):
                            d0 = D[2 * p]
                            if env('NOOUT', 0) == 1 or (env('NOOUT', 0) == 2 and p): continue
                            E.vstore("buffer_store_dwordx4 v[%d:%d], v%d, s[4:7], s33 offen%s" % (d0, d0 + 3, V_O0 + p, env('OSF', '')), V(d0, 4), V(V_O0 + p))
                        if env('XM', 1): e("s_mov_b64 exec, -1")
                        if str(r) in env('WB', '').split(','):
                            e("s_lshl_b32 s34, s2, 2"); e("s_add_u32 s34, s34, s24")
                            e("s_cmp_ge_u32 s34, %d" % env('WBN', 32)); e("s_cbranch_scc1 K2_nowb%d" % r)
                            e("s_cmp_lg_u32 s24, 0"); e("s_cbranch_scc1 K2_nowb%d" % r)
                            e("buffer_wbl2 sc1")
                            E.label("K2_nowb%d" % r)
                    ins.append(both)
                    return ins
                for p in range(2):
                    d0 = D[2 * p]
                    ins.append(lambda d0=d0, p=p, r=r: E.dswrite("ds_write_b128 v%d, v[%d:%d] offset:%d" % (V_SW, d0, d0 + 3, (r * 4 + 2 * p) * 512), V(d0, 4), V(V_SW)))
            else:
                for a in range(4):
                    d = D[a]
                    ins.append(lambda d=d, a=a, r=r: E.dswrite("ds_write_b64 v%d, v[%d:%d] offset:%d" % (V_SW, d, d + 1, (r * 4 + a) * 512), V(d, 2), V(V_SW)))
            for p in range(2):
                o = OUTp[2 * (si % no) + p]
                ins.append(lambda o=o, p=p, r=r: E.dsread("ds_read_b128 v[%d:%d], v%d offset:%d" % (o, o + 3, V_SR, (r * 4 + 2 * p) * 512), V(o, 4), V(V_SR)))
            return ins
        def st(si):
            if env('DST', 1): return []
            r = rows[si]; ins = [lambda r=r: e("s_mov_b32 s33, %d" % (r * ROWB))]
            for p in range(2):
                o = OUTp[2 * (si % no) + p]
                if env('NOOUT', 0): continue
                ins.append(lambda o=o, p=p: E.vstore("buffer_store_dwordx4 v[%d:%d], v%d, s[4:7], s33 offen%s" % (o, o + 3, V_O0 + p, env('OSF', '')), V(o, 4), V(V_O0 + p)))
            return ins
        n = len(rows); seq = []
        head = []
        for si in range(min(na, n)): head += reads(si)
        for si in range(n + 2):
            if si < n: seq += mm(si)
            if si + na < n: seq += reads(si + na)
            if no == 1 and 0 <= si - 2 < n: seq += st(si - 2)
            if 0 <= si - 1 < n: seq += cw(si - 1)
            if no > 1 and 0 <= si - 2 < n: seq += st(si - 2)
        return head, seq
    NA = env('NA', 4 if FIN == 1 else 7)
    rowsA = order[:NA]; rowsB = order[NA:]
    T_A = None
    if NA and FIN == 1:
        assert len(lateA) >= 16, lateA
        hA, sA = inv_seq(rowsA, lateA[0:8], lateA[8:16], [lateA[16], lateA[17]] if len(lateA) >= 18 else [0, 0])
        def barA(): E._need([('rp', rowsA[-1])]); E.barrier()
        T_barA = Task('barA', [barA], 0, step_end[rowsA[-1]] + 12, [(T_rp[rowsA[-1]], env('LBA', 4))])
        T_A = Task('invA', hA + sA, 0, N + 500, [T_barA])
        tasks += [T_barA, T_A]
    if NA and FIN == 2:
        assert len(lateA) >= 16, lateA
        AF2 = lateA[0:8]; DI2 = lateA[8:16]
        L1, L2, L3 = env('L1', 4), env('L2', 7), env('L3', 3)
        pb = None; pm = {}; pc = {}
        for si, r in enumerate(rowsA):
            se = step_end[r]
            def bar(r=r):
                if env('NOBAR', 0) in (1, 2):
                    if env('NOBAR', 0) == 2: E._need([('rp', r)])
                    return
                E._need([('rp', r)]); E.barrier()
            tb_ = Task('bar%d' % r, [bar], 0, se + 12, [(T_rp[r], L1)] + ([pb] if pb else []))
            pb = tb_
            af = AF2[4 * (si % 2):4 * (si % 2) + 4]; di = DI2[4 * (si % 2):4 * (si % 2) + 4]
            h_, s_ = inv_seq([r], af, di, [0, 0])
            mms, rest = s_[:4], s_[4:]
            t1_ = Task('rd%d' % r, h_, 0, se + 16, [tb_] + ([pm[si - 2]] if si >= 2 else []))
            t2_ = Task('mm%d' % r, mms, 0, se + 26, [(t1_, L2)] + ([pc[si - 2]] if si >= 2 else []))
            t3_ = Task('cw%d' % r, rest, 0, se + 40, [(t2_, L3)])
            pm[si] = t2_; pc[si] = t3_
            tasks += [tb_, t1_, t2_, t3_]
    def final():
        used = set(lateA[:18]) if NA else set()
        pool = sorted(set([accreg[sl, r][1] for sl in (3, 4) for r in rowsA] + [r_[1] for r_ in vlast.keys() if r_ not in reserved]) - set(RT) - used)
        nb = len(rowsB)
        hB, sB = inv_seq(rowsB, pool[0:4 * min(nb, 4)], pool[16:24], pool[24:28])
        E.wait(None, 0)
        if STAMP == 3: e("s_memtime s[72:73]")
        E.barrier()
        if STAMP == 3: e("s_memtime s[74:75]")
        for f in hB: f()
        if T_A is not None:
            for f in T_A.rest: f()
        for x in deferred:
            for f in x: f()
        if STAMP == 3: e("s_memtime s[84:85]")
        for k_, f in enumerate(sB):
            f()
            if STAMP == 3 and k_ == len(sB) // 2: e("s_memtime s[86:87]")
    deferred = []
    def budget(i):
        if i >= marks['F']: return env('BF', 3)
        if i >= TEMP_T: return env('BP', 2)
        return 1
    MAXF = env('MAXF', 2)
    delay = {}
    for i in range(1, N + 1):
        k = 0
        while True:
            avail = [x for x in tasks if x.ins and (x.lo <= i or i == N) and all(d.done_at is not None and (i == N or i >= d.done_at + lg) for d, lg in x.deps)]
            if not avail: break
            avail.sort(key=lambda x: x.hi)
            if i < N:
                b = budget(i) - cnt[i]
                urgent = False
                if b <= k:
                    if k >= max(MAXF, budget(i)) - cnt[i]: break
                    tot = 0
                    for y in sorted([x for x in tasks if x.ins and x.lo <= i + 40 and x.name == 'sh'], key=lambda x: x.hi):
                        tot += len(y.ins)
                        cap = sum(1 for g in range(i + 1, min(y.hi + 1, N)) if cnt[g] == 0)
                        if tot - 1 > cap * env('URGF', 0.9): urgent = True; break
                    if not urgent: break
            x = avail[0]
            if i == N and x.name == 'invA':
                x.rest = list(x.ins); x.ins = []; x.done_at = i; continue
            if i == N and x.name[:2] in ('mm', 'cw'):
                deferred.append(list(x.ins)); x.ins = []; x.done_at = i; continue
            if x.name == 'sh': assert i <= x.hi, ("shift late", i, x.hi)
            gap[i].append(('ins', x.ins.pop(0), x.name)); k += 1
            if not x.ins: x.done_at = i
        cnt[i] += k
    if T_A is not None and not hasattr(T_A, 'rest'): T_A.rest = []
    assert all(not x.ins for x in tasks), [x.name for x in tasks if x.ins]
    sys.stderr.write("K2 tail after last MFMA: %d instr; done: %s\n" % (len(gap[N]), " ".join("%s@%d" % (x.name, x.done_at - marks['F']) for x in tasks if x.name[:2] in ('pp', 'ba', 'cw'))))
    e("s_load_dwordx2 s[8:9], s[0:1], 32")
    e("s_load_dwordx2 s[4:5], s[0:1], 16")
    if STAMP: e("s_memtime s[70:71]"); e("s_memrealtime s[80:81]")
    e("s_getpc_b64 s[10:11]")
    E.label("K2_pc")
    e("s_cmp_ge_u32 s2, 256"); e("s_cbranch_scc1 K2_end")
    va("v_lshrrev_b32 v3, 6, v0", V(3), V(0))
    if env('CPF', 1):
        va("v_lshlrev_b32 v4, 7, v0", V(4), V(0))
        va("v_min_u32 v4, K2_code_end-K2_pc-4, v4", V(4), V(4))
    va("v_and_b32 v0, 63, v0", V(0), V(0))
    E.nop(1)
    e("v_readfirstlane_b32 s24, v3")
    if env('CPF', 1):
        e("s_cmp_ge_u32 s2, 8"); e("s_cbranch_scc1 K2_nocpf")
        E.vload("global_load_dword v255, v4, s[10:11]", V(255), V(4))
        E.label("K2_nocpf")
    e("s_and_b32 s25, s2, 7"); e("s_lshr_b32 s26, s2, 3")
    e("s_mul_i32 s27, s26, 43"); e("s_lshr_b32 s27, s27, 8"); e("s_mul_i32 s28, s27, 6"); e("s_sub_u32 s28, s26, s28")
    e("s_lshl_b32 s27, s27, 3"); e("s_add_u32 s27, s27, s25")
    e("s_cmp_lt_u32 s26, 30"); e("s_cbranch_scc1 K2_map")
    e("s_lshl_b32 s29, s25, 1"); e("s_add_u32 s29, s29, s26"); e("s_sub_u32 s29, s29, 30")
    e("s_mul_i32 s27, s29, 43"); e("s_lshr_b32 s27, s27, 8"); e("s_mul_i32 s28, s27, 6"); e("s_sub_u32 s28, s29, s28"); e("s_add_u32 s27, s27, 40")
    E.label("K2_map")
    e("s_cmp_ge_u32 s27, %d" % NREG); e("s_cbranch_scc1 K2_end")
    va("v_lshlrev_b32 v%d, 4, v0" % V_L16, V(V_L16), V(0))
    va("v_and_b32 v3, 15, v0", V(3), V(0))
    va("v_cmp_ne_u32 vcc, 0, v3", [], V(3))
    va("v_lshrrev_b32 v4, 4, v0", V(4), V(0))
    va("v_lshlrev_b32 v4, 6, v4", V(4), V(4))
    va("v_lshrrev_b32 v5, 2, v3", V(5), V(3))
    va("v_lshl_add_u32 v5, v5, 8, v4", V(5), V(5) + V(4))
    va("v_and_b32 v6, 3, v0", V(6), V(0))
    va("v_lshl_add_u32 v%d, v6, 4, v5" % V_FR, V(V_FR), V(5) + V(6))
    va("v_min_u32 v3, 5, v3", V(3), V(3))
    va("v_add_u32 v3, %d, v3" % (S - 6), V(3), V(3))
    va("v_lshlrev_b32 v3, 10, v3", V(3), V(3))
    va("v_add3_u32 v%d, v3, v4, s%d" % (V_HOFF, 33) if False else "v_add_u32 v3, v3, v4", V(3), V(3) + V(4))
    va("v_add_u32 v%d, 816, v3" % V_HOFF, V(V_HOFF), V(3))
    e("s_lshl_b32 s29, s27, 2"); e("s_add_u32 s29, s29, s24"); e("s_mul_i32 s29, s29, %d" % XW)
    e("s_max_u32 s30, s27, 1"); e("s_sub_u32 s30, s30, 1"); e("s_lshl_b32 s30, s30, 2"); e("s_add_u32 s30, s30, s24"); e("s_mul_i32 s30, s30, %d" % XW)
    e("s_lshl_b32 s31, s28, 2"); e("s_add_u32 s31, s31, s24"); e("s_mul_i32 s31, s31, %d" % WW); e("s_add_u32 s31, s31, %d" % WF_OFF)
    ROT = env('ROT', 0)
    if ROT:
        e("s_lshr_b32 s33, s27, 3"); e("s_add_u32 s33, s33, s28")
        if ROT == 2:
            e("s_and_b32 s32, s33, 1"); e("s_xor_b32 s36, s32, 1"); e("s_mov_b32 s39, 2")
        else:
            e("s_mul_i32 s34, s33, 86"); e("s_lshr_b32 s34, s34, 8"); e("s_mul_i32 s34, s34, 3"); e("s_sub_u32 s32, s33, s34")
            e("s_add_u32 s36, s32, 1"); e("s_cmp_eq_u32 s36, 3"); e("s_cselect_b32 s36, 0, s36")
            e("s_add_u32 s39, s36, 1"); e("s_cmp_eq_u32 s39, 3"); e("s_cselect_b32 s39, 0, s39")
    else:
        e("s_mov_b32 s32, 0"); e("s_mov_b32 s36, 1"); e("s_mov_b32 s39, 2")
    SRD = {'X': [12, 40, 44], 'W': [16, 48, 52], 'H': [20, 56, 60]}
    CH = [32, 36, 39]
    def srd_off(kind, ch):
        base = {'X': 29, 'W': 31, 'H': 30}[kind]; stride = {'X': 32768, 'W': 28672, 'H': 32768}[kind]
        sr = SRD[kind][ch]
        e("s_mul_i32 s%d, s%d, %d" % (sr + 2, CH[ch], stride)); e("s_add_u32 s%d, s%d, s%d" % (sr + 2, sr + 2, base))
    def srd_fin(kind, ch):
        sr = SRD[kind][ch]; sz = {'X': 32768, 'W': 28672, 'H': XREG + 32768}[kind]
        e("s_add_u32 s%d, s8, s%d" % (sr, sr + 2)); e("s_addc_u32 s%d, s9, 0" % (sr + 1)); e("s_and_b32 s%d, s%d, 0xffff" % (sr + 1, sr + 1))
        e("s_mov_b32 s%d, %d" % (sr + 2, sz)); e("s_mov_b32 s%d, 0x00020000" % (sr + 3))
    for kind in 'XW': srd_off(kind, 0)
    e("s_waitcnt lgkmcnt(0)")
    for kind in 'XW': srd_fin(kind, 0)
    CST = [None, 25, 26, 64, 65, 66, 67, 68] if not STAMP else [None, 25, 26, 96, 97, 98, 99, 100]
    need0 = sorted(set((f.off % (32768 if f.kind != 'W' else 28672)) // 4096 for f in pre) - {0})
    for j in need0: e("s_mov_b32 s%d, %d" % (CST[j], j * 4096))
    def late_srds():
        for j in range(1, 8):
            if j not in need0: e("s_mov_b32 s%d, %d" % (CST[j], j * 4096))
        for kind, ch in [('H', 0), ('X', 1), ('W', 1), ('H', 1), ('X', 2), ('W', 2), ('H', 2)]:
            srd_off(kind, ch); srd_fin(kind, ch)
    def load(f, slot):
        stride = 28672 if f.kind == 'W' else 32768
        off = f.off % stride
        assert f.off // stride == f.ch
        so = off // 4096; io = off % 4096
        sreg = "0" if so == 0 else "s%d" % CST[so]
        kind = {'X': 'X', 'W': 'W', 'H': 'H', 'S': 'H'}[f.kind]
        sr = SRD[kind][f.ch]
        vo = {'X': V_FR, 'W': V_L16, 'H': V_HOFF, 'S': V_SH}[f.kind]
        E.vload("buffer_load_dwordx4 %s, v%d, s[%d:%d], %s offen offset:%d%s" % (rn(f.reg), vo, sr, sr + 3, sreg, io, env('LDW', ' sc1') if f.kind == 'W' else env('LDX', ' sc1')), regs(f.reg), V(vo), tok=('slot', slot))
    assert all(f.kind in 'XW' and f.ch == 0 for f in pre), pre
    e("s_add_u32 s10, s10, K2_at-K2_pc"); e("s_addc_u32 s11, s11, 0")
    e("s_lshl_b32 s33, s24, 10")
    va("v_add_u32 v3, s33, v%d" % V_L16, V(3), V(V_L16))
    def touch(c): raise Exception('touch disabled')
    npre0 = env('ATPOS', 99)
    NP1 = env('NP1', 12)
    for f in pre[:NP1]: load(f, -1)
    late_srds()
    for fn in setup: fn()
    for f in pre[NP1:]: load(f, -1)
    E.vload("global_load_dwordx4 v[4:7], v3, s[10:11]", V(4, 4), V(3), tok=('slot', -1))
    if STAMP and STAMP != 3: e("s_memtime s[72:73]")
    started = set()
    for i in range(N + 1):
        slot_now[0] = i
        if i == N and STAMP: e("s_memtime s[76:77]"); e("s_memrealtime s[82:83]")
        for x in gap[i]:
            if x[0] == 'load': load(x[1], i)
            elif x[0] == 'touch': touch(x[1])
            else: x[1]()
        if i == N:
            final(); break
        a, (ch, c, rho), w = ops[i]
        xf = XS[ch, c, rho] if (rho < 0 and (ch, c) in SHL) else X[ch, c, rho if rho >= 0 else rho + S]
        prewait(regs(xf.reg) + regs(w.reg))
        if STAMP:
            if i == 0 and STAMP != 3: e("s_memtime s[74:75]")
            if i == 0: e("s_memrealtime s[88:89]")
            m1, m2 = (N // 3, 2 * N // 3) if STAMP == 1 else (env('M1', 0), env('M2', 0))
            if STAMP != 3 and i == m1: e("s_memtime s[84:85]"); e("s_memrealtime s[90:91]")
            if STAMP != 3 and i == m2: e("s_memtime s[86:87]"); e("s_memrealtime s[92:93]")
        E.mfma(accreg[a], xf.reg, w.reg, accreg[a] if a in started else None)
        started.add(a)
    if STAMP:
        e("s_memtime s[94:95]"); e("s_memrealtime s[66:67]"); e("s_waitcnt lgkmcnt(0)")
        e("s_add_u32 s4, s8, %d" % ST_OFF); e("s_addc_u32 s5, s9, 0"); e("s_and_b32 s5, s5, 0xffff"); e("s_mov_b32 s6, %d" % (256 * 4 * 64))
        e("s_lshl_b32 s33, s2, 2"); e("s_add_u32 s33, s33, s24"); e("s_lshl_b32 s33, s33, 6")
        for k2, sr in enumerate((70, 72, 74, 76, 80, 82, 84, 86, 88, 90, 92, 94, 66)):
            e("v_mov_b32 v6, s%d" % sr); e("v_mov_b32 v5, %d" % (4 * k2)); e("s_mov_b64 exec, 1")
            e("buffer_store_dword v6, v5, s[4:7], s33 offen"); e("s_mov_b64 exec, -1")
    E.label("K2_end")
    e("s_endpgm")
    tb = np.zeros((4, 64, 8), dtype=np.float64)
    for v in range(4):
        for l in range(64):
            n, kg = l % 16, l // 16
            if n >= cfg.m: continue
            if kg < 2:
                for ww in range(2):
                    for sl in range(3): tb[v, l, 4 * ww + sl] = cfg.ATs[2 * kg + ww, sl, n]
            elif kg == 2:
                for p in range(4):
                    ww = p ^ v
                    tb[v, l, 2 * p] = cfg.ATs[ww, 3, n]; tb[v, l, 2 * p + 1] = cfg.ATs[ww, 4, n]
    E.raw(".p2align 8"); E.label("K2_at"); E.raw(G['table'](bf16bits(tb).reshape(-1)))
    E.label("K2_code_end")
    sys.stderr.write("K2: %d MFMA main, %d instr, %d waits, %d nops\n" % (N, E.ninst, E.nwait, E.nnop))
    return G['head']("k2_kernel") + E.text() + G['KD'] % ("k2_kernel", 512, 102, 256), LDS
```

```python
import sys, os
import numpy as np
from emit import *
from consts import bf16bits, bf16r

class Task:
    def __init__(s, name, ins, lo, hi, deps=()):
        s.name, s.ins, s.lo, s.hi = name, list(ins), lo, hi
        s.deps = [d if isinstance(d, tuple) else (d, 0) for d in deps]
        s.done_at = None

def gen_k2(G):
    FUSED = G.get('FUSED', 0)
    env = G['env']; cfg = G['cfg']; S = G['S']; NREG = G['NREG']; NC = G['NC']; NCH = G['NCH']
    XW, XREG, XF_SIZE, WW, WF_OFF, WF_SIZE, ST_OFF, XBYTES, ROWB = [G[k] for k in 'XW XREG XF_SIZE WW WF_OFF WF_SIZE ST_OFF XBYTES ROWB'.split()]
    STAMP = env('STAMP', 0)
    PACE = env('PACE', 5); WLAT = env('WLAT', 90)
    E = Em(); e = E.salu
    va = lambda t, d, s_, **kw: E.valu(t, d, s_, **kw)
    class Frag:
        def __init__(s, kind, ch, c, idx, off):
            s.kind, s.ch, s.c, s.idx, s.off = kind, ch, c, idx, off
            s.first = None; s.last = None; s.reg = None; s.issue = None
        def __repr__(s): return "%s(ch%d c%d i%d)" % (s.kind, s.ch, s.c, s.idx)
    X = {}; Hf = {}; W = {}
    for ch in range(NCH):
        for c in range(NC):
            for r in range(S): X[ch, c, r] = Frag('X', ch, c, r, ((ch * NC + c) * S + r) * 1024)
            Hf[ch, c] = Frag('H', ch, c, 0, ((ch * NC + c) * S) * 1024)
            for kh in range(7): W[ch, c, kh] = Frag('W', ch, c, kh, ((ch * NC + c) * 7 + kh) * 1024)
    SHL = set([(NCH - 1, 2), (NCH - 1, 3)]) if env('SHL', 1) else set()
    XS = {}
    for (ch_, c_) in SHL:
        for n in range(1, 7): XS[ch_, c_, -n] = Frag('S', ch_, c_, -n, ((ch_ * NC + c_) * S + S - n) * 1024)
    ops = []
    def op(sl, r, ch, c, kh, cw): ops.append(((sl, r), (ch, c, r - kh), W[ch, cw, kh]))
    marks = {}
    def pstage(ch):
        for hi_, hs in enumerate([[0, 1, 2, 3], [4, 5, 6]]):
            marks['P%d_%d' % (ch, hi_)] = len(ops)
            if ch == 0 and hi_ == 0 and env('WAVEF', 1):
                prs = sorted([(max(7 - (r - kh), kh + env('WFB', 0)), -r, kh) for r in range(S) for kh in hs])
                fl = 0
                for lev, mr, kh in prs:
                    r = -mr
                    seq = [(0, 0, 0), (1, 0, 1), (1, 1, 0), (2, 1, 1)]
                    if fl: seq = seq[::-1]
                    for sl, cx, cw in seq: op(sl, r, ch, cx, kh, cw)
                    fl ^= 1
                continue
            for r in range(S - 1, -1, -1):
                for kh in hs: op(0, r, ch, 0, kh, 0)
                for kh in hs[::-1]: op(1, r, ch, 0, kh, 1)
                for kh in hs: op(1, r, ch, 1, kh, 0)
                for kh in hs[::-1]: op(2, r, ch, 1, kh, 1)
    def rstage(ch, u):
        for r in range(S - 1, -1, -1):
            for kh in range(7): op(2 + u, r, ch, 1 + u, kh, 1 + u)
    for ch in range(NCH - 1):
        pstage(ch); rstage(ch, 1); rstage(ch, 2)
    ch = NCH - 1
    pstage(ch)
    FIN = env('FIN', 2)
    step_end = {}
    if FIN == 1:
        rstage(ch, 1)
        marks['F'] = len(ops)
        for r in range(S - 1, -1, -1):
            for kh in range(7): op(4, r, ch, 3, kh, 3)
            step_end[r] = len(ops) - 1
    else:
        marks['F'] = len(ops)
        for r in range(S - 1, -1, -1):
            for kh in range(7): op(3, r, ch, 2, kh, 2)
            for kh in range(6, -1, -1): op(4, r, ch, 3, kh, 3)
            step_end[r] = len(ops) - 1
    N = len(ops)
    use = {}; acc_last = {}
    for i, (a, xk, w) in enumerate(ops):
        use.setdefault(xk, [i, i])[1] = i
        if w.first is None: w.first = i
        w.last = i
        acc_last[a] = i
    shifts = []
    for (ch, c, r), f in X.items():
        f.first, f.last = use[ch, c, r]
        if (ch, c) in SHL: continue
        if (ch, c, r - S) in use:
            a, b = use[ch, c, r - S]
            assert f.last < a - 12, (ch, c, r, f.last, a)
            shifts.append([f, S - r, f.last, a]); f.last = b
    for key, f in XS.items(): f.first, f.last = use[key]
    for key in SHL: del Hf[key]
    for (ch, c), h in Hf.items():
        sh = [s_ for s_ in shifts if s_[0].ch == ch and s_[0].c == c]
        h.first = max(env('H0', 50), min(s_[2] for s_ in sh) - env('HEARLY', 20)); h.last = max(s_[3] for s_ in sh)
    V_L16, V_HOFF, V_FR = 1, 2, 247
    accreg = {}
    for sl in range(3):
        for r in range(S): accreg[sl, r] = ('a', 4 * (sl * S + r))
    RV = env('RV', 1)
    vbase = 8
    abase = 96
    for sl in (3, 4):
        for r in range(S):
            if RV: accreg[sl, r] = ('v', vbase); vbase += 4
            else: accreg[sl, r] = ('a', abase); abase += 4
    vfree = [('v', x) for x in range(vbase, 253, 4) if x not in ((244, 248, 252) if FUSED else (244, 248))]
    afree = [('a', x) for x in range(abase, 253, 4)]
    vlast = {r: -1 for r in vfree}
    frags = list(X.values()) + list(Hf.values()) + list(W.values()) + list(XS.values())
    frags.sort(key=lambda f: (f.first - (env('SEARLY', 30) if f.kind == 'S' else 0), {'W': 1, 'X': 0, 'H': 2, 'S': 3}[f.kind]))
    gap = [[] for _ in range(N + 1)]
    pending = list(frags); active = []; pre = []
    TEMP_T = marks['P2_1'] - env('TEMPE', 60)
    NTEMP = env('NTEMP', 4)
    reserved = vfree[-NTEMP:]
    def alloc(f):
        if f.kind in 'WS':
            if afree: return afree.pop(0)
            return None
        for r in vfree:
            if r in reserved and f.last >= TEMP_T: continue
            vfree.remove(r); return r
        return None
    def release(upto):
        for f in list(active):
            if f.last < upto:
                active.remove(f); (afree if f.reg[0] == 'a' else vfree).append(f.reg)
    while pending and len(pre) < env('NPRE', 16):
        f = pending.pop(0); f.reg = alloc(f); f.issue = -1; pre.append(f); active.append(f)
    lastload = -100
    for i in range(1, N):
        release(i - 1)
        pace = env('PACE0', PACE) if i < env('RAMP', 0) else PACE
        if pending and (i - lastload >= pace or pending[0].first - i < env('URG', 40)):
            f = pending[0]; r = alloc(f)
            if r is not None:
                f.reg = r; f.issue = i; active.append(f); pending.pop(0); gap[i].append(('load', f)); lastload = i
            elif f.first - i < 3: raise Exception("no register for %s at %d" % (f, i))
    assert not pending
    for f in frags:
        if f.reg[0] == 'v': vlast[f.reg] = max(vlast[f.reg], f.last)
    la = [f.first - f.issue for f in frags if f.issue > 0]
    sys.stderr.write("K2 lookahead (slots): min %d p10 %d median %d\n" % (min(la), np.percentile(la, 10), np.median(la)))
    TPF = env('TPF', 0); TP = env('TP', 6); TLEAD = env('TLEAD', 90); NT0 = env('NT0', 14)
    touches = []
    if TPF:
        cand = []
        for m in range(768 // 6):
            line = 6 * m + 3
            f = X[(6 * m // 8) // (NC * S), ((6 * m // 8) // S) % NC, (6 * m // 8) % S]
            cand.append((f.issue, 'X', m * 768))
        for m in range(672 // 5):
            fi = 5 * m // 8
            f = W[fi // (NC * 7), (fi // 7) % NC, fi % 7]
            cand.append((f.issue, 'W', m * 640))
        cand.sort()
        cand = [c for c in cand if c[0] > env('TSKIP', 0)]
        pre_t = cand[:NT0]; rest = cand[NT0:]
        touches = pre_t
        i = env('T0', 40)
        while rest and i < N:
            while rest and rest[0][0] - i < TLEAD: rest.pop(0)
            if not rest: break
            gap[i].append(('touch', rest.pop(0))); i += TP
        sys.stderr.write("K2 touches: %d in prologue, %d in loop\n" % (len(pre_t), sum(1 for g in gap for x in g if x[0] == 'touch')))
    cnt = [len(g) for g in gap]
    if env('PREDW', 1):
        order_ = pre + [x[1] for g in gap for x in g if x[0] == 'load']
        posn = {id(f): k for k, f in enumerate(order_)}
        done_ = -1; nw_ = 0
        for i, (a_, xk, w_) in enumerate(ops):
            ch_, c_, rho_ = xk
            xf_ = XS[xk] if (rho_ < 0 and (ch_, c_) in SHL) else X[ch_, c_, rho_ if rho_ >= 0 else rho_ + S]
            k = max(posn[id(xf_)], posn[id(w_)])
            if k > done_:
                while k + 1 < len(order_) and order_[k + 1].issue >= 0 and order_[k + 1].issue + WLAT <= i and order_[k + 1].issue < i: k += 1
                done_ = k; cnt[i] += 1; nw_ += 1
        sys.stderr.write("K2 predicted waits: %d\n" % nw_)
    tasks = []
    slot_now = [0]
    def prewait(rs):
        rs = set(rs); idx = None; cur = slot_now[0]
        for i, d in enumerate(E.vm):
            if d & rs: idx = i
        if idx is None: return
        while idx + 1 < len(E.vm):
            sl = [t[1] for t in E.vm[idx + 1] if t[0] == 'slot']
            if sl and sl[0] >= 0 and sl[0] + WLAT <= cur: idx += 1
            else: break
        E.wait(len(E.vm) - 1 - idx, None)
    def mk_shift(f, n):
        h = Hf[f.ch, f.c]
        ins = []
        if env('NODPP', 0): return [lambda: None]
        for d in range(4):
            def mv(d=d):
                r = f.reg[1] + d; prewait(V(r))
                va("v_mov_b32_dpp v%d, v%d row_shr:1 row_mask:0xf bank_mask:0xf" % (r, r), V(r), [], dpp=V(r))
            ins.append(mv)
        for d in range(4):
            def cm(d=d):
                r = f.reg[1] + d; hr = h.reg[1] + d; k = 6 - n
                prewait(V(hr))
                if k > 0: va("v_cndmask_b32_dpp v%d, v%d, v%d, vcc row_shl:%d row_mask:0xf bank_mask:0xf" % (r, hr, r, k), V(r), V(r), dpp=V(hr))
                else: va("v_cndmask_b32 v%d, v%d, v%d, vcc" % (r, hr, r), V(r), V(r) + V(hr))
            ins.append(cm)
        return ins
    for f, n, lo, hi in shifts:
        h = Hf[f.ch, f.c]
        lo2 = max(lo + 1, min(h.issue + env('HLAT', 60), hi - 20) if h.issue > 0 else 0)
        tasks.append(Task('sh', mk_shift(f, n), lo2, hi - 3))
    PL = 32768; STG = 3 * PL; LDS = STG + 4 * 16384
    tmp = [r[1] for r in reserved]
    late = sorted([r[1] for r, l in vlast.items() if r not in reserved and l < marks['F'] + 2])
    a0, a1 = 244, 248
    AT = 4
    V_WP, V_WR, V_IR, V_SW = a0, a0 + 1, a0 + 2, a0 + 3
    assert env('DST', 1)
    V_SW = 240
    V_SR, V_O0, V_O1, V_SH = a1, a1 + 1, a1 + 2, a1 + 3
    V_SR = 241
    sc = [236 + i for i in range(8)]
    PT = [tmp[0], tmp[1], tmp[2], tmp[3]]
    setup = []
    MK = 64 if STAMP else 70
    def S_(fn): setup.append(fn)
    t0, t1, t2, t3, t4, t5, t6, t7 = sc
    vv = lambda t, d, s_: S_(lambda: va(t, d, s_))
    ss = lambda t: S_(lambda: e(t))
    vv("v_and_b32 v%d, 15, v0" % t1, V(t1), V(0))
    vv("v_lshrrev_b32 v%d, 4, v0" % t2, V(t2), V(0))
    vv("v_lshlrev_b32 v%d, 10, v%d" % (t3, t2), V(t3), V(t2))
    vv("v_lshl_add_u32 v%d, v%d, 4, v%d" % (t3, t1, t3), V(t3), V(t1) + V(t3))
    ss("s_lshr_b32 s33, s24, 1"); ss("s_mul_i32 s33, s33, %d" % PL); ss("s_and_b32 s34, s24, 1"); ss("s_lshl_b32 s34, s34, 3"); ss("s_add_u32 s33, s33, s34")
    vv("v_add_u32 v%d, s33, v%d" % (V_WP, t3), V(V_WP), V(t3))
    vv("v_xor_b32 v%d, s24, v%d" % (t4, t2), V(t4), V(t2))
    vv("v_lshl_add_u32 v%d, v%d, 2, v%d" % (t4, t4, t3), V(t4), V(t4) + V(t3))
    vv("v_add_u32 v%d, %d, v%d" % (V_WR, 2 * PL, t4), V(V_WR), V(t4))
    vv("v_min_u32 v%d, 2, v%d" % (t3, t2), V(t3), V(t2))
    vv("v_lshlrev_b32 v%d, 15, v%d" % (t3, t3), V(t3), V(t3))
    vv("v_lshl_add_u32 v%d, v%d, 4, v%d" % (t3, t1, t3), V(t3), V(t1) + V(t3))
    ss("s_lshl_b32 s33, s24, 10")
    vv("v_add_u32 v%d, s33, v%d" % (V_IR, t3), V(V_IR), V(t3))
    ss("s_lshl_b32 s33, s24, 14"); ss("s_add_u32 s33, s33, %d" % STG)
    vv("v_and_b32 v%d, 15, v0" % t1, V(t1), V(0))
    vv("v_lshrrev_b32 v%d, 1, v%d" % (t3, t2), V(t3), V(t2))
    vv("v_lshl_add_u32 v%d, v%d, 1, v%d" % (t3, t1, t3), V(t3), V(t1) + V(t3))
    vv("v_bfe_u32 v%d, v%d, 2, 1" % (t4, t1), V(t4), V(t1))
    vv("v_xor_b32 v%d, v%d, v%d" % (t3, t3, t4), V(t3), V(t3) + V(t4))
    vv("v_and_b32 v%d, 1, v%d" % (t4, t2), V(t4), V(t2))
    vv("v_lshlrev_b32 v%d, %d, v%d" % (t4, 9 if env('B128', 1) else 3, t4), V(t4), V(t4))
    vv("v_lshl_add_u32 v%d, v%d, 4, v%d" % (t3, t3, t4), V(t3), V(t3) + V(t4))
    vv("v_add_u32 v%d, s33, v%d" % (V_SW, t3), V(V_SW), V(t3))
    vv("v_bfe_u32 v%d, v0, 3, 1" % t4, V(t4), V(0))
    vv("v_xor_b32 v%d, v0, v%d" % (t4, t4), V(t4), V(0) + V(t4))
    vv("v_lshl_add_u32 v%d, v%d, 4, s33" % (V_SR, t4), V(V_SR), V(t4))
    if env('DST', 1):
        vv("v_bfe_u32 v%d, v0, 4, 1" % t0, V(t0), V(0))
        vv("v_and_b32 v%d, 15, v0" % t1, V(t1), V(0))
        vv("v_lshrrev_b32 v%d, 5, v0" % t2, V(t2), V(0))
    else:
        vv("v_lshrrev_b32 v%d, 5, v0" % t0, V(t0), V(0))
        vv("v_bfe_u32 v%d, v0, 1, 4" % t1, V(t1), V(0))
        vv("v_and_b32 v%d, 1, v0" % t2, V(t2), V(0))
    ss("s_mov_b32 s38, 224"); ss("s_mov_b32 s35, 2260"); ss("s_mov_b32 s37, 192")
    for p in range(2):
        o = V_O0 + p
        ss("s_lshl_b32 s33, s27, 4"); ss("s_lshl_b32 s34, s24, 2"); ss("s_add_u32 s33, s33, s34"); ss("s_add_u32 s33, s33, %d" % (2 * p))
        vv("v_add_u32 v%d, s33, v%d" % (t3, t0), V(t3), V(t0))
        vv("v_mul_u32_u24 v%d, s35, v%d" % (t4, t3), V(t4), V(t3))
        vv("v_lshrrev_b32 v%d, 16, v%d" % (t4, t4), V(t4), V(t4))
        vv("v_mul_u32_u24 v%d, 29, v%d" % (t5, t4), V(t5), V(t4))
        vv("v_sub_u32 v%d, v%d, v%d" % (t5, t3, t5), V(t5), V(t3) + V(t5))
        vv("v_mul_u32_u24 v%d, 10, v%d" % (t6, t4), V(t6), V(t4))
        vv("v_add_u32 v%d, v%d, v%d" % (t6, t6, t1), V(t6), V(t6) + V(t1))
        vv("v_subrev_u32 v%d, 1, v%d" % (t7, t5), V(t7), V(t5))
        vv("v_mul_u32_u24 v%d, %d, v%d" % (t7, 8 * 224, t7), V(t7), V(t7))
        vv("v_add_u32 v%d, v%d, v%d" % (t7, t7, t6), V(t7), V(t7) + V(t6))
        vv("v_mul_lo_u32 v%d, v%d, s37" % (t7, t7), V(t7), V(t7))
        vv("v_lshl_add_u32 v%d, v%d, 4, v%d" % (t7, t2, t7), V(t7), V(t7) + V(t2))
        ss("s_lshl_b32 s34, s28, 5")
        vv("v_add_u32 v%d, s34, v%d" % (t7, t7), V(t7), V(t7))
        vv("v_cmp_ne_u32 s[%d:%d], 0, v%d" % (MK, MK + 1, t5), [], V(t5))
        vv("v_cmp_gt_u32 s[%d:%d], 10, v%d" % (MK + 2, MK + 3, t1), [], V(t1))
        vv("v_cmp_gt_u32 s[%d:%d], s38, v%d" % (MK + 4, MK + 5, t6), [], V(t6))
        vv("v_mov_b32 v%d, 0x7fffffff" % t3, V(t3), [])
        S_(lambda: E.nop(3))
        ss("s_and_b64 s[%d:%d], s[%d:%d], s[%d:%d]" % (MK, MK + 1, MK, MK + 1, MK + 2, MK + 3)); ss("s_and_b64 s[%d:%d], s[%d:%d], s[%d:%d]" % (MK, MK + 1, MK, MK + 1, MK + 4, MK + 5))
        S_(lambda: E.nop(1))
        vv("v_cndmask_b32 v%d, v%d, v%d, s[%d:%d]" % (o, t3, t7, MK, MK + 1), V(o), V(t3) + V(t7))
    ss("s_cmp_eq_u32 s27, 0"); ss("s_cselect_b32 s33, 0, %d" % XREG)
    vv("v_and_b32 v%d, 15, v0" % t3, V(t3), V(0))
    vv("v_add_u32 v%d, -1, v%d" % (t3, t3), V(t3), V(t3))
    vv("v_lshrrev_b32 v%d, 2, v%d" % (t4, t3), V(t4), V(t3))
    vv("v_lshlrev_b32 v%d, 8, v%d" % (t4, t4), V(t4), V(t4))
    vv("v_and_b32 v%d, 3, v%d" % (t3, t3), V(t3), V(t3))
    vv("v_lshl_add_u32 v%d, v%d, 4, v%d" % (t3, t3, t4), V(t3), V(t3) + V(t4))
    vv("v_lshrrev_b32 v%d, 4, v0" % t4, V(t4), V(0))
    vv("v_lshlrev_b32 v%d, 6, v%d" % (t4, t4), V(t4), V(t4))
    vv("v_add3_u32 v%d, v%d, v%d, s33" % (t3, t3, t4), V(t3), V(t3) + V(t4))
    vv("v_add_u32 v%d, 816, v%d" % (t4, t4), V(t4), V(t4))
    vv("v_cndmask_b32 v%d, v%d, v%d, vcc" % (V_SH, t4, t3), V(V_SH), V(t4) + V(t3))
    ss("s_mov_b32 s6, %d" % XBYTES); ss("s_mov_b32 s7, 0x00020000"); ss("s_and_b32 s5, s5, 0xffff")
    mreg = 64 if STAMP else 94
    ss("s_mov_b32 s%d, 0x03ff03ff" % mreg); ss("s_mov_b32 s%d, 0x03ff03ff" % (mreg + 1))
    T_setup = Task('setup', [], 0, 0); T_setup.done_at = 0
    T_pp = {}
    prev = T_setup
    for r in range(S - 1, -1, -1):
        rd = {}; cv = {}; wr = {}
        for j in range(4):
            t = PT[j]
            rd[j] = [(lambda t=t, sl=sl, ar=accreg[sl, r][1] + j: va("v_accvgpr_read_b32 v%d, a%d" % (t + sl, ar), V(t + sl), A(ar))) for sl in range(3)]
            cv[j] = [lambda t=t: va("v_cvt_pk_bf16_f32 v%d, v%d, v%d" % (t, t, t + 1), V(t), V(t, 2)), lambda t=t: va("v_cvt_pk_bf16_f32 v%d, v%d, 0" % (t + 1, t + 2), V(t + 1), V(t + 2))]
            wr[j] = [lambda t=t, j=j, r=r: E.dswrite("ds_write_b64 v%d, v[%d:%d] offset:%d" % (V_WP, t, t + 1, (r * 16 + j) * 256), V(t, 2), V(V_WP))]
        ins = rd[0] + rd[1] + cv[0] + rd[2] + wr[0] + cv[1] + rd[3] + wr[1] + cv[2] + cv[3] + wr[2] + wr[3]
        lo = max(acc_last[sl, r] for sl in range(3)) + 6
        T_pp[r] = Task('pp%d' % r, ins, lo, step_end[r] + 4, [prev]); prev = T_pp[r]; tasks.append(T_pp[r])
    RT = late[0:2]
    order = list(range(S - 1, -1, -1))
    T_rp = {}
    for si, r in enumerate(order):
        se = step_end[r]
        ins = []
        for j in range(4):
            t = RT[si % 2] + j
            r1 = accreg[3, r][1] + j; r2 = accreg[4, r][1] + j
            ins.append(lambda t=t, r1=r1, r2=r2: va("v_cvt_pk_bf16_f32 v%d, v%d, v%d" % (t, r1, r2), V(t), V(r1) + V(r2)))
        for j in range(4):
            t = RT[si % 2] + j
            ins.append(lambda t=t, j=j, r=r: E.dswrite("ds_write_b32 v%d, v%d offset:%d" % (V_WR, t, (r * 16 + j) * 256), V(t), V(V_WR), tok=('rp', r)))
        T_rp[r] = Task('rp%d' % r, ins, se + 4, se + 10, [T_pp[r]])
        tasks.append(T_rp[r])
    B128 = env('B128', 1)
    lateA = [x for x in late if x not in RT]
    def inv_seq(rows, AFp, DIp, OUTp):
        na, nd, no = len(AFp) // 4, len(DIp) // 4, len(OUTp) // 2
        def reads(si):
            r = rows[si]
            return [lambda a=a, r=r, f=AFp[4 * (si % na) + a]: E.dsread("ds_read_b128 v[%d:%d], v%d offset:%d" % (f, f + 3, V_IR, (r * 16 + a) * 256), V(f, 4), V(V_IR)) for a in range(4)]
        def mm(si):
            return [lambda a=a: E.mfma(('v', DIp[4 * (si % nd) + a]), ('v', AFp[4 * (si % na) + a]), ('v', AT), None) for a in range(4)]
        def cw(si):
            r = rows[si]; ins = []
            D = [DIp[4 * (si % nd) + a] for a in range(4)]
            if not B128:
                for a in range(4):
                    d = D[a]
                    ins.append(lambda d=d: va("v_cvt_pk_bf16_f32 v%d, v%d, v%d" % (d, d, d + 1), V(d), V(d, 2)))
                    ins.append(lambda d=d: va("v_cvt_pk_bf16_f32 v%d, v%d, v%d" % (d + 1, d + 2, d + 3), V(d + 1), V(d + 2, 2)))
            if B128:
                for p in range(2):
                    d0 = D[2 * p]
                    ins.append(lambda d0=d0: va("v_cvt_pk_bf16_f32 v%d, v%d, v%d" % (d0, d0, d0 + 1), V(d0), V(d0, 2)))
                    ins.append(lambda d0=d0: va("v_cvt_pk_bf16_f32 v%d, v%d, v%d" % (d0 + 1, d0 + 2, d0 + 3), V(d0 + 1), V(d0 + 2, 2)))
                for p in range(2):
                    d0, d1 = D[2 * p], D[2 * p + 1]
                    ins.append(lambda d0=d0, d1=d1: va("v_cvt_pk_bf16_f32 v%d, v%d, v%d" % (d0 + 2, d1, d1 + 1), V(d0 + 2), V(d1, 2)))
                    ins.append(lambda d0=d0, d1=d1: va("v_cvt_pk_bf16_f32 v%d, v%d, v%d" % (d0 + 3, d1 + 2, d1 + 3), V(d0 + 3), V(d1 + 2, 2)))
                for p in range(2):
                    d0 = D[2 * p]
                    ins.append(lambda d0=d0: va("v_permlane16_swap_b32 v%d, v%d" % (d0, d0 + 2), V(d0) + V(d0 + 2), V(d0) + V(d0 + 2), perm=True))
                    ins.append(lambda d0=d0: va("v_permlane16_swap_b32 v%d, v%d" % (d0 + 1, d0 + 3), V(d0 + 1) + V(d0 + 3), V(d0 + 1) + V(d0 + 3), perm=True))
                if env('DST', 1):
                    def both(r=r, D=D):
                        e("s_mov_b32 s33, %d" % (r * ROWB))
                        E._need(V(D[0], 4) + V(D[2], 4))
                        E._pad(max(E._dist(V(D[0], 4) + V(D[2], 4), {'mfma': 8}), 0))
                        if env('XM', 1): e("s_mov_b64 exec, s[94:95]" if not STAMP else "s_mov_b64 exec, s[64:65]")
                        for p in range(2):
                            d0 = D[2 * p]
                            if env('NOOUT', 0) == 1 or (env('NOOUT', 0) == 2 and p): continue
                            E.vstore("buffer_store_dwordx4 v[%d:%d], v%d, s[4:7], s33 offen%s" % (d0, d0 + 3, V_O0 + p, env('OSF', '')), V(d0, 4), V(V_O0 + p))
                        if env('XM', 1): e("s_mov_b64 exec, -1")
                        if str(r) in env('WB', '').split(','):
                            e("s_lshl_b32 s34, s2, 2"); e("s_add_u32 s34, s34, s24")
                            e("s_cmp_ge_u32 s34, %d" % env('WBN', 32)); e("s_cbranch_scc1 K2_nowb%d" % r)
                            e("s_cmp_lg_u32 s24, 0"); e("s_cbranch_scc1 K2_nowb%d" % r)
                            e("buffer_wbl2 sc1")
                            E.label("K2_nowb%d" % r)
                    ins.append(both)
                    return ins
                for p in range(2):
                    d0 = D[2 * p]
                    ins.append(lambda d0=d0, p=p, r=r: E.dswrite("ds_write_b128 v%d, v[%d:%d] offset:%d" % (V_SW, d0, d0 + 3, (r * 4 + 2 * p) * 512), V(d0, 4), V(V_SW)))
            else:
                for a in range(4):
                    d = D[a]
                    ins.append(lambda d=d, a=a, r=r: E.dswrite("ds_write_b64 v%d, v[%d:%d] offset:%d" % (V_SW, d, d + 1, (r * 4 + a) * 512), V(d, 2), V(V_SW)))
            for p in range(2):
                o = OUTp[2 * (si % no) + p]
                ins.append(lambda o=o, p=p, r=r: E.dsread("ds_read_b128 v[%d:%d], v%d offset:%d" % (o, o + 3, V_SR, (r * 4 + 2 * p) * 512), V(o, 4), V(V_SR)))
            return ins
        def st(si):
            if env('DST', 1): return []
            r = rows[si]; ins = [lambda r=r: e("s_mov_b32 s33, %d" % (r * ROWB))]
            for p in range(2):
                o = OUTp[2 * (si % no) + p]
                if env('NOOUT', 0): continue
                ins.append(lambda o=o, p=p: E.vstore("buffer_store_dwordx4 v[%d:%d], v%d, s[4:7], s33 offen%s" % (o, o + 3, V_O0 + p, env('OSF', '')), V(o, 4), V(V_O0 + p)))
            return ins
        n = len(rows); seq = []
        head = []
        for si in range(min(na, n)): head += reads(si)
        for si in range(n + 2):
            if si < n: seq += mm(si)
            if si + na < n: seq += reads(si + na)
            if no == 1 and 0 <= si - 2 < n: seq += st(si - 2)
            if 0 <= si - 1 < n: seq += cw(si - 1)
            if no > 1 and 0 <= si - 2 < n: seq += st(si - 2)
        return head, seq
    NA = env('NA', 4 if FIN == 1 else 7)
    rowsA = order[:NA]; rowsB = order[NA:]
    T_A = None
    if NA and FIN == 1:
        assert len(lateA) >= 16, lateA
        hA, sA = inv_seq(rowsA, lateA[0:8], lateA[8:16], [lateA[16], lateA[17]] if len(lateA) >= 18 else [0, 0])
        def barA(): E._need([('rp', rowsA[-1])]); E.barrier()
        T_barA = Task('barA', [barA], 0, step_end[rowsA[-1]] + 12, [(T_rp[rowsA[-1]], env('LBA', 4))])
        T_A = Task('invA', hA + sA, 0, N + 500, [T_barA])
        tasks += [T_barA, T_A]
    if NA and FIN == 2:
        assert len(lateA) >= 16, lateA
        AF2 = lateA[0:8]; DI2 = lateA[8:16]
        L1, L2, L3 = env('L1', 4), env('L2', 7), env('L3', 3)
        pb = None; pm = {}; pc = {}
        for si, r in enumerate(rowsA):
            se = step_end[r]
            def bar(r=r):
                if env('NOBAR', 0) in (1, 2):
                    if env('NOBAR', 0) == 2: E._need([('rp', r)])
                    return
                E._need([('rp', r)]); E.barrier()
            tb_ = Task('bar%d' % r, [bar], 0, se + 12, [(T_rp[r], L1)] + ([pb] if pb else []))
            pb = tb_
            af = AF2[4 * (si % 2):4 * (si % 2) + 4]; di = DI2[4 * (si % 2):4 * (si % 2) + 4]
            h_, s_ = inv_seq([r], af, di, [0, 0])
            mms, rest = s_[:4], s_[4:]
            t1_ = Task('rd%d' % r, h_, 0, se + 16, [tb_] + ([pm[si - 2]] if si >= 2 else []))
            t2_ = Task('mm%d' % r, mms, 0, se + 26, [(t1_, L2)] + ([pc[si - 2]] if si >= 2 else []))
            t3_ = Task('cw%d' % r, rest, 0, se + 40, [(t2_, L3)])
            pm[si] = t2_; pc[si] = t3_
            tasks += [tb_, t1_, t2_, t3_]
    def final():
        used = set(lateA[:18]) if NA else set()
        pool = sorted(set([accreg[sl, r][1] for sl in (3, 4) for r in rowsA] + [r_[1] for r_ in vlast.keys() if r_ not in reserved]) - set(RT) - used)
        nb = len(rowsB)
        hB, sB = inv_seq(rowsB, pool[0:4 * min(nb, 4)], pool[16:24], pool[24:28])
        E.wait(None, 0)
        if STAMP == 3: e("s_memtime s[72:73]")
        E.barrier()
        if STAMP == 3: e("s_memtime s[74:75]")
        for f in hB: f()
        if T_A is not None:
            for f in T_A.rest: f()
        for x in deferred:
            for f in x: f()
        if STAMP == 3: e("s_memtime s[84:85]")
        for k_, f in enumerate(sB):
            f()
            if STAMP == 3 and k_ == len(sB) // 2: e("s_memtime s[86:87]")
    deferred = []
    def budget(i):
        if i >= marks['F']: return env('BF', 3)
        if i >= TEMP_T: return env('BP', 2)
        return 1
    MAXF = env('MAXF', 2)
    delay = {}
    for i in range(1, N + 1):
        k = 0
        while True:
            avail = [x for x in tasks if x.ins and (x.lo <= i or i == N) and all(d.done_at is not None and (i == N or i >= d.done_at + lg) for d, lg in x.deps)]
            if not avail: break
            avail.sort(key=lambda x: x.hi)
            if i < N:
                b = budget(i) - cnt[i]
                urgent = False
                if b <= k:
                    if k >= max(MAXF, budget(i)) - cnt[i]: break
                    tot = 0
                    for y in sorted([x for x in tasks if x.ins and x.lo <= i + 40 and x.name == 'sh'], key=lambda x: x.hi):
                        tot += len(y.ins)
                        cap = sum(1 for g in range(i + 1, min(y.hi + 1, N)) if cnt[g] == 0)
                        if tot - 1 > cap * env('URGF', 0.9): urgent = True; break
                    if not urgent: break
            x = avail[0]
            if i == N and x.name == 'invA':
                x.rest = list(x.ins); x.ins = []; x.done_at = i; continue
            if i == N and x.name[:2] in ('mm', 'cw'):
                deferred.append(list(x.ins)); x.ins = []; x.done_at = i; continue
            if x.name == 'sh': assert i <= x.hi, ("shift late", i, x.hi)
            gap[i].append(('ins', x.ins.pop(0), x.name)); k += 1
            if not x.ins: x.done_at = i
        cnt[i] += k
    if T_A is not None and not hasattr(T_A, 'rest'): T_A.rest = []
    assert all(not x.ins for x in tasks), [x.name for x in tasks if x.ins]
    sys.stderr.write("K2 tail after last MFMA: %d instr; done: %s\n" % (len(gap[N]), " ".join("%s@%d" % (x.name, x.done_at - marks['F']) for x in tasks if x.name[:2] in ('pp', 'ba', 'cw'))))
    KN = "FU" if FUSED else "K2"
    FST = env('FSTAMP', 0)
    fs_regs = {1: 88, 2: 90, 3: 92, 4: 96, 5: 98, 6: 82}
    def fs2(n): e("s_memrealtime s[%d:%d]" % (fs_regs[n], fs_regs[n] + 1))
    G['fs2'] = fs2
    def fstamp(n):
        if env('FS2', 0) and n in (3, 4, 5): return
        if FST and n in fs_regs: e("s_memrealtime s[%d:%d]" % (fs_regs[n], fs_regs[n] + 1))
    if FUSED:
        import pagen
        G['fstamp'] = (lambda n: fstamp(n) if n < 3 else None)
        e("s_load_dwordx4 s[84:87], s[0:1], 0" if not FST else "s_load_dwordx4 s[84:87], s[0:1], 0")
        e("s_load_dwordx4 s[4:7], s[0:1], 16")
        e("s_load_dwordx2 s[8:9], s[0:1], 32")
        if FST: e("s_memrealtime s[100:101]")
        e("s_getpc_b64 s[10:11]")
        E.label("FU_pc")
        e("s_cmp_ge_u32 s2, 256"); e("s_cbranch_scc1 K2_end")
        va("v_lshrrev_b32 v3, 6, v0", V(3), V(0))
        va("v_and_b32 v0, 63, v0", V(0), V(0))
        E.nop(1)
        e("v_readfirstlane_b32 s24, v3")
        pagen.phase_a(E, G)
        E.label("FU_pb")
        E.vm = []; E.lg = []; E.w = {}; E.mc = {}; E.sd = {}
        if env('CPF', 1):
            e("s_cmp_ge_u32 s2, 8"); e("s_cbranch_scc1 K2_nocpf")
            e("s_lshl_b32 s33, s24, 13")
            va("v_lshlrev_b32 v4, 7, v0", V(4), V(0))
            va("v_add_u32 v4, s33, v4", V(4), V(4))
            va("v_min_u32 v4, K2_code_end-FU_pc-4, v4", V(4), V(4))
            E.vload("global_load_dword v72, v4, s[10:11]", V(72), V(4))
            E.label("K2_nocpf")
            E.vm = []
    else:
        e("s_load_dwordx2 s[8:9], s[0:1], 32")
        e("s_load_dwordx2 s[4:5], s[0:1], 16")
        if STAMP: e("s_memtime s[70:71]"); e("s_memrealtime s[80:81]")
        e("s_getpc_b64 s[10:11]")
        E.label("K2_pc")
        e("s_cmp_ge_u32 s2, 256"); e("s_cbranch_scc1 K2_end")
        va("v_lshrrev_b32 v3, 6, v0", V(3), V(0))
        if env('CPF', 1):
            va("v_lshlrev_b32 v4, 7, v0", V(4), V(0))
            va("v_min_u32 v4, K2_code_end-K2_pc-4, v4", V(4), V(4))
        va("v_and_b32 v0, 63, v0", V(0), V(0))
        E.nop(1)
        e("v_readfirstlane_b32 s24, v3")
        if env('CPF', 1):
            e("s_cmp_ge_u32 s2, 8"); e("s_cbranch_scc1 K2_nocpf")
            E.vload("global_load_dword v255, v4, s[10:11]", V(255), V(4))
            E.label("K2_nocpf")
    FL_OFF = G.get('FL_OFF', 0)
    nsig = [0]
    def signal12():
        for o in (78, 79):
            if o == 79:
                e("s_cmp_eq_u32 s79, 0"); e("s_cbranch_scc1 FU_nosig%d" % nsig[0])
            e("s_add_u32 s33, s%d, 6144" % o)
            e("v_mov_b32 v10, s33"); e("v_mov_b32 v11, s82")
            e("s_mov_b64 exec, 1")
            e("global_atomic_swap v10, v11, s[8:9] sc1")
            e("s_mov_b64 exec, -1")
        E.label("FU_nosig%d" % nsig[0]); nsig[0] += 1
    e("s_and_b32 s25, s2, 7"); e("s_lshr_b32 s26, s2, 3")
    e("s_mul_i32 s27, s26, 43"); e("s_lshr_b32 s27, s27, 8"); e("s_mul_i32 s28, s27, 6"); e("s_sub_u32 s28, s26, s28")
    e("s_lshl_b32 s27, s27, 3"); e("s_add_u32 s27, s27, s25")
    e("s_cmp_lt_u32 s26, 30"); e("s_cbranch_scc1 K2_map")
    e("s_lshl_b32 s29, s25, 1"); e("s_add_u32 s29, s29, s26"); e("s_sub_u32 s29, s29, 30")
    e("s_mul_i32 s27, s29, 43"); e("s_lshr_b32 s27, s27, 8"); e("s_mul_i32 s28, s27, 6"); e("s_sub_u32 s28, s29, s28"); e("s_add_u32 s27, s27, 40")
    E.label("K2_map")
    e("s_cmp_ge_u32 s27, %d" % NREG); e("s_cbranch_scc1 %s" % ("FU_idle" if FUSED else "K2_end"))
    va("v_lshlrev_b32 v%d, 4, v0" % V_L16, V(V_L16), V(0))
    va("v_and_b32 v3, 15, v0", V(3), V(0))
    va("v_cmp_ne_u32 vcc, 0, v3", [], V(3))
    va("v_lshrrev_b32 v4, 4, v0", V(4), V(0))
    va("v_lshlrev_b32 v4, 6, v4", V(4), V(4))
    va("v_lshrrev_b32 v5, 2, v3", V(5), V(3))
    va("v_lshl_add_u32 v5, v5, 8, v4", V(5), V(5) + V(4))
    va("v_and_b32 v6, 3, v0", V(6), V(0))
    va("v_lshl_add_u32 v%d, v6, 4, v5" % V_FR, V(V_FR), V(5) + V(6))
    va("v_min_u32 v3, 5, v3", V(3), V(3))
    va("v_add_u32 v3, %d, v3" % (S - 6), V(3), V(3))
    va("v_lshlrev_b32 v3, 10, v3", V(3), V(3))
    va("v_add3_u32 v%d, v3, v4, s%d" % (V_HOFF, 33) if False else "v_add_u32 v3, v3, v4", V(3), V(3) + V(4))
    va("v_add_u32 v%d, 816, v3" % V_HOFF, V(V_HOFF), V(3))
    e("s_lshl_b32 s29, s27, 2"); e("s_add_u32 s29, s29, s24"); e("s_mul_i32 s29, s29, %d" % XW)
    e("s_max_u32 s30, s27, 1"); e("s_sub_u32 s30, s30, 1"); e("s_lshl_b32 s30, s30, 2"); e("s_add_u32 s30, s30, s24"); e("s_mul_i32 s30, s30, %d" % XW)
    e("s_lshl_b32 s31, s28, 2"); e("s_add_u32 s31, s31, s24"); e("s_mul_i32 s31, s31, %d" % WW); e("s_add_u32 s31, s31, %d" % WF_OFF)
    ROT = env('ROT', 0)
    if ROT:
        e("s_lshr_b32 s33, s27, 3"); e("s_add_u32 s33, s33, s28")
        if ROT == 2:
            e("s_and_b32 s32, s33, 1"); e("s_xor_b32 s36, s32, 1"); e("s_mov_b32 s39, 2")
        else:
            e("s_mul_i32 s34, s33, 86"); e("s_lshr_b32 s34, s34, 8"); e("s_mul_i32 s34, s34, 3"); e("s_sub_u32 s32, s33, s34")
            e("s_add_u32 s36, s32, 1"); e("s_cmp_eq_u32 s36, 3"); e("s_cselect_b32 s36, 0, s36")
            e("s_add_u32 s39, s36, 1"); e("s_cmp_eq_u32 s39, 3"); e("s_cselect_b32 s39, 0, s39")
    else:
        e("s_mov_b32 s32, 0"); e("s_mov_b32 s36, 1"); e("s_mov_b32 s39, 2")
    SRD = {'X': [12, 40, 44], 'W': [16, 48, 52], 'H': [20, 56, 60]}
    CH = [32, 36, 39]
    def srd_off(kind, ch):
        base = {'X': 29, 'W': 31, 'H': 30}[kind]; stride = {'X': 32768, 'W': 28672, 'H': 32768}[kind]
        sr = SRD[kind][ch]
        e("s_mul_i32 s%d, s%d, %d" % (sr + 2, CH[ch], stride)); e("s_add_u32 s%d, s%d, s%d" % (sr + 2, sr + 2, base))
    def srd_fin(kind, ch):
        sr = SRD[kind][ch]; sz = {'X': 32768, 'W': 28672, 'H': XREG + 32768}[kind]
        e("s_add_u32 s%d, s8, s%d" % (sr, sr + 2)); e("s_addc_u32 s%d, s9, 0" % (sr + 1)); e("s_and_b32 s%d, s%d, 0xffff" % (sr + 1, sr + 1))
        e("s_mov_b32 s%d, %d" % (sr + 2, sz)); e("s_mov_b32 s%d, 0x00020000" % (sr + 3))
    for kind in 'XW': srd_off(kind, 0)
    if not FUSED: e("s_waitcnt lgkmcnt(0)")
    for kind in 'XW': srd_fin(kind, 0)
    CST = [None, 25, 26, 64, 65, 66, 67, 68] if not STAMP else [None, 25, 26, 96, 97, 98, 99, 100]
    need0 = sorted(set((f.off % (32768 if f.kind != 'W' else 28672)) // 4096 for f in pre) - {0})
    for j in need0: e("s_mov_b32 s%d, %d" % (CST[j], j * 4096))
    def late_srds():
        for j in range(1, 8):
            if j not in need0: e("s_mov_b32 s%d, %d" % (CST[j], j * 4096))
        for kind, ch in [('H', 0), ('X', 1), ('W', 1), ('H', 1), ('X', 2), ('W', 2), ('H', 2)]:
            srd_off(kind, ch); srd_fin(kind, ch)
    def load(f, slot):
        if slot > 100 and ((env('SKIPW', 0) and f.kind == 'W') or (env('SKIPX', 0) and f.kind != 'W')): return
        stride = 28672 if f.kind == 'W' else 32768
        off = f.off % stride
        assert f.off // stride == f.ch
        so = off // 4096; io = off % 4096
        sreg = "0" if so == 0 else "s%d" % CST[so]
        kind = {'X': 'X', 'W': 'W', 'H': 'H', 'S': 'H'}[f.kind]
        sr = SRD[kind][f.ch]
        vo = {'X': V_FR, 'W': V_L16, 'H': V_HOFF, 'S': V_SH}[f.kind]
        E.vload("buffer_load_dwordx4 %s, v%d, s[%d:%d], %s offen offset:%d%s" % (rn(f.reg), vo, sr, sr + 3, sreg, io, env('LDW', ' sc1') if f.kind == 'W' else env('LDX', ' sc1')), regs(f.reg), V(vo), tok=('slot', slot))
    assert all(f.kind in 'XW' and f.ch == 0 for f in pre), pre
    e("s_add_u32 s10, s10, K2_at-%s_pc" % KN); e("s_addc_u32 s11, s11, 0")
    e("s_lshl_b32 s33, s24, 10")
    va("v_add_u32 v3, s33, v%d" % V_L16, V(3), V(V_L16))
    def touch(c): raise Exception('touch disabled')
    NP1 = env('NP1', 12)
    SPIN = env('SPIN', 400000)
    def poll_loads(phase, raw=False):
        ld = (lambda t, d, a: e(t)) if raw else (lambda t, d, a: E.vload(t, V(d), V(a), tok=('slot', slot_now[0])))
        if phase == 0:
            ld("global_load_dword v3, v252, s[8:9] sc1", 3, 252)
            ld("global_load_dword v8, v255, s[8:9] sc1", 8, 255)
        else:
            ld("global_load_dword v3, v252, s[8:9] offset:0 sc1".replace("offset:0", "offset:3072"), 3, 252) if False else None
            ld("global_load_dword v3, v253, s[8:9] sc1", 3, 253)
            ld("global_load_dword v253, v255, s[8:9] offset:256 sc1", 253, 255)
            ld("global_load_dword v254, v255, s[8:9] offset:512 sc1", 254, 255)
    def poll_test(phase, lab, raw=False):
        regs_ = [3, 8] if phase == 0 else [3, 253, 254]
        for k_, r_ in enumerate(regs_):
            t = "v_cmp_ne_u32 s[%d:%d], s82, v%d" % (72 + 2 * k_, 73 + 2 * k_, r_)
            if raw: e(t)
            else: va(t, [], V(r_))
        e("s_nop 4")
        for k_ in range(1, len(regs_)): e("s_or_b64 s[72:73], s[72:73], s[%d:%d]" % (72 + 2 * k_, 73 + 2 * k_))
        e("s_cmp_lg_u64 s[72:73], 0")
        e("s_cbranch_scc1 %s" % lab)
    if FUSED:
        E.vload("global_load_dwordx4 v[4:7], v3, s[10:11]", V(4, 4), V(3), tok=('slot', -1))
        late_srds()
        for fn in setup: fn()
        e("s_lshl_b32 s33, s27, 7"); e("s_max_u32 s34, s27, 1"); e("s_sub_u32 s34, s34, 1"); e("s_lshl_b32 s34, s34, 7")
        va("v_mov_b32 v252, s33", V(252), []); va("v_mov_b32 v253, s34", V(253), [])
        va("v_cmp_gt_u32 s[72:73], 32, v0", [], V(0)); E.nop(2)
        va("v_cndmask_b32 v252, v253, v252, s[72:73]", V(252), V(252) + V(253))
        va("v_and_b32 v253, 31, v0", V(253), V(0))
        va("v_lshl_add_u32 v252, v253, 2, v252", V(252), V(252) + V(253))
        va("v_add_u32 v252, %d, v252" % FL_OFF, V(252), V(252))
        va("v_add_u32 v253, 6144, v252", V(253), V(252))
        va("v_min_u32 v255, 55, v0", V(255), V(0))
        va("v_lshlrev_b32 v255, 2, v255", V(255), V(255))
        e("s_and_b32 s33, s2, 7"); e("s_lshl_b32 s33, s33, 10"); e("s_add_u32 s33, s33, %d" % (FL_OFF + 12288))
        va("v_add_u32 v255, s33, v255", V(255), V(255))
        e("s_mov_b32 s33, 0")
        E.wait(0, None)
        fstamp(3)
        e("s_cmp_lg_u32 s24, 3"); e("s_cbranch_scc1 FU_sig")
        poll_loads(0, raw=True)
        e("s_waitcnt vmcnt(0)")
        poll_test(0, "FU_poll0_again", raw=True)
        E.label("FU_poll0_ok")
        E.label("FU_sig")
        signal12()
        E.barrier()
        fstamp(4)
        for f in pre: load(f, -1)
    else:
        for f in pre[:NP1]: load(f, -1)
        late_srds()
        for fn in setup: fn()
        for f in pre[NP1:]: load(f, -1)
        E.vload("global_load_dwordx4 v[4:7], v3, s[10:11]", V(4, 4), V(3), tok=('slot', -1))
    if STAMP and STAMP != 3: e("s_memtime s[72:73]")
    if FUSED:
        first1 = min(f.issue for f in frags if f.ch >= 1)
        mp2 = first1 - 1; mp1 = max(1, mp2 - env('MPL', 80))
        def p_issue(): poll_loads(1)
        def p_check():
            prewait(V(3) + V(253) + V(254))
            E._need(V(3) + V(253) + V(254))
            poll_test(1, "FU_poll1_again")
            E.label("FU_poll1_ok")
            E.barrier()
        gap[mp1].append(('ins', p_issue, 'poll')); gap[mp2].insert(0, ('ins', p_check, 'poll'))
        sys.stderr.write("fused: poll 1 issued at %d, checked at %d\n" % (mp1, mp2))
    if STAMP and STAMP != 3: e("s_memtime s[72:73]")
    started = set()
    for i in range(N + 1):
        slot_now[0] = i
        if i == N and STAMP: e("s_memtime s[76:77]"); e("s_memrealtime s[82:83]")
        for x in gap[i]:
            if x[0] == 'load': load(x[1], i)
            elif x[0] == 'touch': touch(x[1])
            else: x[1]()
        if i == N:
            final(); break
        a, (ch, c, rho), w = ops[i]
        xf = XS[ch, c, rho] if (rho < 0 and (ch, c) in SHL) else X[ch, c, rho if rho >= 0 else rho + S]
        prewait(regs(xf.reg) + regs(w.reg))
        if STAMP:
            if i == 0 and STAMP != 3: e("s_memtime s[74:75]")
            if i == 0: e("s_memrealtime s[88:89]")
            m1, m2 = (N // 3, 2 * N // 3) if STAMP == 1 else (env('M1', 0), env('M2', 0))
            if STAMP != 3 and i == m1: e("s_memtime s[84:85]"); e("s_memrealtime s[90:91]")
            if STAMP != 3 and i == m2: e("s_memtime s[86:87]"); e("s_memrealtime s[92:93]")
        if i == 0: fstamp(5)
        E.mfma(accreg[a], xf.reg, w.reg, accreg[a] if a in started else None)
        started.add(a)
    if STAMP:
        e("s_memtime s[94:95]"); e("s_memrealtime s[66:67]"); e("s_waitcnt lgkmcnt(0)")
        e("s_add_u32 s4, s8, %d" % ST_OFF); e("s_addc_u32 s5, s9, 0"); e("s_and_b32 s5, s5, 0xffff"); e("s_mov_b32 s6, %d" % (256 * 4 * 64))
        e("s_lshl_b32 s33, s2, 2"); e("s_add_u32 s33, s33, s24"); e("s_lshl_b32 s33, s33, 6")
        for k2, sr in enumerate((70, 72, 74, 76, 80, 82, 84, 86, 88, 90, 92, 94, 66)):
            e("v_mov_b32 v6, s%d" % sr); e("v_mov_b32 v5, %d" % (4 * k2)); e("s_mov_b64 exec, 1")
            e("buffer_store_dword v6, v5, s[4:7], s33 offen"); e("s_mov_b64 exec, -1")
    if FST:
        fstamp(6); e("s_waitcnt lgkmcnt(0)")
        e("s_add_u32 s4, s8, %d" % ST_OFF); e("s_addc_u32 s5, s9, 0"); e("s_and_b32 s5, s5, 0xffff"); e("s_mov_b32 s6, %d" % (256 * 4 * 64)); e("s_mov_b32 s7, 0x00020000")
        e("s_lshl_b32 s33, s2, 2"); e("s_add_u32 s33, s33, s24"); e("s_lshl_b32 s33, s33, 6")
        for k2, sr in enumerate([100] + [fs_regs[k_] for k_ in range(1, 7)]):
            e("v_mov_b32 v6, s%d" % sr); e("v_mov_b32 v5, %d" % (4 * k2)); e("s_mov_b64 exec, 1")
            e("buffer_store_dword v6, v5, s[4:7], s33 offen"); e("s_mov_b64 exec, -1")
    E.label("K2_end")
    e("s_endpgm")
    if FUSED:
        E.label("FU_idle")
        e("s_waitcnt vmcnt(0)")
        signal12()
        e("s_endpgm")
        for n_ in range(2):
            E.label("FU_poll%d_again" % n_)
            e("s_mov_b32 s34, 0")
            E.label("FU_poll%d_loop" % n_)
            e("s_add_u32 s34, s34, 1"); e("s_cmp_ge_u32 s34, %d" % SPIN); e("s_cbranch_scc1 FU_poll%d_ok" % n_)
            e("s_sleep %d" % env('PSL', 16))
            if n_ == 1: e("v_add_u32 v253, 6144, v252")
            poll_loads(n_, raw=True); e("s_waitcnt vmcnt(0)")
            poll_test(n_, "FU_poll%d_loop" % n_, raw=True)
            e("s_branch FU_poll%d_ok" % n_)
        pagen.tables(E, G)
    tb = np.zeros((4, 64, 8), dtype=np.float64)
    for v in range(4):
        for l in range(64):
            n, kg = l % 16, l // 16
            if n >= cfg.m: continue
            if kg < 2:
                for ww in range(2):
                    for sl in range(3): tb[v, l, 4 * ww + sl] = cfg.ATs[2 * kg + ww, sl, n]
            elif kg == 2:
                for p in range(4):
                    ww = p ^ v
                    tb[v, l, 2 * p] = cfg.ATs[ww, 3, n]; tb[v, l, 2 * p + 1] = cfg.ATs[ww, 4, n]
    E.raw(".p2align 8"); E.label("K2_at"); E.raw(G['table'](bf16bits(tb).reshape(-1)))
    E.label("K2_code_end")
    sys.stderr.write("K2: %d MFMA main, %d instr, %d waits, %d nops\n" % (N, E.ninst, E.nwait, E.nnop))
    name = "standalone__fft_conv__vision_kernel" if FUSED else "k2_kernel"
    return G['head'](name) + E.text() + G['KD'] % (name, 512, 102, 256), LDS
```

```python
import numpy as np
from emit import *
from consts import bf16bits, bf16r

WLDS = 27008
SL1 = 12352
KS = 2080

def phase_a(E, G):
    env = G['env']; cfg = G['cfg']
    XW, XREG, XF_SIZE, WF_OFF, WF_SIZE, XBYTES, WBYTES, ROWB = [G[k] for k in 'XW XREG XF_SIZE WF_OFF WF_SIZE XBYTES WBYTES ROWB'.split()]
    SF = env('K1SF', ' sc1')
    e = E.salu
    va = lambda t, d, s_, **kw: E.valu(t, d, s_, **kw)
    st = G.get('fstamp', lambda n: None)
    e("s_and_b32 s20, s2, 7")
    e("s_lshr_b32 s21, s2, 3"); e("s_lshl_b32 s21, s21, 2"); e("s_add_u32 s21, s21, s24")
    e("s_lshr_b32 s83, s2, 3"); e("s_lshl_b32 s83, s83, 1"); e("s_add_u32 s83, s83, s24"); e("s_cmp_lt_u32 s24, 2"); e("s_cselect_b32 s83, s83, 64")
    e("s_add_u32 s22, s83, 128"); e("s_min_u32 s22, s22, 167")
    va("v_and_b32 v1, 3, v0", V(1), V(0))
    va("v_bfe_u32 v5, v0, 2, 1", V(5), V(0))
    e("s_sub_u32 s23, s22, s21")
    va("v_mul_u32_u24 v5, s23, v5", V(5), V(5))
    va("v_add_u32 v5, s21, v5", V(5), V(5))
    va("v_lshl_add_u32 v1, v5, 2, v1", V(1), V(1) + V(5))
    va("v_mul_u32_u24 v2, 2260, v1", V(2), V(1))
    va("v_lshrrev_b32 v2, 16, v2", V(2), V(2))
    va("v_mul_u32_u24 v3, 29, v2", V(3), V(2))
    va("v_sub_u32 v3, v1, v3", V(3), V(1) + V(3))
    va("v_min_u32 v2, 22, v2", V(2), V(2))
    va("v_lshlrev_b32 v4, 3, v3", V(4), V(3))
    va("v_add_u32 v4, 216, v4", V(4), V(4))
    va("v_subrev_u32 v5, 224, v4", V(5), V(4))
    va("v_min_u32 v4, v4, v5", V(4), V(4) + V(5))
    va("v_add_u32 v4, s20, v4", V(4), V(4))
    va("v_mul_u32_u24 v4, %d, v4" % ROWB, V(4), V(4))
    va("v_mul_u32_u24 v6, 1920, v2", V(6), V(2))
    va("v_add_u32 v7, v4, v6", V(7), V(4) + V(6))
    va("v_cmp_eq_u32 vcc, 0, v2", [], V(2))
    va("v_mov_b32 v5, %d" % ROWB, V(5), [])
    va("v_mov_b32 v6, 0", V(6), [])
    va("v_cndmask_b32 v3, v6, v5, vcc", V(3), V(5) + V(6))
    E.nop(1)
    for a in range(8): e("v_readlane_b32 s%d, v7, %d" % (40 + a, a))
    for a in range(8): e("v_readlane_b32 s%d, v3, %d" % (48 + a, a))
    for n in range(3):
        va("v_add_u32 v8, %d, v0" % (64 * n), V(8), V(0))
        va("v_mul_u32_u24 v9, 5462, v8", V(9), V(8))
        va("v_bfe_u32 v10, v9, 18, 2", V(10), V(9))
        va("v_xor_b32 v8, v8, v10", V(8), V(8) + V(10))
        va("v_lshlrev_b32 v%d, 4, v8" % (12 + n), V(12 + n), V(8))
        if n < 2:
            va("v_lshrrev_b32 v9, 16, v9", V(9), V(9))
            va("v_cmp_gt_u32 vcc, 6, v9", [], V(9))
            E.nop(2)
            va("v_cndmask_b32 v%d, 0, 1, vcc" % (16 + n), V(16 + n), [])
    e("s_mul_i32 s56, s24, %d" % WLDS)
    e("s_waitcnt lgkmcnt(0)")
    e("s_mov_b64 s[76:77], s[6:7]")
    e("s_sub_u32 s12, s84, 1152"); e("s_subb_u32 s13, s85, 0"); e("s_and_b32 s13, s13, 0xffff"); e("s_mov_b32 s14, %d" % (XBYTES + 1152)); e("s_mov_b32 s15, 0x00020000")
    def xloads(task):
        for a in range(4):
            for n in range(3):
                t = 8 + (3 * a + n) % 2
                e("s_add_u32 m0, s56, %d" % (task * SL1 + a * 3088 + n * 1024))
                if n < 2: va("v_mad_i32_i24 v%d, v%d, s%d, v%d" % (t, 16 + n, 48 + 4 * task + a, 12 + n), V(t), V(16 + n) + V(12 + n))
                else:
                    t = 14; E.nop(1)
                E.vload("buffer_load_dwordx4 v%d, s[12:15], s%d offen lds" % (t, 40 + 4 * task + a), [], V(t), tok=('x', task, a))
    e("s_or_b32 s57, s2, s24"); e("s_cmp_lg_u32 s57, 0"); e("s_cbranch_scc1 FA_nononce")
    e("s_memrealtime s[58:59]"); e("s_waitcnt lgkmcnt(0)"); e("s_or_b32 s58, s58, 1")
    va("v_mov_b32 v8, 0", V(8), []); va("v_mov_b32 v9, s58", V(9), [])
    e("s_mov_b64 exec, 1"); e("global_store_dword v8, v9, s[76:77] sc1"); e("s_mov_b64 exec, -1")
    E.label("FA_nononce")
    def first_loads():
        xloads(0)
        va("v_mov_b32 v30, 0", V(30), [])
        E.vload("global_load_dword v31, v30, s[76:77] sc1", V(31), V(30), tok=('nonce',))
    e("s_cmp_lt_u32 s83, 40"); e("s_cbranch_scc1 FA_xx")
    e("s_cmp_lt_u32 s83, 61"); e("s_cbranch_scc1 FA_xw")
    import copy
    def snap(): return copy.deepcopy((E.pos, E.w, E.mc, E.sd, E.vm, E.lg))
    def rest(s_): E.pos, E.w, E.mc, E.sd, E.vm, E.lg = copy.deepcopy(s_)
    base_state = snap()

    def xsetup():
        va("v_lshlrev_b32 v1, 3, v0", V(1), V(0))
        e("s_add_u32 s58, s10, FU_bt-FU_pc"); e("s_addc_u32 s59, s11, 0")
        E.vload("global_load_dwordx2 v[20:21], v1, s[58:59]", V(20, 2), V(1))
        va("v_lshrrev_b32 v2, 4, v0", V(2), V(0))
        va("v_and_b32 v3, 15, v0", V(3), V(0))
        va("v_lshrrev_b32 v4, 2, v3", V(4), V(3))
        va("v_and_b32 v5, 3, v0", V(5), V(0))
        va("v_lshl_add_u32 v6, v2, 2, v4", V(6), V(2) + V(4))
        va("v_mul_u32_u24 v7, 193, v5", V(7), V(5))
        va("v_mul_u32_u24 v8, 12, v6", V(8), V(6))
        va("v_add_u32 v7, v7, v8", V(7), V(7) + V(8))
        va("v_mov_b32 v10, s56", V(10), [])
        for kg in range(4):
            va("v_xor_b32 v9, %d, v2" % kg, V(9), V(2))
            va("v_add_u32 v9, v7, v9", V(9), V(7) + V(9))
            va("v_lshl_add_u32 v%d, v9, 4, v10" % (24 + kg), V(24 + kg), V(9) + V(10))
        va("v_mul_u32_u24 v7, 193, v2", V(7), V(2))
        va("v_mul_u32_u24 v8, 12, v3", V(8), V(3))
        va("v_add_u32 v7, v7, v8", V(7), V(7) + V(8))
        va("v_lshrrev_b32 v8, 2, v3", V(8), V(3))
        for kg in range(4):
            va("v_xor_b32 v9, %d, v8" % kg, V(9), V(8))
            va("v_add_u32 v9, v7, v9", V(9), V(7) + V(9))
            va("v_lshl_add_u32 v%d, v9, 4, v10" % (244 + kg), V(244 + kg), V(9) + V(10))
        va("v_lshrrev_b32 v2, 4, v0", V(2), V(0))
        va("v_bfe_u32 v3, v0, 2, 2", V(3), V(0))
        va("v_and_b32 v4, 3, v0", V(4), V(0))
        va("v_mul_u32_u24 v7, 193, v4", V(7), V(4))
        va("v_mul_u32_u24 v8, 12, v2", V(8), V(2))
        va("v_add_u32 v7, v7, v8", V(7), V(7) + V(8))
        for v in range(4):
            va("v_xor_b32 v9, %d, v3" % v, V(9), V(3))
            va("v_add_u32 v9, v7, v9", V(9), V(7) + V(9))
            va("v_lshl_add_u32 v%d, v9, 4, v10" % (16 + v), V(16 + v), V(9) + V(10))
        va("v_lshlrev_b32 v7, 13, v2", V(7), V(2))
        va("v_lshl_add_u32 v7, v3, 6, v7", V(7), V(3) + V(7))
        va("v_lshl_add_u32 v11, v4, 4, v7", V(11), V(4) + V(7))
        for task, qs in ((0, 21), (1, 22)):
            e("s_lshr_b32 s62, s%d, 2" % qs); e("s_lshl_b32 s%d, s62, 7" % (78 + task)); e("s_mul_i32 s%d, s62, %d" % (60 + task, XREG))
            e("s_lshl_b32 s62, s20, 2"); e("s_and_b32 s57, s%d, 3" % qs); e("s_add_u32 s62, s62, s57"); e("s_lshl_b32 s62, s62, 2")
            e("s_add_u32 s%d, s%d, s62" % (78 + task, 78 + task)); e("s_add_u32 s%d, s%d, %d" % (78 + task, 78 + task, G['FL_OFF']))
            e("s_lshl_b32 s62, s20, 10"); e("s_add_u32 s%d, s%d, s62" % (60 + task, 60 + task))
            e("s_and_b32 s62, s%d, 3" % qs); e("s_lshl_b32 s62, s62, 8"); e("s_add_u32 s%d, s%d, s62" % (60 + task, 60 + task))
        e("s_mov_b32 s16, s8"); e("s_and_b32 s17, s9, 0xffff"); e("s_mov_b32 s18, %d" % XF_SIZE); e("s_mov_b32 s19, 0x00020000")
    AFR = [32, 160]
    def reads(task, k):
        for kg in range(4):
            for hf in range(2):
                a = AFR[task] + 16 * k + 2 * (2 * kg + hf)
                E.dsread("ds_read_b64_tr_b16 v[%d:%d], v%d offset:%d" % (a, a + 1, 24 + kg, task * SL1 + k * 64 + 8 * hf), V(a, 2), V(24 + kg))
    def mm(task, k, d):
        for i in range(8): E.mfma16(('v', d + 4 * i), ('v', AFR[task] + 16 * k + 2 * i), ('v', 20), None)
    def pack(task, k, d):
        for kg in range(4):
            d0 = d + 8 * kg
            for i in range(4):
                va("v_cvt_pk_bf16_f32 v%d, v%d, v%d" % (d0 + i, d0 + 2 * i, d0 + 2 * i + 1), V(d0 + i), V(d0 + 2 * i, 2))
            E.dswrite("ds_write_b128 v%d, v[%d:%d] offset:%d" % (244 + kg, d0, d0 + 3, task * SL1 + k * 64), V(d0, 4), V(244 + kg))
    ring = [0]
    def out(task, k):
        base = 144 if ring[0] % 2 == 0 else 208
        ring[0] += 1
        for i in range(4):
            r = base + 4 * i
            E.dsread("ds_read_b128 v[%d:%d], v%d offset:%d" % (r, r + 3, 16 + i, task * SL1 + 768 * i + 64 * k), V(r, 4), V(16 + i))
        for i in range(4):
            r = base + 4 * i
            e("s_add_u32 s62, s%d, %d" % (60 + task, i * XW + k * 32768))
            E.vstore("buffer_store_dwordx4 v[%d:%d], v11, s[16:19], s62 offen%s" % (r, r + 3, SF), V(r, 4), V(11), tok=('st', task, k))
    def get_nonce(tag):
        E._need(V(31))
        E.nop(1)
        e("v_readfirstlane_b32 s82, v31")
        e("s_mov_b32 s57, 0")
        E.label("FA_n%s" % tag)
        e("s_cmp_lg_u32 s82, 0"); e("s_cbranch_scc1 FA_nok%s" % tag)
        e("s_add_u32 s57, s57, 1"); e("s_cmp_ge_u32 s57, %d" % env('SPIN', 400000)); e("s_cbranch_scc1 FA_nok%s" % tag)
        e("s_sleep 4")
        e("v_mov_b32 v30, 0"); e("global_load_dword v31, v30, s[76:77] sc1"); e("s_waitcnt vmcnt(0)"); e("v_readfirstlane_b32 s82, v31")
        e("s_branch FA_n%s" % tag)
        E.label("FA_nok%s" % tag)
    def signal(offs):
        for o in offs:
            va("v_mov_b32 v1, s%d" % o, V(1), [])
            va("v_mov_b32 v2, s82", V(2), [])
            e("s_mov_b64 exec, 1")
            E.vstore("global_atomic_swap v1, v2, s[8:9] sc1", V(2), V(1))
            e("s_mov_b64 exec, -1")
    first_loads()
    xsetup()
    E.wait_token(('x', 0, 3))
    st(1)
    for k in range(3): reads(0, k)
    mm(0, 0, 80); mm(0, 1, 112); pack(0, 0, 80); out(0, 0)
    mm(0, 2, 80); pack(0, 1, 112); pack(0, 2, 80)

    out(0, 1)
    get_nonce('a')
    E._need([('st', 0, 0)])
    signal([78])
    out(0, 2); st(2)
    e("s_mov_b32 s79, 0")
    e("s_branch FU_pb")
    E.label("FA_xx"); rest(base_state); ring[0] = 0
    first_loads()
    xloads(1)
    xsetup()
    E.wait_token(('x', 0, 3))
    st(1)
    for k in range(3): reads(0, k)
    mm(0, 0, 80); mm(0, 1, 112); pack(0, 0, 80); out(0, 0)
    if env('FS2', 0): G['fs2'](3)
    E.wait_token(('x', 1, 3))
    for k in range(3): reads(1, k)
    mm(1, 0, 80); pack(0, 1, 112); pack(1, 0, 80); out(1, 0)
    mm(0, 2, 112); mm(1, 1, 80)
    get_nonce('b')
    E._need([('st', 0, 0)])
    signal([78])
    out(0, 1)
    pack(0, 2, 112); pack(1, 1, 80)
    mm(1, 2, 112); out(1, 1); pack(1, 2, 112)
    E._need([('st', 1, 0)])
    signal([79])
    out(0, 2); out(1, 2)
    st(2)
    e("s_branch FU_pb")
    E.label("FA_xw"); rest(base_state); ring[0] = 0
    e("s_mul_i32 s63, s20, 21"); e("s_add_u32 s63, s63, s83"); e("s_sub_u32 s63, s63, 40")
    e("s_and_b32 s64, s63, 1")
    e("s_lshr_b32 s63, s63, 1")
    e("s_and_b32 s65, s63, 3")
    e("s_lshr_b32 s63, s63, 2")
    e("s_mul_i32 s66, s63, 86"); e("s_lshr_b32 s66, s66, 8")
    e("s_mul_i32 s67, s66, 3"); e("s_sub_u32 s67, s63, s67")
    va("v_lshlrev_b32 v22, 4, v0", V(22), V(0))
    va("v_add_u32 v23, 1024, v22", V(23), V(22))
    e("s_mul_i32 s68, s66, %d" % (7 * 18432))
    e("s_mul_i32 s69, s67, %d" % (32 * 192)); e("s_add_u32 s68, s68, s69")
    e("s_mul_i32 s69, s65, %d" % (8 * 192)); e("s_add_u32 s68, s68, s69")
    e("s_mov_b32 s72, s86"); e("s_and_b32 s73, s87, 0xffff"); e("s_mov_b32 s74, %d" % WBYTES); e("s_mov_b32 s75, 0x00020000")
    for kw in range(7):
        for hf in range(2):
            e("s_add_u32 m0, s56, %d" % (SL1 + kw * KS + hf * 1024))
            e("s_add_u32 s69, s68, %d" % (kw * 18432))
            E.vload("buffer_load_dwordx4 v%d, s[72:75], s69 offen lds" % (22 + hf), [], V(22 + hf), tok=('w', kw, hf))
    va("v_lshlrev_b32 v2, 3, v0", V(2), V(0))
    e("s_add_u32 s58, s10, FU_gt-FU_pc"); e("s_addc_u32 s59, s11, 0")
    E.vload("global_load_dwordx2 v[22:23], v2, s[58:59]", V(22, 2), V(2))
    first_loads()
    xsetup()
    va("v_bfe_u32 v3, v0, 4, 1", V(3), V(0))
    va("v_bfe_u32 v4, v0, 2, 2", V(4), V(0))
    va("v_lshl_add_u32 v3, v3, 2, v4", V(3), V(3) + V(4))
    va("v_min_u32 v3, 6, v3", V(3), V(3))
    va("v_mul_u32_u24 v3, %d, v3" % KS, V(3), V(3))
    va("v_and_b32 v4, 3, v0", V(4), V(0))
    va("v_lshl_add_u32 v3, v4, 3, v3", V(3), V(3) + V(4))
    e("s_mul_i32 s69, s64, 96"); e("s_add_u32 s69, s69, s56")
    va("v_add_u32 v240, s69, v3", V(240), V(3))
    va("v_lshrrev_b32 v4, 4, v0", V(4), V(0))
    va("v_mul_u32_u24 v241, %d, v4" % (3 * 28 * 1024), V(241), V(4))
    va("v_and_b32 v4, 15, v0", V(4), V(0))
    va("v_lshl_add_u32 v241, v4, 4, v241", V(241), V(241) + V(4))
    e("s_mul_i32 s68, s64, %d" % (3 * 4 * 3 * 28 * 1024))
    e("s_mul_i32 s69, s67, %d" % (28 * 1024)); e("s_add_u32 s68, s68, s69")
    e("s_lshl_b32 s69, s66, 10"); e("s_add_u32 s68, s68, s69")
    e("s_lshl_b32 s69, s65, 8"); e("s_add_u32 s68, s68, s69")
    e("s_add_u32 s72, s8, %d" % WF_OFF); e("s_addc_u32 s73, s9, 0"); e("s_and_b32 s73, s73, 0xffff"); e("s_mov_b32 s74, %d" % WF_SIZE)
    E.wait_token(('w', 6, 1))
    for u in range(3):
        for i in range(8):
            a = 160 + 16 * u + 2 * i
            E.dsread("ds_read_b64_tr_b16 v[%d:%d], v240 offset:%d" % (a, a + 1, SL1 + i * 192 + u * 32), V(a, 2), V(240))
    for u in range(3):
        d = 80 if u % 2 == 0 else 112
        for i in range(8): E.mfma16(('v', d + 4 * i), ('v', 22), ('v', 160 + 16 * u + 2 * i), None)
        for j in range(4):
            p = 224 + 4 * j
            for dd in range(4):
                va("v_cvt_pk_bf16_f32 v%d, v%d, v%d" % (p + dd, d + 8 * dd + j, d + 8 * dd + 4 + j), V(p + dd), V(d + 8 * dd + j) + V(d + 8 * dd + 4 + j))
            e("s_add_u32 s69, s68, %d" % (u * 4 * 3 * 28 * 1024 + j * 7 * 1024))
            E.vstore("buffer_store_dwordx4 v[%d:%d], v241, s[72:75], s69 offen%s" % (p, p + 3, SF), V(p, 4), V(241), tok=('wst', u, j))
    E.wait_token(('x', 0, 3))
    st(1)
    for k in range(3): reads(0, k)
    mm(0, 0, 80); mm(0, 1, 112); pack(0, 0, 80); out(0, 0)
    get_nonce('c')
    E._need([('wst', 2, 3)])
    e("s_lshl_b32 s79, s66, 2"); e("s_add_u32 s79, s79, s65"); e("s_lshl_b32 s79, s79, 1"); e("s_add_u32 s79, s79, s64"); e("s_lshl_b32 s79, s79, 2")
    e("s_lshl_b32 s69, s67, 8"); e("s_add_u32 s79, s79, s69"); e("s_add_u32 s79, s79, %d" % (G['FL_OFF'] + 12288))
    va("v_lshlrev_b32 v1, 10, v0", V(1), V(0))
    va("v_add_u32 v1, s79, v1", V(1), V(1))
    va("v_mov_b32 v2, s82", V(2), [])
    e("s_mov_b64 exec, 0xff")
    E.vstore("global_atomic_swap v1, v2, s[8:9] sc1", V(2), V(1))
    e("s_mov_b64 exec, -1")
    mm(0, 2, 80); pack(0, 1, 112); out(0, 1); pack(0, 2, 80)
    E._need([('st', 0, 0)])
    signal([78])
    out(0, 2); st(2)
    e("s_mov_b32 s79, 0")
    e("s_branch FU_pb")

def tables(E, G):
    cfg = G['cfg']
    tb = np.zeros((64, 4), dtype=np.uint16)
    for l in range(64):
        n, g = l % 16, l // 16
        tb[l] = bf16bits(cfg.BT[n, 4 * g:4 * g + 4])
    E.raw(".p2align 8"); E.label("FU_bt"); E.raw(G['table'](tb.reshape(-1)))
    gc = np.zeros((16, 8)); gc[:, :7] = cfg.G[:, ::-1]
    ghi = bf16r(gc); glo = bf16r(gc - ghi.astype(np.float64))
    tg = np.zeros((64, 4), dtype=np.uint16)
    for l in range(64):
        n, g = l % 16, l // 16
        tg[l] = bf16bits((ghi if g < 2 else glo)[n, 4 * (g % 2):4 * (g % 2) + 4])
    E.label("FU_gt"); E.raw(G['table'](tg.reshape(-1)))
```

```python
import sys, os, struct
import numpy as np
sys.path.insert(0, os.path.dirname(os.path.abspath(__file__)))
from emit import *
from consts import cfg16, bf16bits, bf16r
def env(k, d): return type(d)(os.environ.get(k, d))
cfg = cfg16()
S = 8; NREG = 42; NC = 4; NCH = 3
XW = NCH * NC * S * 1024
XREG = 4 * XW
XF_SIZE = NREG * XREG
WW = NCH * NC * 7 * 1024
WF_OFF = XF_SIZE
WF_SIZE = 24 * WW
FL_OFF = WF_OFF + WF_SIZE
ST_OFF = FL_OFF + 32768
XBYTES = 224 * 224 * 96 * 2
WBYTES = 49 * 96 * 96 * 2
ROWB = 224 * 192
NXWG = 672; NWWG = 504
K1_LDS = 8 * 3088
STAMP = env('STAMP', 0)
K1SF = env('K1SF', ' sc1')
def f2h(x): return '0x%08x' % struct.unpack('<I', struct.pack('<f', float(x)))[0]

KD = """.section .rodata,"a"
.p2align 6
.amdhsa_kernel %s
  .amdhsa_next_free_vgpr %d
  .amdhsa_next_free_sgpr %d
  .amdhsa_accum_offset %d
  .amdhsa_group_segment_fixed_size 0
  .amdhsa_kernarg_size 40
  .amdhsa_user_sgpr_count 2
  .amdhsa_user_sgpr_kernarg_segment_ptr 1
  .amdhsa_system_sgpr_workgroup_id_x 1
.end_amdhsa_kernel
"""
def head(name):
    return ".text\n.globl %s\n.p2align 8\n.type %s,@function\n%s:\n" % (name, name, name)
def table(vals16):
    v = np.asarray(vals16, dtype=np.uint16).reshape(-1, 2)
    d = v[:, 0].astype(np.uint32) | (v[:, 1].astype(np.uint32) << 16)
    return "".join("    .long " + ", ".join("0x%08x" % x for x in d[i:i + 8]) + "\n" for i in range(0, len(d), 8))

from k1gen import gen_k1
from k2gen import gen_k2
if __name__ == '__main__':
    hdr = []
    for l in open('standalone__fft_conv__vision.s.ref').read().split('\n'):
        if l.startswith('; @launch'): break
        if l.startswith('; Override') or l.startswith('; grid=ceil'): continue
        hdr.append(l)
    FUSED = env('FUSED', 0)
    k2, k2lds = gen_k2(globals())
    if FUSED:
        hdr.append("; @launch grid=(256,1,1) block=(256,1,1) lds=%d" % k2lds)
        hdr.append('.amdgcn_target "amdgcn-amd-amdhsa--gfx950"')
        txt = "\n".join(hdr) + "\n" + k2
    else:
        k1, k1grid, k1blk, k1lds = gen_k1(globals())
        hdr.append("; @launch kernel=k1_kernel grid=(%d,1,1) block=(%d,1,1) lds=%d" % (k1grid, k1blk, k1lds))
        hdr.append("; @launch kernel=k2_kernel grid=(256,1,1) block=(256,1,1) lds=%d" % k2lds)
        hdr.append('.amdgcn_target "amdgcn-amd-amdhsa--gfx950"')
        txt = "\n".join(hdr) + "\n" + k1 + k2
    open(sys.argv[1], 'w').write(txt)
```

```python
import sys, os
import numpy as np
from emit import *
from consts import bf16bits, bf16r

class Task:
    def __init__(s, name, ins, lo, hi, deps=()):
        s.name, s.ins, s.lo, s.hi = name, list(ins), lo, hi
        s.deps = [d if isinstance(d, tuple) else (d, 0) for d in deps]
        s.done_at = None

def gen_k2(G):
    FUSED = G.get('FUSED', 0)
    env = G['env']; cfg = G['cfg']; S = G['S']; NREG = G['NREG']; NC = G['NC']; NCH = G['NCH']
    XW, XREG, XF_SIZE, WW, WF_OFF, WF_SIZE, ST_OFF, XBYTES, ROWB = [G[k] for k in 'XW XREG XF_SIZE WW WF_OFF WF_SIZE ST_OFF XBYTES ROWB'.split()]
    STAMP = env('STAMP', 0)
    PACE = env('PACE', 5); WLAT = env('WLAT', 90)
    E = Em(); e = E.salu
    va = lambda t, d, s_, **kw: E.valu(t, d, s_, **kw)
    class Frag:
        def __init__(s, kind, ch, c, idx, off):
            s.kind, s.ch, s.c, s.idx, s.off = kind, ch, c, idx, off
            s.first = None; s.last = None; s.reg = None; s.issue = None
        def __repr__(s): return "%s(ch%d c%d i%d)" % (s.kind, s.ch, s.c, s.idx)
    X = {}; Hf = {}; W = {}
    for ch in range(NCH):
        for c in range(NC):
            for r in range(S): X[ch, c, r] = Frag('X', ch, c, r, ((ch * NC + c) * S + r) * 1024)
            Hf[ch, c] = Frag('H', ch, c, 0, ((ch * NC + c) * S) * 1024)
            for kh in range(7): W[ch, c, kh] = Frag('W', ch, c, kh, ((ch * NC + c) * 7 + kh) * 1024)
    SHL = set([(NCH - 1, 2), (NCH - 1, 3)]) if env('SHL', 1) else set()
    XS = {}
    for (ch_, c_) in SHL:
        for n in range(1, 7): XS[ch_, c_, -n] = Frag('S', ch_, c_, -n, ((ch_ * NC + c_) * S + S - n) * 1024)
    ops = []
    def op(sl, r, ch, c, kh, cw): ops.append(((sl, r), (ch, c, r - kh), W[ch, cw, kh]))
    marks = {}
    def pstage(ch):
        for hi_, hs in enumerate([[0, 1, 2, 3], [4, 5, 6]]):
            marks['P%d_%d' % (ch, hi_)] = len(ops)
            if ch == 0 and hi_ == 0 and env('WAVEF', 1):
                prs = sorted([(max(7 - (r - kh), kh + env('WFB', 0)), -r, kh) for r in range(S) for kh in hs])
                fl = 0
                for lev, mr, kh in prs:
                    r = -mr
                    seq = [(0, 0, 0), (1, 0, 1), (1, 1, 0), (2, 1, 1)]
                    if fl: seq = seq[::-1]
                    for sl, cx, cw in seq: op(sl, r, ch, cx, kh, cw)
                    fl ^= 1
                continue
            for r in range(S - 1, -1, -1):
                for kh in hs: op(0, r, ch, 0, kh, 0)
                for kh in hs[::-1]: op(1, r, ch, 0, kh, 1)
                for kh in hs: op(1, r, ch, 1, kh, 0)
                for kh in hs[::-1]: op(2, r, ch, 1, kh, 1)
    def rstage(ch, u):
        for r in range(S - 1, -1, -1):
            for kh in range(7): op(2 + u, r, ch, 1 + u, kh, 1 + u)
    for ch in range(NCH - 1):
        pstage(ch); rstage(ch, 1); rstage(ch, 2)
    ch = NCH - 1
    pstage(ch)
    FIN = env('FIN', 2)
    step_end = {}
    if FIN == 1:
        rstage(ch, 1)
        marks['F'] = len(ops)
        for r in range(S - 1, -1, -1):
            for kh in range(7): op(4, r, ch, 3, kh, 3)
            step_end[r] = len(ops) - 1
    else:
        marks['F'] = len(ops)
        for r in range(S - 1, -1, -1):
            for kh in range(7): op(3, r, ch, 2, kh, 2)
            for kh in range(6, -1, -1): op(4, r, ch, 3, kh, 3)
            step_end[r] = len(ops) - 1
    N = len(ops)
    use = {}; acc_last = {}
    for i, (a, xk, w) in enumerate(ops):
        use.setdefault(xk, [i, i])[1] = i
        if w.first is None: w.first = i
        w.last = i
        acc_last[a] = i
    shifts = []
    for (ch, c, r), f in X.items():
        f.first, f.last = use[ch, c, r]
        if (ch, c) in SHL: continue
        if (ch, c, r - S) in use:
            a, b = use[ch, c, r - S]
            assert f.last < a - 12, (ch, c, r, f.last, a)
            shifts.append([f, S - r, f.last, a]); f.last = b
    for key, f in XS.items(): f.first, f.last = use[key]
    for key in SHL: del Hf[key]
    for (ch, c), h in Hf.items():
        sh = [s_ for s_ in shifts if s_[0].ch == ch and s_[0].c == c]
        h.first = max(env('H0', 50), min(s_[2] for s_ in sh) - env('HEARLY', 20)); h.last = max(s_[3] for s_ in sh)
    V_L16, V_HOFF, V_FR = 1, 2, 247
    accreg = {}
    for sl in range(3):
        for r in range(S): accreg[sl, r] = ('a', 4 * (sl * S + r))
    RV = env('RV', 1)
    vbase = 8
    abase = 96
    for sl in (3, 4):
        for r in range(S):
            if RV: accreg[sl, r] = ('v', vbase); vbase += 4
            else: accreg[sl, r] = ('a', abase); abase += 4
    vfree = [('v', x) for x in range(vbase, 253, 4) if x not in ((244, 248, 252) if FUSED else (244, 248))]
    afree = [('a', x) for x in range(abase, 253, 4)]
    vlast = {r: -1 for r in vfree}
    frags = list(X.values()) + list(Hf.values()) + list(W.values()) + list(XS.values())
    frags.sort(key=lambda f: (f.first - (env('SEARLY', 30) if f.kind == 'S' else 0), {'W': 1, 'X': 0, 'H': 2, 'S': 3}[f.kind]))
    gap = [[] for _ in range(N + 1)]
    pending = list(frags); active = []; pre = []
    TEMP_T = marks['P2_1'] - env('TEMPE', 60)
    NTEMP = env('NTEMP', 4)
    reserved = vfree[-NTEMP:]
    def alloc(f):
        if f.kind in 'WS':
            if afree: return afree.pop(0)
            return None
        for r in vfree:
            if r in reserved and f.last >= TEMP_T: continue
            vfree.remove(r); return r
        return None
    def release(upto):
        for f in list(active):
            if f.last < upto:
                active.remove(f); (afree if f.reg[0] == 'a' else vfree).append(f.reg)
    while pending and len(pre) < env('NPRE', 16):
        f = pending.pop(0); f.reg = alloc(f); f.issue = -1; pre.append(f); active.append(f)
    lastload = -100
    for i in range(1, N):
        release(i - 1)
        pace = env('PACE0', PACE) if i < env('RAMP', 0) else PACE
        if pending and (i - lastload >= pace or pending[0].first - i < env('URG', 40)):
            f = pending[0]; r = alloc(f)
            if r is not None:
                f.reg = r; f.issue = i; active.append(f); pending.pop(0); gap[i].append(('load', f)); lastload = i
            elif f.first - i < 3: raise Exception("no register for %s at %d" % (f, i))
    assert not pending
    for f in frags:
        if f.reg[0] == 'v': vlast[f.reg] = max(vlast[f.reg], f.last)
    la = [f.first - f.issue for f in frags if f.issue > 0]
    sys.stderr.write("K2 lookahead (slots): min %d p10 %d median %d\n" % (min(la), np.percentile(la, 10), np.median(la)))
    TPF = env('TPF', 0); TP = env('TP', 6); TLEAD = env('TLEAD', 90); NT0 = env('NT0', 14)
    touches = []
    if TPF:
        cand = []
        for m in range(768 // 6):
            line = 6 * m + 3
            f = X[(6 * m // 8) // (NC * S), ((6 * m // 8) // S) % NC, (6 * m // 8) % S]
            cand.append((f.issue, 'X', m * 768))
        for m in range(672 // 5):
            fi = 5 * m // 8
            f = W[fi // (NC * 7), (fi // 7) % NC, fi % 7]
            cand.append((f.issue, 'W', m * 640))
        cand.sort()
        cand = [c for c in cand if c[0] > env('TSKIP', 0)]
        pre_t = cand[:NT0]; rest = cand[NT0:]
        touches = pre_t
        i = env('T0', 40)
        while rest and i < N:
            while rest and rest[0][0] - i < TLEAD: rest.pop(0)
            if not rest: break
            gap[i].append(('touch', rest.pop(0))); i += TP
        sys.stderr.write("K2 touches: %d in prologue, %d in loop\n" % (len(pre_t), sum(1 for g in gap for x in g if x[0] == 'touch')))
    cnt = [len(g) for g in gap]
    if env('PREDW', 1):
        order_ = pre + [x[1] for g in gap for x in g if x[0] == 'load']
        posn = {id(f): k for k, f in enumerate(order_)}
        done_ = -1; nw_ = 0
        for i, (a_, xk, w_) in enumerate(ops):
            ch_, c_, rho_ = xk
            xf_ = XS[xk] if (rho_ < 0 and (ch_, c_) in SHL) else X[ch_, c_, rho_ if rho_ >= 0 else rho_ + S]
            k = max(posn[id(xf_)], posn[id(w_)])
            if k > done_:
                while k + 1 < len(order_) and order_[k + 1].issue >= 0 and order_[k + 1].issue + WLAT <= i and order_[k + 1].issue < i: k += 1
                done_ = k; cnt[i] += 1; nw_ += 1
        sys.stderr.write("K2 predicted waits: %d\n" % nw_)
    tasks = []
    slot_now = [0]
    def prewait(rs):
        rs = set(rs); idx = None; cur = slot_now[0]
        for i, d in enumerate(E.vm):
            if d & rs: idx = i
        if idx is None: return
        while idx + 1 < len(E.vm):
            sl = [t[1] for t in E.vm[idx + 1] if t[0] == 'slot']
            if sl and sl[0] >= 0 and sl[0] + WLAT <= cur: idx += 1
            else: break
        E.wait(len(E.vm) - 1 - idx, None)
    def mk_shift(f, n):
        h = Hf[f.ch, f.c]
        ins = []
        if env('NODPP', 0): return [lambda: None]
        for d in range(4):
            def mv(d=d):
                r = f.reg[1] + d; prewait(V(r))
                va("v_mov_b32_dpp v%d, v%d row_shr:1 row_mask:0xf bank_mask:0xf" % (r, r), V(r), [], dpp=V(r))
            ins.append(mv)
        for d in range(4):
            def cm(d=d):
                r = f.reg[1] + d; hr = h.reg[1] + d; k = 6 - n
                prewait(V(hr))
                if k > 0: va("v_cndmask_b32_dpp v%d, v%d, v%d, vcc row_shl:%d row_mask:0xf bank_mask:0xf" % (r, hr, r, k), V(r), V(r), dpp=V(hr))
                else: va("v_cndmask_b32 v%d, v%d, v%d, vcc" % (r, hr, r), V(r), V(r) + V(hr))
            ins.append(cm)
        return ins
    for f, n, lo, hi in shifts:
        h = Hf[f.ch, f.c]
        lo2 = max(lo + 1, min(h.issue + env('HLAT', 60), hi - 20) if h.issue > 0 else 0)
        tasks.append(Task('sh', mk_shift(f, n), lo2, hi - 3))
    PL = 32768; STG = 3 * PL; LDS = STG + 4 * 16384
    tmp = [r[1] for r in reserved]
    late = sorted([r[1] for r, l in vlast.items() if r not in reserved and l < marks['F'] + 2])
    a0, a1 = 244, 248
    AT = 4
    V_WP, V_WR, V_IR, V_SW = a0, a0 + 1, a0 + 2, a0 + 3
    assert env('DST', 1)
    V_SW = 240
    V_SR, V_O0, V_O1, V_SH = a1, a1 + 1, a1 + 2, a1 + 3
    V_SR = 241
    sc = [236 + i for i in range(8)]
    PT = [tmp[0], tmp[1], tmp[2], tmp[3]]
    setup = []
    MK = 64 if STAMP else 70
    def S_(fn): setup.append(fn)
    t0, t1, t2, t3, t4, t5, t6, t7 = sc
    vv = lambda t, d, s_: S_(lambda: va(t, d, s_))
    ss = lambda t: S_(lambda: e(t))
    vv("v_and_b32 v%d, 15, v0" % t1, V(t1), V(0))
    vv("v_lshrrev_b32 v%d, 4, v0" % t2, V(t2), V(0))
    vv("v_lshlrev_b32 v%d, 10, v%d" % (t3, t2), V(t3), V(t2))
    vv("v_lshl_add_u32 v%d, v%d, 4, v%d" % (t3, t1, t3), V(t3), V(t1) + V(t3))
    ss("s_lshr_b32 s33, s24, 1"); ss("s_mul_i32 s33, s33, %d" % PL); ss("s_and_b32 s34, s24, 1"); ss("s_lshl_b32 s34, s34, 3"); ss("s_add_u32 s33, s33, s34")
    vv("v_add_u32 v%d, s33, v%d" % (V_WP, t3), V(V_WP), V(t3))
    vv("v_xor_b32 v%d, s24, v%d" % (t4, t2), V(t4), V(t2))
    vv("v_lshl_add_u32 v%d, v%d, 2, v%d" % (t4, t4, t3), V(t4), V(t4) + V(t3))
    vv("v_add_u32 v%d, %d, v%d" % (V_WR, 2 * PL, t4), V(V_WR), V(t4))
    vv("v_min_u32 v%d, 2, v%d" % (t3, t2), V(t3), V(t2))
    vv("v_lshlrev_b32 v%d, 15, v%d" % (t3, t3), V(t3), V(t3))
    vv("v_lshl_add_u32 v%d, v%d, 4, v%d" % (t3, t1, t3), V(t3), V(t1) + V(t3))
    ss("s_lshl_b32 s33, s24, 10")
    vv("v_add_u32 v%d, s33, v%d" % (V_IR, t3), V(V_IR), V(t3))
    ss("s_lshl_b32 s33, s24, 14"); ss("s_add_u32 s33, s33, %d" % STG)
    vv("v_and_b32 v%d, 15, v0" % t1, V(t1), V(0))
    vv("v_lshrrev_b32 v%d, 1, v%d" % (t3, t2), V(t3), V(t2))
    vv("v_lshl_add_u32 v%d, v%d, 1, v%d" % (t3, t1, t3), V(t3), V(t1) + V(t3))
    vv("v_bfe_u32 v%d, v%d, 2, 1" % (t4, t1), V(t4), V(t1))
    vv("v_xor_b32 v%d, v%d, v%d" % (t3, t3, t4), V(t3), V(t3) + V(t4))
    vv("v_and_b32 v%d, 1, v%d" % (t4, t2), V(t4), V(t2))
    vv("v_lshlrev_b32 v%d, %d, v%d" % (t4, 9 if env('B128', 1) else 3, t4), V(t4), V(t4))
    vv("v_lshl_add_u32 v%d, v%d, 4, v%d" % (t3, t3, t4), V(t3), V(t3) + V(t4))
    vv("v_add_u32 v%d, s33, v%d" % (V_SW, t3), V(V_SW), V(t3))
    vv("v_bfe_u32 v%d, v0, 3, 1" % t4, V(t4), V(0))
    vv("v_xor_b32 v%d, v0, v%d" % (t4, t4), V(t4), V(0) + V(t4))
    vv("v_lshl_add_u32 v%d, v%d, 4, s33" % (V_SR, t4), V(V_SR), V(t4))
    if env('DST', 1):
        vv("v_bfe_u32 v%d, v0, 4, 1" % t0, V(t0), V(0))
        vv("v_and_b32 v%d, 15, v0" % t1, V(t1), V(0))
        vv("v_lshrrev_b32 v%d, 5, v0" % t2, V(t2), V(0))
    else:
        vv("v_lshrrev_b32 v%d, 5, v0" % t0, V(t0), V(0))
        vv("v_bfe_u32 v%d, v0, 1, 4" % t1, V(t1), V(0))
        vv("v_and_b32 v%d, 1, v0" % t2, V(t2), V(0))
    ss("s_mov_b32 s38, 224"); ss("s_mov_b32 s35, 2260"); ss("s_mov_b32 s37, 192")
    for p in range(2):
        o = V_O0 + p
        ss("s_lshl_b32 s33, s27, 4"); ss("s_lshl_b32 s34, s24, 2"); ss("s_add_u32 s33, s33, s34"); ss("s_add_u32 s33, s33, %d" % (2 * p))
        vv("v_add_u32 v%d, s33, v%d" % (t3, t0), V(t3), V(t0))
        vv("v_mul_u32_u24 v%d, s35, v%d" % (t4, t3), V(t4), V(t3))
        vv("v_lshrrev_b32 v%d, 16, v%d" % (t4, t4), V(t4), V(t4))
        vv("v_mul_u32_u24 v%d, 29, v%d" % (t5, t4), V(t5), V(t4))
        vv("v_sub_u32 v%d, v%d, v%d" % (t5, t3, t5), V(t5), V(t3) + V(t5))
        vv("v_mul_u32_u24 v%d, 10, v%d" % (t6, t4), V(t6), V(t4))
        vv("v_add_u32 v%d, v%d, v%d" % (t6, t6, t1), V(t6), V(t6) + V(t1))
        vv("v_subrev_u32 v%d, 1, v%d" % (t7, t5), V(t7), V(t5))
        vv("v_mul_u32_u24 v%d, %d, v%d" % (t7, 8 * 224, t7), V(t7), V(t7))
        vv("v_add_u32 v%d, v%d, v%d" % (t7, t7, t6), V(t7), V(t7) + V(t6))
        vv("v_mul_lo_u32 v%d, v%d, s37" % (t7, t7), V(t7), V(t7))
        vv("v_lshl_add_u32 v%d, v%d, 4, v%d" % (t7, t2, t7), V(t7), V(t7) + V(t2))
        ss("s_lshl_b32 s34, s28, 5")
        vv("v_add_u32 v%d, s34, v%d" % (t7, t7), V(t7), V(t7))
        vv("v_cmp_ne_u32 s[%d:%d], 0, v%d" % (MK, MK + 1, t5), [], V(t5))
        vv("v_cmp_gt_u32 s[%d:%d], 10, v%d" % (MK + 2, MK + 3, t1), [], V(t1))
        vv("v_cmp_gt_u32 s[%d:%d], s38, v%d" % (MK + 4, MK + 5, t6), [], V(t6))
        vv("v_mov_b32 v%d, 0x7fffffff" % t3, V(t3), [])
        S_(lambda: E.nop(3))
        ss("s_and_b64 s[%d:%d], s[%d:%d], s[%d:%d]" % (MK, MK + 1, MK, MK + 1, MK + 2, MK + 3)); ss("s_and_b64 s[%d:%d], s[%d:%d], s[%d:%d]" % (MK, MK + 1, MK, MK + 1, MK + 4, MK + 5))
        S_(lambda: E.nop(1))
        vv("v_cndmask_b32 v%d, v%d, v%d, s[%d:%d]" % (o, t3, t7, MK, MK + 1), V(o), V(t3) + V(t7))
    ss("s_cmp_eq_u32 s27, 0"); ss("s_cselect_b32 s33, 0, %d" % XREG)
    vv("v_and_b32 v%d, 15, v0" % t3, V(t3), V(0))
    vv("v_add_u32 v%d, -1, v%d" % (t3, t3), V(t3), V(t3))
    vv("v_lshrrev_b32 v%d, 2, v%d" % (t4, t3), V(t4), V(t3))
    vv("v_lshlrev_b32 v%d, 8, v%d" % (t4, t4), V(t4), V(t4))
    vv("v_and_b32 v%d, 3, v%d" % (t3, t3), V(t3), V(t3))
    vv("v_lshl_add_u32 v%d, v%d, 4, v%d" % (t3, t3, t4), V(t3), V(t3) + V(t4))
    vv("v_lshrrev_b32 v%d, 4, v0" % t4, V(t4), V(0))
    vv("v_lshlrev_b32 v%d, 6, v%d" % (t4, t4), V(t4), V(t4))
    vv("v_add3_u32 v%d, v%d, v%d, s33" % (t3, t3, t4), V(t3), V(t3) + V(t4))
    vv("v_add_u32 v%d, 816, v%d" % (t4, t4), V(t4), V(t4))
    vv("v_cndmask_b32 v%d, v%d, v%d, vcc" % (V_SH, t4, t3), V(V_SH), V(t4) + V(t3))
    ss("s_mov_b32 s6, %d" % XBYTES); ss("s_mov_b32 s7, 0x00020000"); ss("s_and_b32 s5, s5, 0xffff")
    mreg = 64 if STAMP else 94
    ss("s_mov_b32 s%d, 0x03ff03ff" % mreg); ss("s_mov_b32 s%d, 0x03ff03ff" % (mreg + 1))
    T_setup = Task('setup', [], 0, 0); T_setup.done_at = 0
    T_pp = {}
    prev = T_setup
    for r in range(S - 1, -1, -1):
        rd = {}; cv = {}; wr = {}
        for j in range(4):
            t = PT[j]
            rd[j] = [(lambda t=t, sl=sl, ar=accreg[sl, r][1] + j: va("v_accvgpr_read_b32 v%d, a%d" % (t + sl, ar), V(t + sl), A(ar))) for sl in range(3)]
            cv[j] = [lambda t=t: va("v_cvt_pk_bf16_f32 v%d, v%d, v%d" % (t, t, t + 1), V(t), V(t, 2)), lambda t=t: va("v_cvt_pk_bf16_f32 v%d, v%d, 0" % (t + 1, t + 2), V(t + 1), V(t + 2))]
            wr[j] = [lambda t=t, j=j, r=r: E.dswrite("ds_write_b64 v%d, v[%d:%d] offset:%d" % (V_WP, t, t + 1, (r * 16 + j) * 256), V(t, 2), V(V_WP))]
        ins = rd[0] + rd[1] + cv[0] + rd[2] + wr[0] + cv[1] + rd[3] + wr[1] + cv[2] + cv[3] + wr[2] + wr[3]
        lo = max(acc_last[sl, r] for sl in range(3)) + 6
        T_pp[r] = Task('pp%d' % r, ins, lo, step_end[r] + 4, [prev]); prev = T_pp[r]; tasks.append(T_pp[r])
    RT = late[0:2]
    order = list(range(S - 1, -1, -1))
    T_rp = {}
    for si, r in enumerate(order):
        se = step_end[r]
        ins = []
        for j in range(4):
            t = RT[si % 2] + j
            r1 = accreg[3, r][1] + j; r2 = accreg[4, r][1] + j
            ins.append(lambda t=t, r1=r1, r2=r2: va("v_cvt_pk_bf16_f32 v%d, v%d, v%d" % (t, r1, r2), V(t), V(r1) + V(r2)))
        for j in range(4):
            t = RT[si % 2] + j
            ins.append(lambda t=t, j=j, r=r: E.dswrite("ds_write_b32 v%d, v%d offset:%d" % (V_WR, t, (r * 16 + j) * 256), V(t), V(V_WR), tok=('rp', r)))
        T_rp[r] = Task('rp%d' % r, ins, se + 4, se + 10, [T_pp[r]])
        tasks.append(T_rp[r])
    B128 = env('B128', 1)
    lateA = [x for x in late if x not in RT]
    def inv_seq(rows, AFp, DIp, OUTp):
        na, nd, no = len(AFp) // 4, len(DIp) // 4, len(OUTp) // 2
        def reads(si):
            r = rows[si]
            return [lambda a=a, r=r, f=AFp[4 * (si % na) + a]: E.dsread("ds_read_b128 v[%d:%d], v%d offset:%d" % (f, f + 3, V_IR, (r * 16 + a) * 256), V(f, 4), V(V_IR)) for a in range(4)]
        def mm(si):
            return [lambda a=a: E.mfma(('v', DIp[4 * (si % nd) + a]), ('v', AFp[4 * (si % na) + a]), ('v', AT), None) for a in range(4)]
        def cw(si):
            r = rows[si]; ins = []
            D = [DIp[4 * (si % nd) + a] for a in range(4)]
            if not B128:
                for a in range(4):
                    d = D[a]
                    ins.append(lambda d=d: va("v_cvt_pk_bf16_f32 v%d, v%d, v%d" % (d, d, d + 1), V(d), V(d, 2)))
                    ins.append(lambda d=d: va("v_cvt_pk_bf16_f32 v%d, v%d, v%d" % (d + 1, d + 2, d + 3), V(d + 1), V(d + 2, 2)))
            if B128:
                for p in range(2):
                    d0 = D[2 * p]
                    ins.append(lambda d0=d0: va("v_cvt_pk_bf16_f32 v%d, v%d, v%d" % (d0, d0, d0 + 1), V(d0), V(d0, 2)))
                    ins.append(lambda d0=d0: va("v_cvt_pk_bf16_f32 v%d, v%d, v%d" % (d0 + 1, d0 + 2, d0 + 3), V(d0 + 1), V(d0 + 2, 2)))
                for p in range(2):
                    d0, d1 = D[2 * p], D[2 * p + 1]
                    ins.append(lambda d0=d0, d1=d1: va("v_cvt_pk_bf16_f32 v%d, v%d, v%d" % (d0 + 2, d1, d1 + 1), V(d0 + 2), V(d1, 2)))
                    ins.append(lambda d0=d0, d1=d1: va("v_cvt_pk_bf16_f32 v%d, v%d, v%d" % (d0 + 3, d1 + 2, d1 + 3), V(d0 + 3), V(d1 + 2, 2)))
                for p in range(2):
                    d0 = D[2 * p]
                    ins.append(lambda d0=d0: va("v_permlane16_swap_b32 v%d, v%d" % (d0, d0 + 2), V(d0) + V(d0 + 2), V(d0) + V(d0 + 2), perm=True))
                    ins.append(lambda d0=d0: va("v_permlane16_swap_b32 v%d, v%d" % (d0 + 1, d0 + 3), V(d0 + 1) + V(d0 + 3), V(d0 + 1) + V(d0 + 3), perm=True))
                if env('DST', 1):
                    def both(r=r, D=D):
                        e("s_mov_b32 s33, %d" % (r * ROWB))
                        E._need(V(D[0], 4) + V(D[2], 4))
                        E._pad(max(E._dist(V(D[0], 4) + V(D[2], 4), {'mfma': 8}), 0))
                        if env('XM', 1): e("s_mov_b64 exec, s[94:95]" if not STAMP else "s_mov_b64 exec, s[64:65]")
                        for p in range(2):
                            d0 = D[2 * p]
                            if env('NOOUT', 0) == 1 or (env('NOOUT', 0) == 2 and p): continue
                            E.vstore("buffer_store_dwordx4 v[%d:%d], v%d, s[4:7], s33 offen%s" % (d0, d0 + 3, V_O0 + p, env('OSF', '')), V(d0, 4), V(V_O0 + p))
                        if env('XM', 1): e("s_mov_b64 exec, -1")
                        if str(r) in env('WB', '').split(','):
                            e("s_lshl_b32 s34, s2, 2"); e("s_add_u32 s34, s34, s24")
                            e("s_cmp_ge_u32 s34, %d" % env('WBN', 32)); e("s_cbranch_scc1 K2_nowb%d" % r)
                            e("s_cmp_lg_u32 s24, 0"); e("s_cbranch_scc1 K2_nowb%d" % r)
                            e("buffer_wbl2 sc1")
                            E.label("K2_nowb%d" % r)
                    ins.append(both)
                    return ins
                for p in range(2):
                    d0 = D[2 * p]
                    ins.append(lambda d0=d0, p=p, r=r: E.dswrite("ds_write_b128 v%d, v[%d:%d] offset:%d" % (V_SW, d0, d0 + 3, (r * 4 + 2 * p) * 512), V(d0, 4), V(V_SW)))
            else:
                for a in range(4):
                    d = D[a]
                    ins.append(lambda d=d, a=a, r=r: E.dswrite("ds_write_b64 v%d, v[%d:%d] offset:%d" % (V_SW, d, d + 1, (r * 4 + a) * 512), V(d, 2), V(V_SW)))
            for p in range(2):
                o = OUTp[2 * (si % no) + p]
                ins.append(lambda o=o, p=p, r=r: E.dsread("ds_read_b128 v[%d:%d], v%d offset:%d" % (o, o + 3, V_SR, (r * 4 + 2 * p) * 512), V(o, 4), V(V_SR)))
            return ins
        def st(si):
            if env('DST', 1): return []
            r = rows[si]; ins = [lambda r=r: e("s_mov_b32 s33, %d" % (r * ROWB))]
            for p in range(2):
                o = OUTp[2 * (si % no) + p]
                if env('NOOUT', 0): continue
                ins.append(lambda o=o, p=p: E.vstore("buffer_store_dwordx4 v[%d:%d], v%d, s[4:7], s33 offen%s" % (o, o + 3, V_O0 + p, env('OSF', '')), V(o, 4), V(V_O0 + p)))
            return ins
        n = len(rows); seq = []
        head = []
        for si in range(min(na, n)): head += reads(si)
        for si in range(n + 2):
            if si < n: seq += mm(si)
            if si + na < n: seq += reads(si + na)
            if no == 1 and 0 <= si - 2 < n: seq += st(si - 2)
            if 0 <= si - 1 < n: seq += cw(si - 1)
            if no > 1 and 0 <= si - 2 < n: seq += st(si - 2)
        return head, seq
    NA = env('NA', 4 if FIN == 1 else 7)
    rowsA = order[:NA]; rowsB = order[NA:]
    T_A = None
    if NA and FIN == 1:
        assert len(lateA) >= 16, lateA
        hA, sA = inv_seq(rowsA, lateA[0:8], lateA[8:16], [lateA[16], lateA[17]] if len(lateA) >= 18 else [0, 0])
        def barA(): E._need([('rp', rowsA[-1])]); E.barrier()
        T_barA = Task('barA', [barA], 0, step_end[rowsA[-1]] + 12, [(T_rp[rowsA[-1]], env('LBA', 4))])
        T_A = Task('invA', hA + sA, 0, N + 500, [T_barA])
        tasks += [T_barA, T_A]
    if NA and FIN == 2:
        assert len(lateA) >= 16, lateA
        AF2 = lateA[0:8]; DI2 = lateA[8:16]
        L1, L2, L3 = env('L1', 4), env('L2', 7), env('L3', 3)
        pb = None; pm = {}; pc = {}
        for si, r in enumerate(rowsA):
            se = step_end[r]
            def bar(r=r):
                if env('NOBAR', 0) in (1, 2):
                    if env('NOBAR', 0) == 2: E._need([('rp', r)])
                    return
                E._need([('rp', r)]); E.barrier()
            tb_ = Task('bar%d' % r, [bar], 0, se + 12, [(T_rp[r], L1)] + ([pb] if pb else []))
            pb = tb_
            af = AF2[4 * (si % 2):4 * (si % 2) + 4]; di = DI2[4 * (si % 2):4 * (si % 2) + 4]
            h_, s_ = inv_seq([r], af, di, [0, 0])
            mms, rest = s_[:4], s_[4:]
            t1_ = Task('rd%d' % r, h_, 0, se + 16, [tb_] + ([pm[si - 2]] if si >= 2 else []))
            t2_ = Task('mm%d' % r, mms, 0, se + 26, [(t1_, L2)] + ([pc[si - 2]] if si >= 2 else []))
            t3_ = Task('cw%d' % r, rest, 0, se + 40, [(t2_, L3)])
            pm[si] = t2_; pc[si] = t3_
            tasks += [tb_, t1_, t2_, t3_]
    def final():
        used = set(lateA[:18]) if NA else set()
        pool = sorted(set([accreg[sl, r][1] for sl in (3, 4) for r in rowsA] + [r_[1] for r_ in vlast.keys() if r_ not in reserved]) - set(RT) - used)
        nb = len(rowsB)
        hB, sB = inv_seq(rowsB, pool[0:4 * min(nb, 4)], pool[16:24], pool[24:28])
        E.wait(None, 0)
        if STAMP == 3: e("s_memtime s[72:73]")
        E.barrier()
        if STAMP == 3: e("s_memtime s[74:75]")
        for f in hB: f()
        if T_A is not None:
            for f in T_A.rest: f()
        for x in deferred:
            for f in x: f()
        if STAMP == 3: e("s_memtime s[84:85]")
        for k_, f in enumerate(sB):
            f()
            if STAMP == 3 and k_ == len(sB) // 2: e("s_memtime s[86:87]")
    deferred = []
    def budget(i):
        if i >= marks['F']: return env('BF', 3)
        if i >= TEMP_T: return env('BP', 2)
        return 1
    MAXF = env('MAXF', 2)
    delay = {}
    for i in range(1, N + 1):
        k = 0
        while True:
            avail = [x for x in tasks if x.ins and (x.lo <= i or i == N) and all(d.done_at is not None and (i == N or i >= d.done_at + lg) for d, lg in x.deps)]
            if not avail: break
            avail.sort(key=lambda x: x.hi)
            if i < N:
                b = budget(i) - cnt[i]
                urgent = False
                if b <= k:
                    if k >= max(MAXF, budget(i)) - cnt[i]: break
                    tot = 0
                    for y in sorted([x for x in tasks if x.ins and x.lo <= i + 40 and x.name == 'sh'], key=lambda x: x.hi):
                        tot += len(y.ins)
                        cap = sum(1 for g in range(i + 1, min(y.hi + 1, N)) if cnt[g] == 0)
                        if tot - 1 > cap * env('URGF', 0.9): urgent = True; break
                    if not urgent: break
            x = avail[0]
            if i == N and x.name == 'invA':
                x.rest = list(x.ins); x.ins = []; x.done_at = i; continue
            if i == N and x.name[:2] in ('mm', 'cw'):
                deferred.append(list(x.ins)); x.ins = []; x.done_at = i; continue
            if x.name == 'sh': assert i <= x.hi, ("shift late", i, x.hi)
            gap[i].append(('ins', x.ins.pop(0), x.name)); k += 1
            if not x.ins: x.done_at = i
        cnt[i] += k
    if T_A is not None and not hasattr(T_A, 'rest'): T_A.rest = []
    assert all(not x.ins for x in tasks), [x.name for x in tasks if x.ins]
    sys.stderr.write("K2 tail after last MFMA: %d instr; done: %s\n" % (len(gap[N]), " ".join("%s@%d" % (x.name, x.done_at - marks['F']) for x in tasks if x.name[:2] in ('pp', 'ba', 'cw'))))
    KN = "FU" if FUSED else "K2"
    FST = env('FSTAMP', 0)
    fs_regs = {1: 88, 2: 90, 3: 92, 4: 96, 5: 98, 6: 82}
    def fs2(n): e("s_memrealtime s[%d:%d]" % (fs_regs[n], fs_regs[n] + 1))
    G['fs2'] = fs2
    def fstamp(n):
        if env('FS2', 0) and n in (3, 4, 5): return
        if FST and n in fs_regs: e("s_memrealtime s[%d:%d]" % (fs_regs[n], fs_regs[n] + 1))
    if FUSED:
        import pagen
        G['fstamp'] = (lambda n: fstamp(n) if n < 3 else None)
        e("s_load_dwordx4 s[84:87], s[0:1], 0" if not FST else "s_load_dwordx4 s[84:87], s[0:1], 0")
        e("s_load_dwordx4 s[4:7], s[0:1], 16")
        e("s_load_dwordx2 s[8:9], s[0:1], 32")
        if FST: e("s_memrealtime s[100:101]")
        e("s_getpc_b64 s[10:11]")
        E.label("FU_pc")
        e("s_cmp_ge_u32 s2, 256"); e("s_cbranch_scc1 K2_end")
        va("v_lshrrev_b32 v3, 6, v0", V(3), V(0))
        va("v_and_b32 v0, 63, v0", V(0), V(0))
        E.nop(1)
        e("v_readfirstlane_b32 s24, v3")
        pagen.phase_a(E, G)
        E.label("FU_pb")
        E.vm = []; E.lg = []; E.w = {}; E.mc = {}; E.sd = {}
        e("s_waitcnt lgkmcnt(0)")
        e("s_mov_b32 s88, s60"); e("s_mov_b32 s89, s61")
        e("s_mov_b32 s84, s8"); e("s_and_b32 s85, s9, 0xffff"); e("s_mov_b32 s86, %d" % XF_SIZE); e("s_mov_b32 s87, 0x00020000")
        if env('CPF', 1):
            e("s_cmp_ge_u32 s2, 8"); e("s_cbranch_scc1 K2_nocpf")
            e("s_lshl_b32 s33, s24, 13")
            va("v_lshlrev_b32 v4, 7, v0", V(4), V(0))
            va("v_add_u32 v4, s33, v4", V(4), V(4))
            va("v_min_u32 v4, K2_code_end-FU_pc-4, v4", V(4), V(4))
            E.vload("global_load_dword v72, v4, s[10:11]", V(72), V(4))
            E.label("K2_nocpf")
            E.vm = []
    else:
        e("s_load_dwordx2 s[8:9], s[0:1], 32")
        e("s_load_dwordx2 s[4:5], s[0:1], 16")
        if STAMP: e("s_memtime s[70:71]"); e("s_memrealtime s[80:81]")
        e("s_getpc_b64 s[10:11]")
        E.label("K2_pc")
        e("s_cmp_ge_u32 s2, 256"); e("s_cbranch_scc1 K2_end")
        va("v_lshrrev_b32 v3, 6, v0", V(3), V(0))
        if env('CPF', 1):
            va("v_lshlrev_b32 v4, 7, v0", V(4), V(0))
            va("v_min_u32 v4, K2_code_end-K2_pc-4, v4", V(4), V(4))
        va("v_and_b32 v0, 63, v0", V(0), V(0))
        E.nop(1)
        e("v_readfirstlane_b32 s24, v3")
        if env('CPF', 1):
            e("s_cmp_ge_u32 s2, 8"); e("s_cbranch_scc1 K2_nocpf")
            E.vload("global_load_dword v255, v4, s[10:11]", V(255), V(4))
            E.label("K2_nocpf")
    FL_OFF = G.get('FL_OFF', 0)
    nsig = [0]
    def signal12(plane=6144, tv=(10, 11), srcs=(78, 79)):
        for o in srcs:
            e("s_cmp_eq_u32 s%d, 0" % o); e("s_cbranch_scc1 FU_nosig%d_%d" % (nsig[0], o))
            e("s_add_u32 s33, s%d, %d" % (o, plane))
            e("v_mov_b32 v%d, s33" % tv[0]); e("v_mov_b32 v%d, s82" % tv[1])
            e("s_mov_b64 exec, 1")
            e("global_atomic_swap v%d, v%d, s[8:9] sc1" % tv)
            e("s_mov_b64 exec, -1")
            E.label("FU_nosig%d_%d" % (nsig[0], o))
        nsig[0] += 1
    def signal1(tv):
        e("s_cmp_eq_u32 s80, 3"); e("s_cselect_b32 s80, 0, s78")
        signal12(6144, tv, (80, 81))
    e("s_and_b32 s25, s2, 7"); e("s_lshr_b32 s26, s2, 3")
    e("s_mul_i32 s27, s26, 43"); e("s_lshr_b32 s27, s27, 8"); e("s_mul_i32 s28, s27, 6"); e("s_sub_u32 s28, s26, s28")
    e("s_lshl_b32 s27, s27, 3"); e("s_add_u32 s27, s27, s25")
    e("s_cmp_lt_u32 s26, 30"); e("s_cbranch_scc1 K2_map")
    e("s_lshl_b32 s29, s25, 1"); e("s_add_u32 s29, s29, s26"); e("s_sub_u32 s29, s29, 30")
    e("s_mul_i32 s27, s29, 43"); e("s_lshr_b32 s27, s27, 8"); e("s_mul_i32 s28, s27, 6"); e("s_sub_u32 s28, s29, s28"); e("s_add_u32 s27, s27, 40")
    E.label("K2_map")
    e("s_cmp_ge_u32 s27, %d" % NREG); e("s_cbranch_scc1 %s" % ("FU_idle" if FUSED else "K2_end"))
    va("v_lshlrev_b32 v%d, 4, v0" % V_L16, V(V_L16), V(0))
    va("v_and_b32 v3, 15, v0", V(3), V(0))
    va("v_cmp_ne_u32 vcc, 0, v3", [], V(3))
    va("v_lshrrev_b32 v4, 4, v0", V(4), V(0))
    va("v_lshlrev_b32 v4, 6, v4", V(4), V(4))
    va("v_lshrrev_b32 v5, 2, v3", V(5), V(3))
    va("v_lshl_add_u32 v5, v5, 8, v4", V(5), V(5) + V(4))
    va("v_and_b32 v6, 3, v0", V(6), V(0))
    va("v_lshl_add_u32 v%d, v6, 4, v5" % V_FR, V(V_FR), V(5) + V(6))
    va("v_min_u32 v3, 5, v3", V(3), V(3))
    va("v_add_u32 v3, %d, v3" % (S - 6), V(3), V(3))
    va("v_lshlrev_b32 v3, 10, v3", V(3), V(3))
    va("v_add3_u32 v%d, v3, v4, s%d" % (V_HOFF, 33) if False else "v_add_u32 v3, v3, v4", V(3), V(3) + V(4))
    va("v_add_u32 v%d, 816, v3" % V_HOFF, V(V_HOFF), V(3))
    e("s_lshl_b32 s29, s27, 2"); e("s_add_u32 s29, s29, s24"); e("s_mul_i32 s29, s29, %d" % XW)
    e("s_max_u32 s30, s27, 1"); e("s_sub_u32 s30, s30, 1"); e("s_lshl_b32 s30, s30, 2"); e("s_add_u32 s30, s30, s24"); e("s_mul_i32 s30, s30, %d" % XW)
    e("s_lshl_b32 s31, s28, 2"); e("s_add_u32 s31, s31, s24"); e("s_mul_i32 s31, s31, %d" % WW); e("s_add_u32 s31, s31, %d" % WF_OFF)
    ROT = env('ROT', 0)
    if ROT:
        e("s_lshr_b32 s33, s27, 3"); e("s_add_u32 s33, s33, s28")
        if ROT == 2:
            e("s_and_b32 s32, s33, 1"); e("s_xor_b32 s36, s32, 1"); e("s_mov_b32 s39, 2")
        else:
            e("s_mul_i32 s34, s33, 86"); e("s_lshr_b32 s34, s34, 8"); e("s_mul_i32 s34, s34, 3"); e("s_sub_u32 s32, s33, s34")
            e("s_add_u32 s36, s32, 1"); e("s_cmp_eq_u32 s36, 3"); e("s_cselect_b32 s36, 0, s36")
            e("s_add_u32 s39, s36, 1"); e("s_cmp_eq_u32 s39, 3"); e("s_cselect_b32 s39, 0, s39")
    else:
        e("s_mov_b32 s32, 0"); e("s_mov_b32 s36, 1"); e("s_mov_b32 s39, 2")
    SRD = {'X': [12, 40, 44], 'W': [16, 48, 52], 'H': [20, 56, 60]}
    CH = [32, 36, 39]
    def srd_off(kind, ch):
        base = {'X': 29, 'W': 31, 'H': 30}[kind]; stride = {'X': 32768, 'W': 28672, 'H': 32768}[kind]
        sr = SRD[kind][ch]
        e("s_mul_i32 s%d, s%d, %d" % (sr + 2, CH[ch], stride)); e("s_add_u32 s%d, s%d, s%d" % (sr + 2, sr + 2, base))
    def srd_fin(kind, ch):
        sr = SRD[kind][ch]; sz = {'X': 32768, 'W': 28672, 'H': XREG + 32768}[kind]
        e("s_add_u32 s%d, s8, s%d" % (sr, sr + 2)); e("s_addc_u32 s%d, s9, 0" % (sr + 1)); e("s_and_b32 s%d, s%d, 0xffff" % (sr + 1, sr + 1))
        e("s_mov_b32 s%d, %d" % (sr + 2, sz)); e("s_mov_b32 s%d, 0x00020000" % (sr + 3))
    for kind in 'XW': srd_off(kind, 0)
    if not FUSED: e("s_waitcnt lgkmcnt(0)")
    for kind in 'XW': srd_fin(kind, 0)
    CST = [None, 25, 26, 64, 65, 66, 67, 68] if not STAMP else [None, 25, 26, 96, 97, 98, 99, 100]
    need0 = sorted(set((f.off % (32768 if f.kind != 'W' else 28672)) // 4096 for f in pre) - {0})
    for j in need0: e("s_mov_b32 s%d, %d" % (CST[j], j * 4096))
    def late_srds():
        for j in range(1, 8):
            if j not in need0: e("s_mov_b32 s%d, %d" % (CST[j], j * 4096))
        for kind, ch in [('H', 0), ('X', 1), ('W', 1), ('H', 1), ('X', 2), ('W', 2), ('H', 2)]:
            srd_off(kind, ch); srd_fin(kind, ch)
    def load(f, slot):
        if slot > 100 and ((env('SKIPW', 0) and f.kind == 'W') or (env('SKIPX', 0) and f.kind != 'W')): return
        stride = 28672 if f.kind == 'W' else 32768
        off = f.off % stride
        assert f.off // stride == f.ch
        so = off // 4096; io = off % 4096
        sreg = "0" if so == 0 else "s%d" % CST[so]
        kind = {'X': 'X', 'W': 'W', 'H': 'H', 'S': 'H'}[f.kind]
        sr = SRD[kind][f.ch]
        vo = {'X': V_FR, 'W': V_L16, 'H': V_HOFF, 'S': V_SH}[f.kind]
        E.vload("buffer_load_dwordx4 %s, v%d, s[%d:%d], %s offen offset:%d%s" % (rn(f.reg), vo, sr, sr + 3, sreg, io, env('LDW', ' sc1') if f.kind == 'W' else env('LDX', ' sc1')), regs(f.reg), V(vo), tok=('slot', slot))
    assert all(f.kind in 'XW' and f.ch == 0 for f in pre), pre
    e("s_add_u32 s10, s10, K2_at-%s_pc" % KN); e("s_addc_u32 s11, s11, 0")
    e("s_lshl_b32 s33, s24, 10")
    va("v_add_u32 v3, s33, v%d" % V_L16, V(3), V(V_L16))
    def touch(c): raise Exception('touch disabled')
    NP1 = env('NP1', 12)
    SPIN = env('SPIN', 400000)
    def poll_loads(phase, raw=False):
        ld = (lambda t, d, a: e(t)) if raw else (lambda t, d, a: E.vload(t, V(d), V(a), tok=('slot', slot_now[0])))
        if phase == 0:
            ld("global_load_dword v3, v252, s[8:9] sc1", 3, 252)
            ld("global_load_dword v8, v255, s[8:9] sc1", 8, 255)
        else:
            if raw: e("v_add_u32 v%d, %d, v252" % (252 + phase, 6144 if phase == 1 else 20480))
            ld("global_load_dword v3, v%d, s[8:9] sc1" % (252 + phase), 3, 252 + phase)
            ld("global_load_dword v%d, v255, s[8:9] offset:%d sc1" % (252 + phase, 256 * phase), 252 + phase, 255)
    def poll_test(phase, lab, raw=False):
        regs_ = [3, 8] if phase == 0 else [3, 252 + phase]
        for k_, r_ in enumerate(regs_):
            t = "v_cmp_ne_u32 s[%d:%d], s82, v%d" % (72 + 2 * k_, 73 + 2 * k_, r_)
            if raw: e(t)
            else: va(t, [], V(r_))
        e("s_nop 4")
        e("s_or_b64 s[72:73], s[72:73], s[74:75]")
        e("s_cmp_lg_u64 s[72:73], 0")
        e("s_cbranch_scc1 %s" % lab)
    if FUSED:
        E.vload("global_load_dwordx4 v[4:7], v3, s[10:11]", V(4, 4), V(3), tok=('slot', -1))
        late_srds()
        for fn in setup: fn()
        e("s_lshl_b32 s33, s27, 7"); e("s_max_u32 s34, s27, 1"); e("s_sub_u32 s34, s34, 1"); e("s_lshl_b32 s34, s34, 7")
        va("v_mov_b32 v252, s33", V(252), []); va("v_mov_b32 v253, s34", V(253), [])
        va("v_cmp_gt_u32 s[72:73], 32, v0", [], V(0)); E.nop(2)
        va("v_cndmask_b32 v252, v253, v252, s[72:73]", V(252), V(252) + V(253))
        va("v_and_b32 v253, 31, v0", V(253), V(0))
        va("v_lshl_add_u32 v252, v253, 2, v252", V(252), V(252) + V(253))
        va("v_add_u32 v252, %d, v252" % FL_OFF, V(252), V(252))
        va("v_add_u32 v253, 6144, v252", V(253), V(252))
        va("v_add_u32 v254, 20480, v252", V(254), V(252))
        va("v_min_u32 v255, 55, v0", V(255), V(0))
        va("v_lshlrev_b32 v255, 2, v255", V(255), V(255))
        e("s_and_b32 s33, s2, 7"); e("s_lshl_b32 s33, s33, 10"); e("s_add_u32 s33, s33, %d" % (FL_OFF + 12288))
        va("v_add_u32 v255, s33, v255", V(255), V(255))
        e("s_mov_b32 s33, 0")
        E.wait(0, None)
        fstamp(3)
        e("s_cmp_lg_u32 s24, 3"); e("s_cbranch_scc1 FU_sig")
        poll_loads(0, raw=True)
        e("s_waitcnt vmcnt(0)")
        poll_test(0, "FU_poll0_again", raw=True)
        E.label("FU_poll0_ok")
        E.label("FU_sig")
        signal1((12, 13))
        E.barrier()
        fstamp(4)
        for f in pre: load(f, -1)
    else:
        for f in pre[:NP1]: load(f, -1)
        late_srds()
        for fn in setup: fn()
        for f in pre[NP1:]: load(f, -1)
        E.vload("global_load_dwordx4 v[4:7], v3, s[10:11]", V(4, 4), V(3), tok=('slot', -1))
    if STAMP and STAMP != 3: e("s_memtime s[72:73]")
    if FUSED:
        for ph in (1, 2):
            first = min(f.issue for f in frags if f.ch >= ph)
            mp2 = first - 1; mp1 = max(1, mp2 - env('MPL', 80))
            def p_issue(ph=ph): poll_loads(ph)
            def p_check(ph=ph):
                E._need(V(3) + V(252 + ph))
                poll_test(ph, "FU_poll%d_again" % ph)
                E.label("FU_poll%d_ok" % ph)
                E.barrier()
            gap[mp1].append(('ins', p_issue, 'poll')); gap[mp2].insert(0, ('ins', p_check, 'poll'))
            sys.stderr.write("fused: poll %d issued at %d, checked at %d\n" % (ph, mp1, mp2))
        D0 = env('DEF0', 110); DS_ = env('DEFS', 4)
        DR = [40, 44, 48, 52]
        seq = []
        for n_, (task, i) in enumerate([(t_, i_) for t_ in range(2) for i_ in range(4)]):
            r = DR[n_ % 4]
            def rd(r=r, task=task, i=i): E.dsread("ds_read_b128 v[%d:%d], v%d offset:%d" % (r, r + 3, 16 + i, task * 12352 + 768 * i + 128), V(r, 4), V(16 + i))
            def st_(r=r, task=task, i=i):
                e("s_add_u32 s33, s%d, %d" % (88 + task, i * XW + 2 * 32768))
                E.vstore("buffer_store_dwordx4 v[%d:%d], v11, s[84:87], s33 offen sc1" % (r, r + 3), V(r, 4), V(11), tok=('def2',))
            gap[D0 + n_ * DS_].append(('ins', rd, 'def')); gap[D0 + n_ * DS_ + 10].append(('ins', st_, 'def'))
        def sig2():
            E._need([('def2',)])
            signal12(20480, (12, 13))
        gap[D0 + 7 * DS_ + 10 + env('DEFW', 80)].append(('ins', sig2, 'def'))
    started = set()
    for i in range(N + 1):
        slot_now[0] = i
        if i == N and STAMP: e("s_memtime s[76:77]"); e("s_memrealtime s[82:83]")
        for x in gap[i]:
            if x[0] == 'load': load(x[1], i)
            elif x[0] == 'touch': touch(x[1])
            else: x[1]()
        if i == N:
            final(); break
        a, (ch, c, rho), w = ops[i]
        xf = XS[ch, c, rho] if (rho < 0 and (ch, c) in SHL) else X[ch, c, rho if rho >= 0 else rho + S]
        prewait(regs(xf.reg) + regs(w.reg))
        if STAMP:
            if i == 0 and STAMP != 3: e("s_memtime s[74:75]")
            if i == 0: e("s_memrealtime s[88:89]")
            m1, m2 = (N // 3, 2 * N // 3) if STAMP == 1 else (env('M1', 0), env('M2', 0))
            if STAMP != 3 and i == m1: e("s_memtime s[84:85]"); e("s_memrealtime s[90:91]")
            if STAMP != 3 and i == m2: e("s_memtime s[86:87]"); e("s_memrealtime s[92:93]")
        if i == 0: fstamp(5)
        E.mfma(accreg[a], xf.reg, w.reg, accreg[a] if a in started else None)
        started.add(a)
    if STAMP:
        e("s_memtime s[94:95]"); e("s_memrealtime s[66:67]"); e("s_waitcnt lgkmcnt(0)")
        e("s_add_u32 s4, s8, %d" % ST_OFF); e("s_addc_u32 s5, s9, 0"); e("s_and_b32 s5, s5, 0xffff"); e("s_mov_b32 s6, %d" % (256 * 4 * 64))
        e("s_lshl_b32 s33, s2, 2"); e("s_add_u32 s33, s33, s24"); e("s_lshl_b32 s33, s33, 6")
        for k2, sr in enumerate((70, 72, 74, 76, 80, 82, 84, 86, 88, 90, 92, 94, 66)):
            e("v_mov_b32 v6, s%d" % sr); e("v_mov_b32 v5, %d" % (4 * k2)); e("s_mov_b64 exec, 1")
            e("buffer_store_dword v6, v5, s[4:7], s33 offen"); e("s_mov_b64 exec, -1")
    if FST:
        fstamp(6); e("s_waitcnt lgkmcnt(0)")
        e("s_add_u32 s4, s8, %d" % ST_OFF); e("s_addc_u32 s5, s9, 0"); e("s_and_b32 s5, s5, 0xffff"); e("s_mov_b32 s6, %d" % (256 * 4 * 64)); e("s_mov_b32 s7, 0x00020000")
        e("s_lshl_b32 s33, s2, 2"); e("s_add_u32 s33, s33, s24"); e("s_lshl_b32 s33, s33, 6")
        for k2, sr in enumerate([100] + [fs_regs[k_] for k_ in range(1, 7)]):
            e("v_mov_b32 v6, s%d" % sr); e("v_mov_b32 v5, %d" % (4 * k2)); e("s_mov_b64 exec, 1")
            e("buffer_store_dword v6, v5, s[4:7], s33 offen"); e("s_mov_b64 exec, -1")
    E.label("K2_end")
    e("s_endpgm")
    if FUSED:
        E.label("FU_idle")
        for task in range(2):
            for i in range(4):
                r = 72 + 16 * task + 4 * i
                e("ds_read_b128 v[%d:%d], v%d offset:%d" % (r, r + 3, 16 + i, task * 12352 + 768 * i + 128))
        e("s_waitcnt lgkmcnt(0)")
        for task in range(2):
            for i in range(4):
                r = 72 + 16 * task + 4 * i
                e("s_add_u32 s33, s%d, %d" % (88 + task, i * XW + 2 * 32768))
                e("buffer_store_dwordx4 v[%d:%d], v11, s[84:87], s33 offen sc1" % (r, r + 3))
        e("s_waitcnt vmcnt(0)")
        signal1((12, 13))
        signal12(20480)
        e("s_endpgm")
        for n_ in range(3):
            E.label("FU_poll%d_again" % n_)
            e("s_mov_b32 s34, 0")
            E.label("FU_poll%d_loop" % n_)
            e("s_add_u32 s34, s34, 1"); e("s_cmp_ge_u32 s34, %d" % SPIN); e("s_cbranch_scc1 FU_poll%d_ok" % n_)
            e("s_sleep %d" % env('PSL', 16))
            poll_loads(n_, raw=True); e("s_waitcnt vmcnt(0)")
            poll_test(n_, "FU_poll%d_loop" % n_, raw=True)
            e("s_branch FU_poll%d_ok" % n_)
        pagen.tables(E, G)
    tb = np.zeros((4, 64, 8), dtype=np.float64)
    for v in range(4):
        for l in range(64):
            n, kg = l % 16, l // 16
            if n >= cfg.m: continue
            if kg < 2:
                for ww in range(2):
                    for sl in range(3): tb[v, l, 4 * ww + sl] = cfg.ATs[2 * kg + ww, sl, n]
            elif kg == 2:
                for p in range(4):
                    ww = p ^ v
                    tb[v, l, 2 * p] = cfg.ATs[ww, 3, n]; tb[v, l, 2 * p + 1] = cfg.ATs[ww, 4, n]
    E.raw(".p2align 8"); E.label("K2_at"); E.raw(G['table'](bf16bits(tb).reshape(-1)))
    E.label("K2_code_end")
    sys.stderr.write("K2: %d MFMA main, %d instr, %d waits, %d nops\n" % (N, E.ninst, E.nwait, E.nnop))
    name = "standalone__fft_conv__vision_kernel" if FUSED else "k2_kernel"
    return G['head'](name) + E.text() + G['KD'] % (name, 512, 102, 256), LDS
```

```python
import numpy as np
from emit import *
from consts import bf16bits, bf16r

WLDS = 27008
SL1 = 12352
KS = 2080

def phase_a(E, G):
    env = G['env']; cfg = G['cfg']
    XW, XREG, XF_SIZE, WF_OFF, WF_SIZE, XBYTES, WBYTES, ROWB = [G[k] for k in 'XW XREG XF_SIZE WF_OFF WF_SIZE XBYTES WBYTES ROWB'.split()]
    SF = env('K1SF', ' sc1')
    e = E.salu
    va = lambda t, d, s_, **kw: E.valu(t, d, s_, **kw)
    st = G.get('fstamp', lambda n: None)
    e("s_and_b32 s20, s2, 7")
    e("s_lshr_b32 s21, s2, 3"); e("s_lshl_b32 s21, s21, 2"); e("s_add_u32 s21, s21, s24")
    e("s_lshr_b32 s83, s2, 3"); e("s_lshl_b32 s83, s83, 1"); e("s_add_u32 s83, s83, s24"); e("s_cmp_lt_u32 s24, 2"); e("s_cselect_b32 s83, s83, 64")
    e("s_add_u32 s22, s83, 128"); e("s_min_u32 s22, s22, 167")
    e("s_mov_b32 s80, 0")
    e("s_cmp_lt_u32 s24, 2"); e("s_cbranch_scc1 FA_noas")
    e("s_lshr_b32 s57, s2, 3"); e("s_lshl_b32 s58, s57, 1"); e("s_add_u32 s58, s58, s24"); e("s_sub_u32 s58, s58, 2")
    e("s_cmp_ge_u32 s58, 61"); e("s_cbranch_scc1 FA_noas")
    e("s_mov_b32 s80, 1")
    e("s_add_u32 s22, s58, 128"); e("s_mov_b32 s81, %d" % (SL1 - 2 * WLDS))
    e("s_cmp_lt_u32 s58, 40"); e("s_cbranch_scc1 FA_noas")
    e("s_sub_u32 s22, s21, 2"); e("s_mov_b32 s81, %d" % (-2 * WLDS))
    E.label("FA_noas")
    va("v_and_b32 v1, 3, v0", V(1), V(0))
    va("v_bfe_u32 v5, v0, 2, 1", V(5), V(0))
    e("s_sub_u32 s23, s22, s21")
    va("v_mul_u32_u24 v5, s23, v5", V(5), V(5))
    va("v_add_u32 v5, s21, v5", V(5), V(5))
    va("v_lshl_add_u32 v1, v5, 2, v1", V(1), V(1) + V(5))
    va("v_mul_u32_u24 v2, 2260, v1", V(2), V(1))
    va("v_lshrrev_b32 v2, 16, v2", V(2), V(2))
    va("v_mul_u32_u24 v3, 29, v2", V(3), V(2))
    va("v_sub_u32 v3, v1, v3", V(3), V(1) + V(3))
    va("v_min_u32 v2, 22, v2", V(2), V(2))
    va("v_lshlrev_b32 v4, 3, v3", V(4), V(3))
    va("v_add_u32 v4, 216, v4", V(4), V(4))
    va("v_subrev_u32 v5, 224, v4", V(5), V(4))
    va("v_min_u32 v4, v4, v5", V(4), V(4) + V(5))
    va("v_add_u32 v4, s20, v4", V(4), V(4))
    va("v_mul_u32_u24 v4, %d, v4" % ROWB, V(4), V(4))
    va("v_mul_u32_u24 v6, 1920, v2", V(6), V(2))
    va("v_add_u32 v7, v4, v6", V(7), V(4) + V(6))
    va("v_cmp_eq_u32 vcc, 0, v2", [], V(2))
    va("v_mov_b32 v5, %d" % ROWB, V(5), [])
    va("v_mov_b32 v6, 0", V(6), [])
    va("v_cndmask_b32 v3, v6, v5, vcc", V(3), V(5) + V(6))
    E.nop(1)
    for a in range(8): e("v_readlane_b32 s%d, v7, %d" % (40 + a, a))
    for a in range(8): e("v_readlane_b32 s%d, v3, %d" % (48 + a, a))
    for n in range(3):
        va("v_add_u32 v8, %d, v0" % (64 * n), V(8), V(0))
        va("v_mul_u32_u24 v9, 5462, v8", V(9), V(8))
        va("v_bfe_u32 v10, v9, 18, 2", V(10), V(9))
        va("v_xor_b32 v8, v8, v10", V(8), V(8) + V(10))
        va("v_lshlrev_b32 v%d, 4, v8" % (12 + n), V(12 + n), V(8))
        if n < 2:
            va("v_lshrrev_b32 v9, 16, v9", V(9), V(9))
            va("v_cmp_gt_u32 vcc, 6, v9", [], V(9))
            E.nop(2)
            va("v_cndmask_b32 v%d, 0, 1, vcc" % (16 + n), V(16 + n), [])
    e("s_mul_i32 s56, s24, %d" % WLDS)
    e("s_waitcnt lgkmcnt(0)")
    e("s_mov_b64 s[76:77], s[6:7]")
    if env('WSOFF', 0): e("s_add_u32 s8, s8, %d" % (env('WSOFF', 0) << 20)); e("s_addc_u32 s9, s9, 0")
    e("s_sub_u32 s12, s84, 1152"); e("s_subb_u32 s13, s85, 0"); e("s_and_b32 s13, s13, 0xffff"); e("s_mov_b32 s14, %d" % (XBYTES + 1152)); e("s_mov_b32 s15, 0x00020000")
    def xloads(task):
        for a in range(4):
            for n in range(3):
                t = 8 + (3 * a + n) % 2
                e("s_add_u32 m0, s56, %d" % (task * SL1 + a * 3088 + n * 1024))
                if n < 2: va("v_mad_i32_i24 v%d, v%d, s%d, v%d" % (t, 16 + n, 48 + 4 * task + a, 12 + n), V(t), V(16 + n) + V(12 + n))
                else:
                    t = 14; E.nop(1)
                E.vload("buffer_load_dwordx4 v%d, s[12:15], s%d offen lds" % (t, 40 + 4 * task + a), [], V(t), tok=('x', task, a))
    e("s_or_b32 s57, s2, s24"); e("s_cmp_lg_u32 s57, 0"); e("s_cbranch_scc1 FA_nononce")
    e("s_memrealtime s[58:59]"); e("s_waitcnt lgkmcnt(0)"); e("s_or_b32 s58, s58, 1")
    va("v_mov_b32 v8, 0", V(8), []); va("v_mov_b32 v9, s58", V(9), [])
    e("s_mov_b64 exec, 1"); e("global_store_dword v8, v9, s[76:77] sc1"); e("s_mov_b64 exec, -1")
    E.label("FA_nononce")
    def first_loads():
        xloads(0)
        va("v_mov_b32 v30, 0", V(30), [])
        E.vload("global_load_dword v31, v30, s[76:77] sc1", V(31), V(30), tok=('nonce',))
    e("s_cmp_lt_u32 s83, 40"); e("s_cbranch_scc1 FA_xx")
    e("s_cmp_lt_u32 s83, 61"); e("s_cbranch_scc1 FA_xw")
    import copy
    def snap(): return copy.deepcopy((E.pos, E.w, E.mc, E.sd, E.vm, E.lg))
    def rest(s_): E.pos, E.w, E.mc, E.sd, E.vm, E.lg = copy.deepcopy(s_)
    base_state = snap()

    def xsetup():
        va("v_lshlrev_b32 v1, 3, v0", V(1), V(0))
        e("s_add_u32 s58, s10, FU_bt-FU_pc"); e("s_addc_u32 s59, s11, 0")
        E.vload("global_load_dwordx2 v[20:21], v1, s[58:59]", V(20, 2), V(1))
        va("v_lshrrev_b32 v2, 4, v0", V(2), V(0))
        va("v_and_b32 v3, 15, v0", V(3), V(0))
        va("v_lshrrev_b32 v4, 2, v3", V(4), V(3))
        va("v_and_b32 v5, 3, v0", V(5), V(0))
        va("v_lshl_add_u32 v6, v2, 2, v4", V(6), V(2) + V(4))
        va("v_mul_u32_u24 v7, 193, v5", V(7), V(5))
        va("v_mul_u32_u24 v8, 12, v6", V(8), V(6))
        va("v_add_u32 v7, v7, v8", V(7), V(7) + V(8))
        va("v_mov_b32 v10, s56", V(10), [])
        for kg in range(4):
            va("v_xor_b32 v9, %d, v2" % kg, V(9), V(2))
            va("v_add_u32 v9, v7, v9", V(9), V(7) + V(9))
            va("v_lshl_add_u32 v%d, v9, 4, v10" % (24 + kg), V(24 + kg), V(9) + V(10))
        va("v_mul_u32_u24 v7, 193, v2", V(7), V(2))
        va("v_mul_u32_u24 v8, 12, v3", V(8), V(3))
        va("v_add_u32 v7, v7, v8", V(7), V(7) + V(8))
        va("v_lshrrev_b32 v8, 2, v3", V(8), V(3))
        for kg in range(4):
            va("v_xor_b32 v9, %d, v8" % kg, V(9), V(8))
            va("v_add_u32 v9, v7, v9", V(9), V(7) + V(9))
            va("v_lshl_add_u32 v%d, v9, 4, v10" % (244 + kg), V(244 + kg), V(9) + V(10))
        va("v_lshrrev_b32 v2, 4, v0", V(2), V(0))
        va("v_bfe_u32 v3, v0, 2, 2", V(3), V(0))
        va("v_and_b32 v4, 3, v0", V(4), V(0))
        va("v_mul_u32_u24 v7, 193, v4", V(7), V(4))
        va("v_mul_u32_u24 v8, 12, v2", V(8), V(2))
        va("v_add_u32 v7, v7, v8", V(7), V(7) + V(8))
        for v in range(4):
            va("v_xor_b32 v9, %d, v3" % v, V(9), V(3))
            va("v_add_u32 v9, v7, v9", V(9), V(7) + V(9))
            va("v_lshl_add_u32 v%d, v9, 4, v10" % (16 + v), V(16 + v), V(9) + V(10))
        va("v_lshlrev_b32 v7, 13, v2", V(7), V(2))
        va("v_lshl_add_u32 v7, v3, 6, v7", V(7), V(3) + V(7))
        va("v_lshl_add_u32 v11, v4, 4, v7", V(11), V(4) + V(7))
        for task, qs in ((0, 21), (1, 22)):
            e("s_lshr_b32 s62, s%d, 2" % qs); e("s_lshl_b32 s%d, s62, 7" % (78 + task)); e("s_mul_i32 s%d, s62, %d" % (60 + task, XREG))
            e("s_lshl_b32 s62, s20, 2"); e("s_and_b32 s57, s%d, 3" % qs); e("s_add_u32 s62, s62, s57"); e("s_lshl_b32 s62, s62, 2")
            e("s_add_u32 s%d, s%d, s62" % (78 + task, 78 + task)); e("s_add_u32 s%d, s%d, %d" % (78 + task, 78 + task, G['FL_OFF']))
            e("s_lshl_b32 s62, s20, 10"); e("s_add_u32 s%d, s%d, s62" % (60 + task, 60 + task))
            e("s_and_b32 s62, s%d, 3" % qs); e("s_lshl_b32 s62, s62, 8"); e("s_add_u32 s%d, s%d, s62" % (60 + task, 60 + task))
        e("s_mov_b32 s16, s8"); e("s_and_b32 s17, s9, 0xffff"); e("s_mov_b32 s18, %d" % XF_SIZE); e("s_mov_b32 s19, 0x00020000")
    AFR = [32, 160]
    def reads(task, k):
        for kg in range(4):
            for hf in range(2):
                a = AFR[task] + 16 * k + 2 * (2 * kg + hf)
                E.dsread("ds_read_b64_tr_b16 v[%d:%d], v%d offset:%d" % (a, a + 1, 24 + kg, task * SL1 + k * 64 + 8 * hf), V(a, 2), V(24 + kg))
    def mm(task, k, d):
        for i in range(8): E.mfma16(('v', d + 4 * i), ('v', AFR[task] + 16 * k + 2 * i), ('v', 20), None)
    def pack(task, k, d):
        for kg in range(4):
            d0 = d + 8 * kg
            for i in range(4):
                va("v_cvt_pk_bf16_f32 v%d, v%d, v%d" % (d0 + i, d0 + 2 * i, d0 + 2 * i + 1), V(d0 + i), V(d0 + 2 * i, 2))
            E.dswrite("ds_write_b128 v%d, v[%d:%d] offset:%d" % (244 + kg, d0, d0 + 3, task * SL1 + k * 64), V(d0, 4), V(244 + kg))
    ring = [0]
    def out(task, k):
        base = 144 if ring[0] % 2 == 0 else 208
        ring[0] += 1
        for i in range(4):
            r = base + 4 * i
            E.dsread("ds_read_b128 v[%d:%d], v%d offset:%d" % (r, r + 3, 16 + i, task * SL1 + 768 * i + 64 * k), V(r, 4), V(16 + i))
        for i in range(4):
            r = base + 4 * i
            e("s_add_u32 s62, s%d, %d" % (60 + task, i * XW + k * 32768))
            E.vstore("buffer_store_dwordx4 v[%d:%d], v11, s[16:19], s62 offen%s" % (r, r + 3, SF), V(r, 4), V(11), tok=('st', task, k))
    def get_nonce(tag):
        E._need(V(31))
        E.nop(1)
        e("v_readfirstlane_b32 s82, v31")
        e("s_mov_b32 s57, 0")
        E.label("FA_n%s" % tag)
        e("s_cmp_lg_u32 s82, 0"); e("s_cbranch_scc1 FA_nok%s" % tag)
        e("s_add_u32 s57, s57, 1"); e("s_cmp_ge_u32 s57, %d" % env('SPIN', 400000)); e("s_cbranch_scc1 FA_nok%s" % tag)
        e("s_sleep 4")
        e("v_mov_b32 v30, 0"); e("global_load_dword v31, v30, s[76:77] sc1"); e("s_waitcnt vmcnt(0)"); e("v_readfirstlane_b32 s82, v31")
        e("s_branch FA_n%s" % tag)
        E.label("FA_nok%s" % tag)
    def signal(offs):
        for o in offs:
            va("v_mov_b32 v1, s%d" % o, V(1), [])
            va("v_mov_b32 v2, s82", V(2), [])
            e("s_mov_b64 exec, 1")
            E.vstore("global_atomic_swap v1, v2, s[8:9] sc1", V(2), V(1))
            e("s_mov_b64 exec, -1")
    first_loads()
    xsetup()
    E.wait_token(('x', 0, 3))
    st(1)
    for k in range(3): reads(0, k)
    mm(0, 0, 80); mm(0, 1, 112); pack(0, 0, 80); out(0, 0)
    mm(0, 2, 80); pack(0, 1, 112); pack(0, 2, 80)

    out(0, 1)
    get_nonce('a')
    E._need([('st', 0, 0)])
    signal([78])
    st(2)
    E.wait(None, 0); E.barrier()
    e("s_mov_b32 s81, 0" if False else "s_nop 0")
    e("s_cmp_eq_u32 s80, 0"); e("s_cbranch_scc1 FA_noassist")
    for i in range(4): va("v_add_u32 v%d, s81, v%d" % (200 + i, 16 + i), V(200 + i), V(16 + i))
    for i in range(4):
        r = 160 + 4 * i
        E.dsread("ds_read_b128 v[%d:%d], v%d offset:%d" % (r, r + 3, 200 + i, 768 * i + 64), V(r, 4), V(200 + i))
    for i in range(4):
        r = 160 + 4 * i
        e("s_add_u32 s62, s61, %d" % (i * XW + 32768))
        E.vstore("buffer_store_dwordx4 v[%d:%d], v11, s[16:19], s62 offen%s" % (r, r + 3, SF), V(r, 4), V(11))
    e("s_mov_b32 s81, s79")
    e("s_mov_b32 s79, 0"); e("s_mov_b32 s61, 0x40000000")
    e("s_branch FU_pb")
    E.label("FA_noassist")
    e("s_mov_b32 s81, 0")
    e("s_mov_b32 s79, 0"); e("s_mov_b32 s61, 0x40000000")
    e("s_branch FU_pb")
    E.label("FA_xx"); rest(base_state); ring[0] = 0
    first_loads()
    xloads(1)
    xsetup()
    E.wait_token(('x', 0, 3))
    st(1)
    for k in range(3): reads(0, k)
    mm(0, 0, 80); mm(0, 1, 112); pack(0, 0, 80); out(0, 0)
    if env('FS2', 0): G['fs2'](3)
    E.wait_token(('x', 1, 3))
    for k in range(3): reads(1, k)
    mm(1, 0, 80); pack(0, 1, 112); pack(1, 0, 80); out(1, 0)
    mm(1, 1, 112); mm(0, 2, 80); pack(1, 1, 112)
    E.wait(None, 0); E.barrier()
    out(0, 1)
    get_nonce('b')
    E._need([('st', 0, 0)])
    signal([78])
    pack(0, 2, 80); mm(1, 2, 112); pack(1, 2, 112)
    E._need([('st', 1, 0)])
    signal([79])
    st(2)
    e("s_mov_b32 s80, 2"); e("s_mov_b32 s81, 0")
    e("s_branch FU_pb")
    E.label("FA_xw"); rest(base_state); ring[0] = 0
    e("s_mul_i32 s63, s20, 21"); e("s_add_u32 s63, s63, s83"); e("s_sub_u32 s63, s63, 40")
    e("s_and_b32 s64, s63, 1")
    e("s_lshr_b32 s63, s63, 1")
    e("s_and_b32 s65, s63, 3")
    e("s_lshr_b32 s63, s63, 2")
    e("s_mul_i32 s66, s63, 86"); e("s_lshr_b32 s66, s66, 8")
    e("s_mul_i32 s67, s66, 3"); e("s_sub_u32 s67, s63, s67")
    va("v_lshlrev_b32 v22, 4, v0", V(22), V(0))
    va("v_add_u32 v23, 1024, v22", V(23), V(22))
    e("s_mul_i32 s68, s66, %d" % (7 * 18432))
    e("s_mul_i32 s69, s67, %d" % (32 * 192)); e("s_add_u32 s68, s68, s69")
    e("s_mul_i32 s69, s65, %d" % (8 * 192)); e("s_add_u32 s68, s68, s69")
    e("s_mov_b32 s72, s86"); e("s_and_b32 s73, s87, 0xffff"); e("s_mov_b32 s74, %d" % WBYTES); e("s_mov_b32 s75, 0x00020000")
    for kw in range(7):
        for hf in range(2):
            e("s_add_u32 m0, s56, %d" % (SL1 + kw * KS + hf * 1024))
            e("s_add_u32 s69, s68, %d" % (kw * 18432))
            E.vload("buffer_load_dwordx4 v%d, s[72:75], s69 offen lds" % (22 + hf), [], V(22 + hf), tok=('w', kw, hf))
    va("v_lshlrev_b32 v2, 3, v0", V(2), V(0))
    e("s_add_u32 s58, s10, FU_gt-FU_pc"); e("s_addc_u32 s59, s11, 0")
    E.vload("global_load_dwordx2 v[22:23], v2, s[58:59]", V(22, 2), V(2))
    first_loads()
    xsetup()
    va("v_bfe_u32 v3, v0, 4, 1", V(3), V(0))
    va("v_bfe_u32 v4, v0, 2, 2", V(4), V(0))
    va("v_lshl_add_u32 v3, v3, 2, v4", V(3), V(3) + V(4))
    va("v_min_u32 v3, 6, v3", V(3), V(3))
    va("v_mul_u32_u24 v3, %d, v3" % KS, V(3), V(3))
    va("v_and_b32 v4, 3, v0", V(4), V(0))
    va("v_lshl_add_u32 v3, v4, 3, v3", V(3), V(3) + V(4))
    e("s_mul_i32 s69, s64, 96"); e("s_add_u32 s69, s69, s56")
    va("v_add_u32 v240, s69, v3", V(240), V(3))
    va("v_lshrrev_b32 v4, 4, v0", V(4), V(0))
    va("v_mul_u32_u24 v241, %d, v4" % (3 * 28 * 1024), V(241), V(4))
    va("v_and_b32 v4, 15, v0", V(4), V(0))
    va("v_lshl_add_u32 v241, v4, 4, v241", V(241), V(241) + V(4))
    e("s_mul_i32 s68, s64, %d" % (3 * 4 * 3 * 28 * 1024))
    e("s_mul_i32 s69, s67, %d" % (28 * 1024)); e("s_add_u32 s68, s68, s69")
    e("s_lshl_b32 s69, s66, 10"); e("s_add_u32 s68, s68, s69")
    e("s_lshl_b32 s69, s65, 8"); e("s_add_u32 s68, s68, s69")
    e("s_add_u32 s72, s8, %d" % WF_OFF); e("s_addc_u32 s73, s9, 0"); e("s_and_b32 s73, s73, 0xffff"); e("s_mov_b32 s74, %d" % WF_SIZE)
    E.wait_token(('w', 6, 1))
    for u in range(3):
        for i in range(8):
            a = 160 + 16 * u + 2 * i
            E.dsread("ds_read_b64_tr_b16 v[%d:%d], v240 offset:%d" % (a, a + 1, SL1 + i * 192 + u * 32), V(a, 2), V(240))
    for u in range(3):
        d = 80 if u % 2 == 0 else 112
        for i in range(8): E.mfma16(('v', d + 4 * i), ('v', 22), ('v', 160 + 16 * u + 2 * i), None)
        for j in range(4):
            p = 224 + 4 * j
            for dd in range(4):
                va("v_cvt_pk_bf16_f32 v%d, v%d, v%d" % (p + dd, d + 8 * dd + j, d + 8 * dd + 4 + j), V(p + dd), V(d + 8 * dd + j) + V(d + 8 * dd + 4 + j))
            e("s_add_u32 s69, s68, %d" % (u * 4 * 3 * 28 * 1024 + j * 7 * 1024))
            E.vstore("buffer_store_dwordx4 v[%d:%d], v241, s[72:75], s69 offen%s" % (p, p + 3, SF), V(p, 4), V(241), tok=('wst', u, j))
    E.wait_token(('x', 0, 3))
    st(1)
    for k in range(3): reads(0, k)
    mm(0, 0, 80); mm(0, 1, 112); pack(0, 0, 80); out(0, 0)
    mm(0, 2, 80); pack(0, 1, 112)
    E.wait(None, 0); E.barrier()
    pack(0, 2, 80)
    get_nonce('c')
    E._need([('wst', 2, 3)])
    e("s_lshl_b32 s79, s66, 2"); e("s_add_u32 s79, s79, s65"); e("s_lshl_b32 s79, s79, 1"); e("s_add_u32 s79, s79, s64"); e("s_lshl_b32 s79, s79, 2")
    e("s_lshl_b32 s69, s67, 8"); e("s_add_u32 s79, s79, s69"); e("s_add_u32 s79, s79, %d" % (G['FL_OFF'] + 12288))
    va("v_lshlrev_b32 v1, 10, v0", V(1), V(0))
    va("v_add_u32 v1, s79, v1", V(1), V(1))
    va("v_mov_b32 v2, s82", V(2), [])
    e("s_mov_b64 exec, 0xff")
    E.vstore("global_atomic_swap v1, v2, s[8:9] sc1", V(2), V(1))
    e("s_mov_b64 exec, -1")
    E._need([('st', 0, 0)])
    signal([78])
    st(2)
    e("s_mov_b32 s79, 0"); e("s_mov_b32 s61, 0x40000000")
    e("s_mov_b32 s80, 3"); e("s_mov_b32 s81, 0")
    e("s_branch FU_pb")

def tables(E, G):
    cfg = G['cfg']
    tb = np.zeros((64, 4), dtype=np.uint16)
    for l in range(64):
        n, g = l % 16, l // 16
        tb[l] = bf16bits(cfg.BT[n, 4 * g:4 * g + 4])
    E.raw(".p2align 8"); E.label("FU_bt"); E.raw(G['table'](tb.reshape(-1)))
    gc = np.zeros((16, 8)); gc[:, :7] = cfg.G[:, ::-1]
    ghi = bf16r(gc); glo = bf16r(gc - ghi.astype(np.float64))
    tg = np.zeros((64, 4), dtype=np.uint16)
    for l in range(64):
        n, g = l % 16, l // 16
        tg[l] = bf16bits((ghi if g < 2 else glo)[n, 4 * (g % 2):4 * (g % 2) + 4])
    E.label("FU_gt"); E.raw(G['table'](tg.reshape(-1)))
```

```python
import sys, os
import numpy as np
from emit import *
from consts import bf16bits, bf16r

class Task:
    def __init__(s, name, ins, lo, hi, deps=()):
        s.name, s.ins, s.lo, s.hi = name, list(ins), lo, hi
        s.deps = [d if isinstance(d, tuple) else (d, 0) for d in deps]
        s.done_at = None

def gen_k2(G):
    FUSED = G.get('FUSED', 0)
    env = G['env']; cfg = G['cfg']; S = G['S']; NREG = G['NREG']; NC = G['NC']; NCH = G['NCH']
    XW, XREG, XF_SIZE, WW, WF_OFF, WF_SIZE, ST_OFF, XBYTES, ROWB = [G[k] for k in 'XW XREG XF_SIZE WW WF_OFF WF_SIZE ST_OFF XBYTES ROWB'.split()]
    STAMP = env('STAMP', 0)
    PACE = env('PACE', 5); WLAT = env('WLAT', 90)
    E = Em(); e = E.salu
    va = lambda t, d, s_, **kw: E.valu(t, d, s_, **kw)
    class Frag:
        def __init__(s, kind, ch, c, idx, off):
            s.kind, s.ch, s.c, s.idx, s.off = kind, ch, c, idx, off
            s.first = None; s.last = None; s.reg = None; s.issue = None
        def __repr__(s): return "%s(ch%d c%d i%d)" % (s.kind, s.ch, s.c, s.idx)
    X = {}; Hf = {}; W = {}
    for ch in range(NCH):
        for c in range(NC):
            for r in range(S): X[ch, c, r] = Frag('X', ch, c, r, ((ch * NC + c) * S + r) * 1024)
            Hf[ch, c] = Frag('H', ch, c, 0, ((ch * NC + c) * S) * 1024)
            for kh in range(7): W[ch, c, kh] = Frag('W', ch, c, kh, ((ch * NC + c) * 7 + kh) * 1024)
    SHL = set([(NCH - 1, 2), (NCH - 1, 3)]) if env('SHL', 1) else set()
    XS = {}
    for (ch_, c_) in SHL:
        for n in range(1, 7): XS[ch_, c_, -n] = Frag('S', ch_, c_, -n, ((ch_ * NC + c_) * S + S - n) * 1024)
    ops = []
    def op(sl, r, ch, c, kh, cw): ops.append(((sl, r), (ch, c, r - kh), W[ch, cw, kh]))
    marks = {}
    def pstage(ch):
        for hi_, hs in enumerate([[0, 1, 2, 3], [4, 5, 6]]):
            marks['P%d_%d' % (ch, hi_)] = len(ops)
            if ch == 0 and hi_ == 0 and env('WAVEF', 1):
                prs = sorted([(max(7 - (r - kh), kh + env('WFB', 0)), -r, kh) for r in range(S) for kh in hs])
                fl = 0
                for lev, mr, kh in prs:
                    r = -mr
                    seq = [(0, 0, 0), (1, 0, 1), (1, 1, 0), (2, 1, 1)]
                    if fl: seq = seq[::-1]
                    for sl, cx, cw in seq: op(sl, r, ch, cx, kh, cw)
                    fl ^= 1
                continue
            for r in range(S - 1, -1, -1):
                seq = [(0, 0, kh, 0) for kh in hs] + [(1, 0, kh, 1) for kh in hs[::-1]] + [(1, 1, kh, 0) for kh in hs] + [(2, 1, kh, 1) for kh in hs[::-1]]
                if env('LINK', 1) and (S - 1 - r) % 2: seq = seq[::-1]
                for sl, cx, kh, cw in seq: op(sl, r, ch, cx, kh, cw)
    def rstage(ch, u):
        for r in range(S - 1, -1, -1):
            ks = list(range(7))
            if env('LINKR', 0) and (S - 1 - r) % 2: ks = ks[::-1]
            for kh in ks: op(2 + u, r, ch, 1 + u, kh, 1 + u)
    for ch in range(NCH - 1):
        pstage(ch); rstage(ch, 1); rstage(ch, 2)
    ch = NCH - 1
    pstage(ch)
    FIN = env('FIN', 2)
    step_end = {}
    if FIN == 1:
        rstage(ch, 1)
        marks['F'] = len(ops)
        for r in range(S - 1, -1, -1):
            for kh in range(7): op(4, r, ch, 3, kh, 3)
            step_end[r] = len(ops) - 1
    else:
        marks['F'] = len(ops)
        for r in range(S - 1, -1, -1):
            for kh in range(7): op(3, r, ch, 2, kh, 2)
            for kh in range(6, -1, -1): op(4, r, ch, 3, kh, 3)
            step_end[r] = len(ops) - 1
    N = len(ops)
    use = {}; acc_last = {}
    for i, (a, xk, w) in enumerate(ops):
        use.setdefault(xk, [i, i])[1] = i
        if w.first is None: w.first = i
        w.last = i
        acc_last[a] = i
    shifts = []
    for (ch, c, r), f in X.items():
        f.first, f.last = use[ch, c, r]
        if (ch, c) in SHL: continue
        if (ch, c, r - S) in use:
            a, b = use[ch, c, r - S]
            assert f.last < a - 12, (ch, c, r, f.last, a)
            shifts.append([f, S - r, f.last, a]); f.last = b
    for key, f in XS.items(): f.first, f.last = use[key]
    for key in SHL: del Hf[key]
    for (ch, c), h in Hf.items():
        sh = [s_ for s_ in shifts if s_[0].ch == ch and s_[0].c == c]
        h.first = max(env('H0', 50), min(s_[2] for s_ in sh) - env('HEARLY', 20)); h.last = max(s_[3] for s_ in sh)
    V_L16, V_HOFF, V_FR = 1, 2, 247
    accreg = {}
    for sl in range(3):
        for r in range(S): accreg[sl, r] = ('a', 4 * (sl * S + r))
    RV = env('RV', 1)
    vbase = 8
    abase = 96
    for sl in (3, 4):
        for r in range(S):
            if RV: accreg[sl, r] = ('v', vbase); vbase += 4
            else: accreg[sl, r] = ('a', abase); abase += 4
    vfree = [('v', x) for x in range(vbase, 253, 4) if x not in ((244, 248, 252) if FUSED else (244, 248))]
    afree = [('a', x) for x in range(abase, 253, 4)]
    vlast = {r: -1 for r in vfree}
    frags = list(X.values()) + list(Hf.values()) + list(W.values()) + list(XS.values())
    frags.sort(key=lambda f: (f.first - (env('SEARLY', 30) if f.kind == 'S' else 0), {'W': 1, 'X': 0, 'H': 2, 'S': 3}[f.kind]))
    gap = [[] for _ in range(N + 1)]
    pending = list(frags); active = []; pre = []
    TEMP_T = marks['P2_1'] - env('TEMPE', 60)
    NTEMP = env('NTEMP', 4)
    reserved = vfree[-NTEMP:]
    def alloc(f):
        if f.kind in 'WS':
            if afree: return afree.pop(0)
            return None
        for r in vfree:
            if r in reserved and f.last >= TEMP_T: continue
            vfree.remove(r); return r
        return None
    def release(upto):
        for f in list(active):
            if f.last < upto:
                active.remove(f); (afree if f.reg[0] == 'a' else vfree).append(f.reg)
    while pending and len(pre) < env('NPRE', 16):
        f = pending.pop(0); f.reg = alloc(f); f.issue = -1; pre.append(f); active.append(f)
    lastload = -100
    for i in range(1, N):
        release(i - 1)
        pace = env('PACE0', PACE) if i < env('RAMP', 0) else PACE
        if pending and (i - lastload >= pace or pending[0].first - i < env('URG', 40)):
            f = pending[0]; r = alloc(f)
            if r is not None:
                f.reg = r; f.issue = i; active.append(f); pending.pop(0); gap[i].append(('load', f)); lastload = i
            elif f.first - i < 3: raise Exception("no register for %s at %d" % (f, i))
    assert not pending
    for f in frags:
        if f.reg[0] == 'v': vlast[f.reg] = max(vlast[f.reg], f.last)
    la = [f.first - f.issue for f in frags if f.issue > 0]
    sys.stderr.write("K2 lookahead (slots): min %d p10 %d median %d\n" % (min(la), np.percentile(la, 10), np.median(la)))
    TPF = env('TPF', 0); TP = env('TP', 6); TLEAD = env('TLEAD', 90); NT0 = env('NT0', 14)
    touches = []
    if TPF:
        cand = []
        for m in range(768 // 6):
            line = 6 * m + 3
            f = X[(6 * m // 8) // (NC * S), ((6 * m // 8) // S) % NC, (6 * m // 8) % S]
            cand.append((f.issue, 'X', m * 768))
        for m in range(672 // 5):
            fi = 5 * m // 8
            f = W[fi // (NC * 7), (fi // 7) % NC, fi % 7]
            cand.append((f.issue, 'W', m * 640))
        cand.sort()
        cand = [c for c in cand if c[0] > env('TSKIP', 0)]
        pre_t = cand[:NT0]; rest = cand[NT0:]
        touches = pre_t
        i = env('T0', 40)
        while rest and i < N:
            while rest and rest[0][0] - i < TLEAD: rest.pop(0)
            if not rest: break
            gap[i].append(('touch', rest.pop(0))); i += TP
        sys.stderr.write("K2 touches: %d in prologue, %d in loop\n" % (len(pre_t), sum(1 for g in gap for x in g if x[0] == 'touch')))
    cnt = [len(g) for g in gap]
    if env('PREDW', 1):
        order_ = pre + [x[1] for g in gap for x in g if x[0] == 'load']
        posn = {id(f): k for k, f in enumerate(order_)}
        done_ = -1; nw_ = 0
        for i, (a_, xk, w_) in enumerate(ops):
            ch_, c_, rho_ = xk
            xf_ = XS[xk] if (rho_ < 0 and (ch_, c_) in SHL) else X[ch_, c_, rho_ if rho_ >= 0 else rho_ + S]
            k = max(posn[id(xf_)], posn[id(w_)])
            if k > done_:
                while k + 1 < len(order_) and order_[k + 1].issue >= 0 and order_[k + 1].issue + WLAT <= i and order_[k + 1].issue < i: k += 1
                done_ = k; cnt[i] += 1; nw_ += 1
        sys.stderr.write("K2 predicted waits: %d\n" % nw_)
    tasks = []
    slot_now = [0]
    def prewait(rs):
        rs = set(rs); idx = None; cur = slot_now[0]
        for i, d in enumerate(E.vm):
            if d & rs: idx = i
        if idx is None: return
        while idx + 1 < len(E.vm):
            sl = [t[1] for t in E.vm[idx + 1] if t[0] == 'slot']
            if sl and sl[0] >= 0 and sl[0] + WLAT <= cur: idx += 1
            else: break
        E.wait(len(E.vm) - 1 - idx, None)
    def mk_shift(f, n):
        h = Hf[f.ch, f.c]
        ins = []
        if env('NODPP', 0): return [lambda: None]
        for d in range(4):
            def mv(d=d):
                r = f.reg[1] + d; prewait(V(r))
                va("v_mov_b32_dpp v%d, v%d row_shr:1 row_mask:0xf bank_mask:0xf" % (r, r), V(r), [], dpp=V(r))
            ins.append(mv)
        for d in range(4):
            def cm(d=d):
                r = f.reg[1] + d; hr = h.reg[1] + d; k = 6 - n
                prewait(V(hr))
                if k > 0: va("v_cndmask_b32_dpp v%d, v%d, v%d, vcc row_shl:%d row_mask:0xf bank_mask:0xf" % (r, hr, r, k), V(r), V(r), dpp=V(hr))
                else: va("v_cndmask_b32 v%d, v%d, v%d, vcc" % (r, hr, r), V(r), V(r) + V(hr))
            ins.append(cm)
        return ins
    for f, n, lo, hi in shifts:
        h = Hf[f.ch, f.c]
        lo2 = max(lo + 1, min(h.issue + env('HLAT', 60), hi - 20) if h.issue > 0 else 0)
        tasks.append(Task('sh', mk_shift(f, n), lo2, hi - 3))
    PL = 32768; STG = 3 * PL; LDS = STG + 4 * 16384
    tmp = [r[1] for r in reserved]
    late = sorted([r[1] for r, l in vlast.items() if r not in reserved and l < marks['F'] + 2])
    a0, a1 = 244, 248
    AT = 4
    V_WP, V_WR, V_IR, V_SW = a0, a0 + 1, a0 + 2, a0 + 3
    assert env('DST', 1)
    V_SW = 240
    V_SR, V_O0, V_O1, V_SH = a1, a1 + 1, a1 + 2, a1 + 3
    V_SR = 241
    sc = [236 + i for i in range(8)]
    PT = [tmp[0], tmp[1], tmp[2], tmp[3]]
    setup = []
    MK = 64 if STAMP else 70
    def S_(fn): setup.append(fn)
    t0, t1, t2, t3, t4, t5, t6, t7 = sc
    vv = lambda t, d, s_: S_(lambda: va(t, d, s_))
    ss = lambda t: S_(lambda: e(t))
    vv("v_and_b32 v%d, 15, v0" % t1, V(t1), V(0))
    vv("v_lshrrev_b32 v%d, 4, v0" % t2, V(t2), V(0))
    vv("v_lshlrev_b32 v%d, 10, v%d" % (t3, t2), V(t3), V(t2))
    vv("v_lshl_add_u32 v%d, v%d, 4, v%d" % (t3, t1, t3), V(t3), V(t1) + V(t3))
    ss("s_lshr_b32 s33, s24, 1"); ss("s_mul_i32 s33, s33, %d" % PL); ss("s_and_b32 s34, s24, 1"); ss("s_lshl_b32 s34, s34, 3"); ss("s_add_u32 s33, s33, s34")
    vv("v_add_u32 v%d, s33, v%d" % (V_WP, t3), V(V_WP), V(t3))
    vv("v_xor_b32 v%d, s24, v%d" % (t4, t2), V(t4), V(t2))
    vv("v_lshl_add_u32 v%d, v%d, 2, v%d" % (t4, t4, t3), V(t4), V(t4) + V(t3))
    vv("v_add_u32 v%d, %d, v%d" % (V_WR, 2 * PL, t4), V(V_WR), V(t4))
    vv("v_min_u32 v%d, 2, v%d" % (t3, t2), V(t3), V(t2))
    vv("v_lshlrev_b32 v%d, 15, v%d" % (t3, t3), V(t3), V(t3))
    vv("v_lshl_add_u32 v%d, v%d, 4, v%d" % (t3, t1, t3), V(t3), V(t1) + V(t3))
    ss("s_lshl_b32 s33, s24, 10")
    vv("v_add_u32 v%d, s33, v%d" % (V_IR, t3), V(V_IR), V(t3))
    ss("s_lshl_b32 s33, s24, 14"); ss("s_add_u32 s33, s33, %d" % STG)
    vv("v_and_b32 v%d, 15, v0" % t1, V(t1), V(0))
    vv("v_lshrrev_b32 v%d, 1, v%d" % (t3, t2), V(t3), V(t2))
    vv("v_lshl_add_u32 v%d, v%d, 1, v%d" % (t3, t1, t3), V(t3), V(t1) + V(t3))
    vv("v_bfe_u32 v%d, v%d, 2, 1" % (t4, t1), V(t4), V(t1))
    vv("v_xor_b32 v%d, v%d, v%d" % (t3, t3, t4), V(t3), V(t3) + V(t4))
    vv("v_and_b32 v%d, 1, v%d" % (t4, t2), V(t4), V(t2))
    vv("v_lshlrev_b32 v%d, %d, v%d" % (t4, 9 if env('B128', 1) else 3, t4), V(t4), V(t4))
    vv("v_lshl_add_u32 v%d, v%d, 4, v%d" % (t3, t3, t4), V(t3), V(t3) + V(t4))
    vv("v_add_u32 v%d, s33, v%d" % (V_SW, t3), V(V_SW), V(t3))
    vv("v_bfe_u32 v%d, v0, 3, 1" % t4, V(t4), V(0))
    vv("v_xor_b32 v%d, v0, v%d" % (t4, t4), V(t4), V(0) + V(t4))
    vv("v_lshl_add_u32 v%d, v%d, 4, s33" % (V_SR, t4), V(V_SR), V(t4))
    if env('DST', 1):
        vv("v_bfe_u32 v%d, v0, 4, 1" % t0, V(t0), V(0))
        vv("v_and_b32 v%d, 15, v0" % t1, V(t1), V(0))
        vv("v_lshrrev_b32 v%d, 5, v0" % t2, V(t2), V(0))
    else:
        vv("v_lshrrev_b32 v%d, 5, v0" % t0, V(t0), V(0))
        vv("v_bfe_u32 v%d, v0, 1, 4" % t1, V(t1), V(0))
        vv("v_and_b32 v%d, 1, v0" % t2, V(t2), V(0))
    ss("s_mov_b32 s38, 224"); ss("s_mov_b32 s35, 2260"); ss("s_mov_b32 s37, 192")
    for p in range(2):
        o = V_O0 + p
        ss("s_lshl_b32 s33, s27, 4"); ss("s_lshl_b32 s34, s24, 2"); ss("s_add_u32 s33, s33, s34"); ss("s_add_u32 s33, s33, %d" % (2 * p))
        vv("v_add_u32 v%d, s33, v%d" % (t3, t0), V(t3), V(t0))
        vv("v_mul_u32_u24 v%d, s35, v%d" % (t4, t3), V(t4), V(t3))
        vv("v_lshrrev_b32 v%d, 16, v%d" % (t4, t4), V(t4), V(t4))
        vv("v_mul_u32_u24 v%d, 29, v%d" % (t5, t4), V(t5), V(t4))
        vv("v_sub_u32 v%d, v%d, v%d" % (t5, t3, t5), V(t5), V(t3) + V(t5))
        vv("v_mul_u32_u24 v%d, 10, v%d" % (t6, t4), V(t6), V(t4))
        vv("v_add_u32 v%d, v%d, v%d" % (t6, t6, t1), V(t6), V(t6) + V(t1))
        vv("v_subrev_u32 v%d, 1, v%d" % (t7, t5), V(t7), V(t5))
        vv("v_mul_u32_u24 v%d, %d, v%d" % (t7, 8 * 224, t7), V(t7), V(t7))
        vv("v_add_u32 v%d, v%d, v%d" % (t7, t7, t6), V(t7), V(t7) + V(t6))
        vv("v_mul_lo_u32 v%d, v%d, s37" % (t7, t7), V(t7), V(t7))
        vv("v_lshl_add_u32 v%d, v%d, 4, v%d" % (t7, t2, t7), V(t7), V(t7) + V(t2))
        ss("s_lshl_b32 s34, s28, 5")
        vv("v_add_u32 v%d, s34, v%d" % (t7, t7), V(t7), V(t7))
        vv("v_cmp_ne_u32 s[%d:%d], 0, v%d" % (MK, MK + 1, t5), [], V(t5))
        vv("v_cmp_gt_u32 s[%d:%d], 10, v%d" % (MK + 2, MK + 3, t1), [], V(t1))
        vv("v_cmp_gt_u32 s[%d:%d], s38, v%d" % (MK + 4, MK + 5, t6), [], V(t6))
        vv("v_mov_b32 v%d, 0x7fffffff" % t3, V(t3), [])
        S_(lambda: E.nop(3))
        ss("s_and_b64 s[%d:%d], s[%d:%d], s[%d:%d]" % (MK, MK + 1, MK, MK + 1, MK + 2, MK + 3)); ss("s_and_b64 s[%d:%d], s[%d:%d], s[%d:%d]" % (MK, MK + 1, MK, MK + 1, MK + 4, MK + 5))
        S_(lambda: E.nop(1))
        vv("v_cndmask_b32 v%d, v%d, v%d, s[%d:%d]" % (o, t3, t7, MK, MK + 1), V(o), V(t3) + V(t7))
    ss("s_cmp_eq_u32 s27, 0"); ss("s_cselect_b32 s33, 0, %d" % XREG)
    vv("v_and_b32 v%d, 15, v0" % t3, V(t3), V(0))
    vv("v_add_u32 v%d, -1, v%d" % (t3, t3), V(t3), V(t3))
    vv("v_lshrrev_b32 v%d, 2, v%d" % (t4, t3), V(t4), V(t3))
    vv("v_lshlrev_b32 v%d, 8, v%d" % (t4, t4), V(t4), V(t4))
    vv("v_and_b32 v%d, 3, v%d" % (t3, t3), V(t3), V(t3))
    vv("v_lshl_add_u32 v%d, v%d, 4, v%d" % (t3, t3, t4), V(t3), V(t3) + V(t4))
    vv("v_lshrrev_b32 v%d, 4, v0" % t4, V(t4), V(0))
    vv("v_lshlrev_b32 v%d, 6, v%d" % (t4, t4), V(t4), V(t4))
    vv("v_add3_u32 v%d, v%d, v%d, s33" % (t3, t3, t4), V(t3), V(t3) + V(t4))
    vv("v_add_u32 v%d, 816, v%d" % (t4, t4), V(t4), V(t4))
    vv("v_cndmask_b32 v%d, v%d, v%d, vcc" % (V_SH, t4, t3), V(V_SH), V(t4) + V(t3))
    ss("s_mov_b32 s6, %d" % XBYTES); ss("s_mov_b32 s7, 0x00020000"); ss("s_and_b32 s5, s5, 0xffff")
    mreg = 64 if STAMP else 94
    ss("s_mov_b32 s%d, 0x03ff03ff" % mreg); ss("s_mov_b32 s%d, 0x03ff03ff" % (mreg + 1))
    T_setup = Task('setup', [], 0, 0); T_setup.done_at = 0
    T_pp = {}
    prev = T_setup
    for r in range(S - 1, -1, -1):
        rd = {}; cv = {}; wr = {}
        for j in range(4):
            t = PT[j]
            rd[j] = [(lambda t=t, sl=sl, ar=accreg[sl, r][1] + j: va("v_accvgpr_read_b32 v%d, a%d" % (t + sl, ar), V(t + sl), A(ar))) for sl in range(3)]
            cv[j] = [lambda t=t: va("v_cvt_pk_bf16_f32 v%d, v%d, v%d" % (t, t, t + 1), V(t), V(t, 2)), lambda t=t: va("v_cvt_pk_bf16_f32 v%d, v%d, 0" % (t + 1, t + 2), V(t + 1), V(t + 2))]
            wr[j] = [lambda t=t, j=j, r=r: E.dswrite("ds_write_b64 v%d, v[%d:%d] offset:%d" % (V_WP, t, t + 1, (r * 16 + j) * 256), V(t, 2), V(V_WP))]
        ins = rd[0] + rd[1] + cv[0] + rd[2] + wr[0] + cv[1] + rd[3] + wr[1] + cv[2] + cv[3] + wr[2] + wr[3]
        lo = max(acc_last[sl, r] for sl in range(3)) + 6
        T_pp[r] = Task('pp%d' % r, ins, lo, step_end[r] + 4, [prev]); prev = T_pp[r]; tasks.append(T_pp[r])
    RT = late[0:2]
    order = list(range(S - 1, -1, -1))
    T_rp = {}
    for si, r in enumerate(order):
        se = step_end[r]
        ins = []
        for j in range(4):
            t = RT[si % 2] + j
            r1 = accreg[3, r][1] + j; r2 = accreg[4, r][1] + j
            ins.append(lambda t=t, r1=r1, r2=r2: va("v_cvt_pk_bf16_f32 v%d, v%d, v%d" % (t, r1, r2), V(t), V(r1) + V(r2)))
        for j in range(4):
            t = RT[si % 2] + j
            ins.append(lambda t=t, j=j, r=r: E.dswrite("ds_write_b32 v%d, v%d offset:%d" % (V_WR, t, (r * 16 + j) * 256), V(t), V(V_WR), tok=('rp', r)))
        T_rp[r] = Task('rp%d' % r, ins, se + 4, se + 10, [T_pp[r]])
        tasks.append(T_rp[r])
    B128 = env('B128', 1)
    lateA = [x for x in late if x not in RT]
    def inv_seq(rows, AFp, DIp, OUTp):
        na, nd, no = len(AFp) // 4, len(DIp) // 4, len(OUTp) // 2
        def reads(si):
            r = rows[si]
            return [lambda a=a, r=r, f=AFp[4 * (si % na) + a]: E.dsread("ds_read_b128 v[%d:%d], v%d offset:%d" % (f, f + 3, V_IR, (r * 16 + a) * 256), V(f, 4), V(V_IR)) for a in range(4)]
        def mm(si):
            return [lambda a=a: E.mfma(('v', DIp[4 * (si % nd) + a]), ('v', AFp[4 * (si % na) + a]), ('v', AT), None) for a in range(4)]
        def cw(si):
            r = rows[si]; ins = []
            D = [DIp[4 * (si % nd) + a] for a in range(4)]
            if not B128:
                for a in range(4):
                    d = D[a]
                    ins.append(lambda d=d: va("v_cvt_pk_bf16_f32 v%d, v%d, v%d" % (d, d, d + 1), V(d), V(d, 2)))
                    ins.append(lambda d=d: va("v_cvt_pk_bf16_f32 v%d, v%d, v%d" % (d + 1, d + 2, d + 3), V(d + 1), V(d + 2, 2)))
            if B128:
                for p in range(2):
                    d0 = D[2 * p]
                    ins.append(lambda d0=d0: va("v_cvt_pk_bf16_f32 v%d, v%d, v%d" % (d0, d0, d0 + 1), V(d0), V(d0, 2)))
                    ins.append(lambda d0=d0: va("v_cvt_pk_bf16_f32 v%d, v%d, v%d" % (d0 + 1, d0 + 2, d0 + 3), V(d0 + 1), V(d0 + 2, 2)))
                for p in range(2):
                    d0, d1 = D[2 * p], D[2 * p + 1]
                    ins.append(lambda d0=d0, d1=d1: va("v_cvt_pk_bf16_f32 v%d, v%d, v%d" % (d0 + 2, d1, d1 + 1), V(d0 + 2), V(d1, 2)))
                    ins.append(lambda d0=d0, d1=d1: va("v_cvt_pk_bf16_f32 v%d, v%d, v%d" % (d0 + 3, d1 + 2, d1 + 3), V(d0 + 3), V(d1 + 2, 2)))
                for p in range(2):
                    d0 = D[2 * p]
                    ins.append(lambda d0=d0: va("v_permlane16_swap_b32 v%d, v%d" % (d0, d0 + 2), V(d0) + V(d0 + 2), V(d0) + V(d0 + 2), perm=True))
                    ins.append(lambda d0=d0: va("v_permlane16_swap_b32 v%d, v%d" % (d0 + 1, d0 + 3), V(d0 + 1) + V(d0 + 3), V(d0 + 1) + V(d0 + 3), perm=True))
                if env('DST', 1):
                    def both(r=r, D=D):
                        e("s_mov_b32 s33, %d" % (r * ROWB))
                        E._need(V(D[0], 4) + V(D[2], 4))
                        E._pad(max(E._dist(V(D[0], 4) + V(D[2], 4), {'mfma': 8}), 0))
                        if env('XM', 1): e("s_mov_b64 exec, s[94:95]" if not STAMP else "s_mov_b64 exec, s[64:65]")
                        for p in range(2):
                            d0 = D[2 * p]
                            if env('NOOUT', 0) == 1 or (env('NOOUT', 0) == 2 and p): continue
                            E.vstore("buffer_store_dwordx4 v[%d:%d], v%d, s[4:7], s33 offen%s" % (d0, d0 + 3, V_O0 + p, env('OSF', '')), V(d0, 4), V(V_O0 + p))
                        if env('XM', 1): e("s_mov_b64 exec, -1")
                        if str(r) in env('WB', '').split(','):
                            e("s_lshl_b32 s34, s2, 2"); e("s_add_u32 s34, s34, s24")
                            e("s_cmp_ge_u32 s34, %d" % env('WBN', 32)); e("s_cbranch_scc1 K2_nowb%d" % r)
                            e("s_cmp_lg_u32 s24, 0"); e("s_cbranch_scc1 K2_nowb%d" % r)
                            e("buffer_wbl2 sc1")
                            E.label("K2_nowb%d" % r)
                    ins.append(both)
                    return ins
                for p in range(2):
                    d0 = D[2 * p]
                    ins.append(lambda d0=d0, p=p, r=r: E.dswrite("ds_write_b128 v%d, v[%d:%d] offset:%d" % (V_SW, d0, d0 + 3, (r * 4 + 2 * p) * 512), V(d0, 4), V(V_SW)))
            else:
                for a in range(4):
                    d = D[a]
                    ins.append(lambda d=d, a=a, r=r: E.dswrite("ds_write_b64 v%d, v[%d:%d] offset:%d" % (V_SW, d, d + 1, (r * 4 + a) * 512), V(d, 2), V(V_SW)))
            for p in range(2):
                o = OUTp[2 * (si % no) + p]
                ins.append(lambda o=o, p=p, r=r: E.dsread("ds_read_b128 v[%d:%d], v%d offset:%d" % (o, o + 3, V_SR, (r * 4 + 2 * p) * 512), V(o, 4), V(V_SR)))
            return ins
        def st(si):
            if env('DST', 1): return []
            r = rows[si]; ins = [lambda r=r: e("s_mov_b32 s33, %d" % (r * ROWB))]
            for p in range(2):
                o = OUTp[2 * (si % no) + p]
                if env('NOOUT', 0): continue
                ins.append(lambda o=o, p=p: E.vstore("buffer_store_dwordx4 v[%d:%d], v%d, s[4:7], s33 offen%s" % (o, o + 3, V_O0 + p, env('OSF', '')), V(o, 4), V(V_O0 + p)))
            return ins
        n = len(rows); seq = []
        head = []
        for si in range(min(na, n)): head += reads(si)
        for si in range(n + 2):
            if si < n: seq += mm(si)
            if si + na < n: seq += reads(si + na)
            if no == 1 and 0 <= si - 2 < n: seq += st(si - 2)
            if 0 <= si - 1 < n: seq += cw(si - 1)
            if no > 1 and 0 <= si - 2 < n: seq += st(si - 2)
        return head, seq
    NA = env('NA', 4 if FIN == 1 else 7)
    rowsA = order[:NA]; rowsB = order[NA:]
    T_A = None
    if NA and FIN == 1:
        assert len(lateA) >= 16, lateA
        hA, sA = inv_seq(rowsA, lateA[0:8], lateA[8:16], [lateA[16], lateA[17]] if len(lateA) >= 18 else [0, 0])
        def barA(): E._need([('rp', rowsA[-1])]); E.barrier()
        T_barA = Task('barA', [barA], 0, step_end[rowsA[-1]] + 12, [(T_rp[rowsA[-1]], env('LBA', 4))])
        T_A = Task('invA', hA + sA, 0, N + 500, [T_barA])
        tasks += [T_barA, T_A]
    if NA and FIN == 2:
        assert len(lateA) >= 16, lateA
        AF2 = lateA[0:8]; DI2 = lateA[8:16]
        L1, L2, L3 = env('L1', 4), env('L2', 7), env('L3', 3)
        pb = None; pm = {}; pc = {}
        for si, r in enumerate(rowsA):
            se = step_end[r]
            def bar(r=r):
                if env('NOBAR', 0) in (1, 2):
                    if env('NOBAR', 0) == 2: E._need([('rp', r)])
                    return
                E._need([('rp', r)]); E.barrier()
            tb_ = Task('bar%d' % r, [bar], 0, se + 12, [(T_rp[r], L1)] + ([pb] if pb else []))
            pb = tb_
            af = AF2[4 * (si % 2):4 * (si % 2) + 4]; di = DI2[4 * (si % 2):4 * (si % 2) + 4]
            h_, s_ = inv_seq([r], af, di, [0, 0])
            mms, rest = s_[:4], s_[4:]
            t1_ = Task('rd%d' % r, h_, 0, se + 16, [tb_] + ([pm[si - 2]] if si >= 2 else []))
            t2_ = Task('mm%d' % r, mms, 0, se + 26, [(t1_, L2)] + ([pc[si - 2]] if si >= 2 else []))
            t3_ = Task('cw%d' % r, rest, 0, se + 40, [(t2_, L3)])
            pm[si] = t2_; pc[si] = t3_
            tasks += [tb_, t1_, t2_, t3_]
    def final():
        used = set(lateA[:18]) if NA else set()
        pool = sorted(set([accreg[sl, r][1] for sl in (3, 4) for r in rowsA] + [r_[1] for r_ in vlast.keys() if r_ not in reserved]) - set(RT) - used)
        nb = len(rowsB)
        hB, sB = inv_seq(rowsB, pool[0:4 * min(nb, 4)], pool[16:24], pool[24:28])
        E.wait(None, 0)
        if STAMP == 3: e("s_memtime s[72:73]")
        E.barrier()
        if STAMP == 3: e("s_memtime s[74:75]")
        for f in hB: f()
        if T_A is not None:
            for f in T_A.rest: f()
        for x in deferred:
            for f in x: f()
        if STAMP == 3: e("s_memtime s[84:85]")
        for k_, f in enumerate(sB):
            f()
            if STAMP == 3 and k_ == len(sB) // 2: e("s_memtime s[86:87]")
    deferred = []
    def budget(i):
        if i >= marks['F']: return env('BF', 3)
        if i >= TEMP_T: return env('BP', 2)
        return 1
    MAXF = env('MAXF', 2)
    delay = {}
    for i in range(1, N + 1):
        k = 0
        while True:
            avail = [x for x in tasks if x.ins and (x.lo <= i or i == N) and all(d.done_at is not None and (i == N or i >= d.done_at + lg) for d, lg in x.deps)]
            if not avail: break
            avail.sort(key=lambda x: x.hi)
            if i < N:
                b = budget(i) - cnt[i]
                urgent = False
                if b <= k:
                    if k >= max(MAXF, budget(i)) - cnt[i]: break
                    tot = 0
                    for y in sorted([x for x in tasks if x.ins and x.lo <= i + 40 and x.name == 'sh'], key=lambda x: x.hi):
                        tot += len(y.ins)
                        cap = sum(1 for g in range(i + 1, min(y.hi + 1, N)) if cnt[g] == 0)
                        if tot - 1 > cap * env('URGF', 0.9): urgent = True; break
                    if not urgent: break
            x = avail[0]
            if i == N and x.name == 'invA':
                x.rest = list(x.ins); x.ins = []; x.done_at = i; continue
            if i == N and x.name[:2] in ('mm', 'cw'):
                deferred.append(list(x.ins)); x.ins = []; x.done_at = i; continue
            if x.name == 'sh': assert i <= x.hi, ("shift late", i, x.hi)
            gap[i].append(('ins', x.ins.pop(0), x.name)); k += 1
            if not x.ins: x.done_at = i
        cnt[i] += k
    if T_A is not None and not hasattr(T_A, 'rest'): T_A.rest = []
    assert all(not x.ins for x in tasks), [x.name for x in tasks if x.ins]
    sys.stderr.write("K2 tail after last MFMA: %d instr; done: %s\n" % (len(gap[N]), " ".join("%s@%d" % (x.name, x.done_at - marks['F']) for x in tasks if x.name[:2] in ('pp', 'ba', 'cw'))))
    KN = "FU" if FUSED else "K2"
    FST = env('FSTAMP', 0)
    fs_regs = {1: 88, 2: 90, 3: 92, 4: 96, 5: 98, 6: 82}
    def fs2(n): e("s_memrealtime s[%d:%d]" % (fs_regs[n], fs_regs[n] + 1))
    G['fs2'] = fs2
    def fstamp(n):
        if env('FS2', 0) and n in (3, 4, 5): return
        if FST and n in fs_regs: e("s_memrealtime s[%d:%d]" % (fs_regs[n], fs_regs[n] + 1))
    if FUSED:
        import pagen
        G['fstamp'] = (lambda n: fstamp(n) if n < 3 else None)
        e("s_load_dwordx4 s[84:87], s[0:1], 0" if not FST else "s_load_dwordx4 s[84:87], s[0:1], 0")
        e("s_load_dwordx4 s[4:7], s[0:1], 16")
        e("s_load_dwordx2 s[8:9], s[0:1], 32")
        if FST: e("s_memrealtime s[100:101]")
        e("s_getpc_b64 s[10:11]")
        E.label("FU_pc")
        e("s_cmp_ge_u32 s2, 256"); e("s_cbranch_scc1 K2_end")
        va("v_lshrrev_b32 v3, 6, v0", V(3), V(0))
        va("v_and_b32 v0, 63, v0", V(0), V(0))
        E.nop(1)
        e("v_readfirstlane_b32 s24, v3")
        pagen.phase_a(E, G)
        E.label("FU_pb")
        E.vm = []; E.lg = []; E.w = {}; E.mc = {}; E.sd = {}
        e("s_waitcnt lgkmcnt(0)")
        e("s_mov_b32 s88, s60"); e("s_mov_b32 s89, s61")
        e("s_mov_b32 s84, s8"); e("s_and_b32 s85, s9, 0xffff"); e("s_mov_b32 s86, %d" % XF_SIZE); e("s_mov_b32 s87, 0x00020000")
        if env('CPF', 1):
            e("s_cmp_ge_u32 s2, 8"); e("s_cbranch_scc1 K2_nocpf")
            e("s_lshl_b32 s33, s24, 13")
            va("v_lshlrev_b32 v4, 7, v0", V(4), V(0))
            va("v_add_u32 v4, s33, v4", V(4), V(4))
            va("v_min_u32 v4, K2_code_end-FU_pc-4, v4", V(4), V(4))
            E.vload("global_load_dword v72, v4, s[10:11]", V(72), V(4))
            E.label("K2_nocpf")
            E.vm = []
    else:
        e("s_load_dwordx2 s[8:9], s[0:1], 32")
        e("s_load_dwordx2 s[4:5], s[0:1], 16")
        if STAMP: e("s_memtime s[70:71]"); e("s_memrealtime s[80:81]")
        e("s_getpc_b64 s[10:11]")
        E.label("K2_pc")
        e("s_cmp_ge_u32 s2, 256"); e("s_cbranch_scc1 K2_end")
        va("v_lshrrev_b32 v3, 6, v0", V(3), V(0))
        if env('CPF', 1):
            va("v_lshlrev_b32 v4, 7, v0", V(4), V(0))
            va("v_min_u32 v4, K2_code_end-K2_pc-4, v4", V(4), V(4))
        va("v_and_b32 v0, 63, v0", V(0), V(0))
        E.nop(1)
        e("v_readfirstlane_b32 s24, v3")
        if env('CPF', 1):
            e("s_cmp_ge_u32 s2, 8"); e("s_cbranch_scc1 K2_nocpf")
            E.vload("global_load_dword v255, v4, s[10:11]", V(255), V(4))
            E.label("K2_nocpf")
    FL_OFF = G.get('FL_OFF', 0)
    nsig = [0]
    def signal12(plane=6144, tv=(10, 11), srcs=(78, 79)):
        for o in srcs:
            e("s_cmp_eq_u32 s%d, 0" % o); e("s_cbranch_scc1 FU_nosig%d_%d" % (nsig[0], o))
            e("s_add_u32 s33, s%d, %d" % (o, plane))
            e("v_mov_b32 v%d, s33" % tv[0]); e("v_mov_b32 v%d, s82" % tv[1])
            e("s_mov_b64 exec, 1")
            e("global_atomic_swap v%d, v%d, s[8:9] sc1" % tv)
            e("s_mov_b64 exec, -1")
            E.label("FU_nosig%d_%d" % (nsig[0], o))
        nsig[0] += 1
    def signal1(tv):
        e("s_cmp_eq_u32 s80, 3"); e("s_cselect_b32 s80, 0, s78")
        signal12(6144, tv, (80, 81))
    e("s_and_b32 s25, s2, 7"); e("s_lshr_b32 s26, s2, 3")
    e("s_mul_i32 s27, s26, 43"); e("s_lshr_b32 s27, s27, 8"); e("s_mul_i32 s28, s27, 6"); e("s_sub_u32 s28, s26, s28")
    e("s_lshl_b32 s27, s27, 3"); e("s_add_u32 s27, s27, s25")
    e("s_cmp_lt_u32 s26, 30"); e("s_cbranch_scc1 K2_map")
    e("s_lshl_b32 s29, s25, 1"); e("s_add_u32 s29, s29, s26"); e("s_sub_u32 s29, s29, 30")
    e("s_mul_i32 s27, s29, 43"); e("s_lshr_b32 s27, s27, 8"); e("s_mul_i32 s28, s27, 6"); e("s_sub_u32 s28, s29, s28"); e("s_add_u32 s27, s27, 40")
    E.label("K2_map")
    e("s_cmp_ge_u32 s27, %d" % NREG); e("s_cbranch_scc1 %s" % ("FU_idle" if FUSED else "K2_end"))
    if FUSED:
        FL_OFF = G['FL_OFF']
        e("s_lshl_b32 s33, s27, 7"); e("s_max_u32 s34, s27, 1"); e("s_sub_u32 s34, s34, 1"); e("s_lshl_b32 s34, s34, 7")
        va("v_mov_b32 v252, s33", V(252), []); va("v_mov_b32 v253, s34", V(253), [])
        va("v_cmp_gt_u32 s[72:73], 32, v0", [], V(0)); E.nop(2)
        va("v_cndmask_b32 v252, v253, v252, s[72:73]", V(252), V(252) + V(253))
        va("v_and_b32 v253, 31, v0", V(253), V(0))
        va("v_lshl_add_u32 v252, v253, 2, v252", V(252), V(252) + V(253))
        va("v_add_u32 v252, %d, v252" % FL_OFF, V(252), V(252))
        va("v_add_u32 v253, 6144, v252", V(253), V(252))
        va("v_add_u32 v254, 20480, v252", V(254), V(252))
        va("v_min_u32 v255, 55, v0", V(255), V(0))
        va("v_lshlrev_b32 v255, 2, v255", V(255), V(255))
        e("s_and_b32 s33, s2, 7"); e("s_lshl_b32 s33, s33, 10"); e("s_add_u32 s33, s33, %d" % (FL_OFF + 12288))
        va("v_add_u32 v255, s33, v255", V(255), V(255))
        if env('EPOLL', 2) == 1:
            e("s_cmp_lg_u32 s24, 3"); e("s_cbranch_scc1 FU_noep")
            e("global_load_dword v9, v252, s[8:9] sc1"); e("global_load_dword v8, v255, s[8:9] sc1")
            E.label("FU_noep")
    va("v_lshlrev_b32 v%d, 4, v0" % V_L16, V(V_L16), V(0))
    va("v_and_b32 v3, 15, v0", V(3), V(0))
    va("v_cmp_ne_u32 vcc, 0, v3", [], V(3))
    va("v_lshrrev_b32 v4, 4, v0", V(4), V(0))
    va("v_lshlrev_b32 v4, 6, v4", V(4), V(4))
    va("v_lshrrev_b32 v5, 2, v3", V(5), V(3))
    va("v_lshl_add_u32 v5, v5, 8, v4", V(5), V(5) + V(4))
    va("v_and_b32 v6, 3, v0", V(6), V(0))
    va("v_lshl_add_u32 v%d, v6, 4, v5" % V_FR, V(V_FR), V(5) + V(6))
    va("v_min_u32 v3, 5, v3", V(3), V(3))
    va("v_add_u32 v3, %d, v3" % (S - 6), V(3), V(3))
    va("v_lshlrev_b32 v3, 10, v3", V(3), V(3))
    va("v_add3_u32 v%d, v3, v4, s%d" % (V_HOFF, 33) if False else "v_add_u32 v3, v3, v4", V(3), V(3) + V(4))
    va("v_add_u32 v%d, 816, v3" % V_HOFF, V(V_HOFF), V(3))
    e("s_lshl_b32 s29, s27, 2"); e("s_add_u32 s29, s29, s24"); e("s_mul_i32 s29, s29, %d" % XW)
    e("s_max_u32 s30, s27, 1"); e("s_sub_u32 s30, s30, 1"); e("s_lshl_b32 s30, s30, 2"); e("s_add_u32 s30, s30, s24"); e("s_mul_i32 s30, s30, %d" % XW)
    e("s_lshl_b32 s31, s28, 2"); e("s_add_u32 s31, s31, s24"); e("s_mul_i32 s31, s31, %d" % WW); e("s_add_u32 s31, s31, %d" % WF_OFF)
    ROT = env('ROT', 0)
    if ROT:
        e("s_lshr_b32 s33, s27, 3"); e("s_add_u32 s33, s33, s28")
        if ROT == 2:
            e("s_and_b32 s32, s33, 1"); e("s_xor_b32 s36, s32, 1"); e("s_mov_b32 s39, 2")
        else:
            e("s_mul_i32 s34, s33, 86"); e("s_lshr_b32 s34, s34, 8"); e("s_mul_i32 s34, s34, 3"); e("s_sub_u32 s32, s33, s34")
            e("s_add_u32 s36, s32, 1"); e("s_cmp_eq_u32 s36, 3"); e("s_cselect_b32 s36, 0, s36")
            e("s_add_u32 s39, s36, 1"); e("s_cmp_eq_u32 s39, 3"); e("s_cselect_b32 s39, 0, s39")
    else:
        e("s_mov_b32 s32, 0"); e("s_mov_b32 s36, 1"); e("s_mov_b32 s39, 2")
    SRD = {'X': [12, 40, 44], 'W': [16, 48, 52], 'H': [20, 56, 60]}
    CH = [32, 36, 39]
    def srd_off(kind, ch):
        base = {'X': 29, 'W': 31, 'H': 30}[kind]; stride = {'X': 32768, 'W': 28672, 'H': 32768}[kind]
        sr = SRD[kind][ch]
        e("s_mul_i32 s%d, s%d, %d" % (sr + 2, CH[ch], stride)); e("s_add_u32 s%d, s%d, s%d" % (sr + 2, sr + 2, base))
    def srd_fin(kind, ch):
        sr = SRD[kind][ch]; sz = {'X': 32768, 'W': 28672, 'H': XREG + 32768}[kind]
        e("s_add_u32 s%d, s8, s%d" % (sr, sr + 2)); e("s_addc_u32 s%d, s9, 0" % (sr + 1)); e("s_and_b32 s%d, s%d, 0xffff" % (sr + 1, sr + 1))
        e("s_mov_b32 s%d, %d" % (sr + 2, sz)); e("s_mov_b32 s%d, 0x00020000" % (sr + 3))
    for kind in 'XW': srd_off(kind, 0)
    if not FUSED: e("s_waitcnt lgkmcnt(0)")
    for kind in 'XW': srd_fin(kind, 0)
    CST = [None, 25, 26, 64, 65, 66, 67, 68] if not STAMP else [None, 25, 26, 96, 97, 98, 99, 100]
    need0 = sorted(set((f.off % (32768 if f.kind != 'W' else 28672)) // 4096 for f in pre) - {0})
    for j in need0: e("s_mov_b32 s%d, %d" % (CST[j], j * 4096))
    def late_srds():
        for j in range(1, 8):
            if j not in need0: e("s_mov_b32 s%d, %d" % (CST[j], j * 4096))
        for kind, ch in [('H', 0), ('X', 1), ('W', 1), ('H', 1), ('X', 2), ('W', 2), ('H', 2)]:
            srd_off(kind, ch); srd_fin(kind, ch)
    def load(f, slot):
        if slot > 100 and ((env('SKIPW', 0) and f.kind == 'W') or (env('SKIPX', 0) and f.kind != 'W')): return
        stride = 28672 if f.kind == 'W' else 32768
        off = f.off % stride
        assert f.off // stride == f.ch
        so = off // 4096; io = off % 4096
        sreg = "0" if so == 0 else "s%d" % CST[so]
        kind = {'X': 'X', 'W': 'W', 'H': 'H', 'S': 'H'}[f.kind]
        sr = SRD[kind][f.ch]
        vo = {'X': V_FR, 'W': V_L16, 'H': V_HOFF, 'S': V_SH}[f.kind]
        E.vload("buffer_load_dwordx4 %s, v%d, s[%d:%d], %s offen offset:%d%s" % (rn(f.reg), vo, sr, sr + 3, sreg, io, env('LDW', ' sc1') if f.kind == 'W' else env('LDX', ' sc1')), regs(f.reg), V(vo), tok=('slot', slot))
    assert all(f.kind in 'XW' and f.ch == 0 for f in pre), pre
    e("s_add_u32 s10, s10, K2_at-%s_pc" % KN); e("s_addc_u32 s11, s11, 0")
    e("s_lshl_b32 s33, s24, 10")
    va("v_add_u32 v3, s33, v%d" % V_L16, V(3), V(V_L16))
    def touch(c): raise Exception('touch disabled')
    NP1 = env('NP1', 12)
    SPIN = env('SPIN', 400000)
    def poll_loads(phase, raw=False):
        ld = (lambda t, d, a: e(t)) if raw else (lambda t, d, a: E.vload(t, V(d), V(a), tok=('slot', slot_now[0])))
        if phase == 0:
            ld("global_load_dword v3, v252, s[8:9] sc1", 3, 252)
            ld("global_load_dword v8, v255, s[8:9] sc1", 8, 255)
        else:
            if raw: e("v_add_u32 v%d, %d, v252" % (252 + phase, 6144 if phase == 1 else 20480))
            ld("global_load_dword v3, v%d, s[8:9] sc1" % (252 + phase), 3, 252 + phase)
            ld("global_load_dword v%d, v255, s[8:9] offset:%d sc1" % (252 + phase, 256 * phase), 252 + phase, 255)
    def poll_test(phase, lab, raw=False):
        regs_ = [3, 8] if phase == 0 else [3, 252 + phase]
        for k_, r_ in enumerate(regs_):
            t = "v_cmp_ne_u32 s[%d:%d], s82, v%d" % (72 + 2 * k_, 73 + 2 * k_, r_)
            if raw: e(t)
            else: va(t, [], V(r_))
        e("s_nop 4")
        e("s_or_b64 s[72:73], s[72:73], s[74:75]")
        e("s_cmp_lg_u64 s[72:73], 0")
        e("s_cbranch_scc1 %s" % lab)
    if FUSED:
        E.vload("global_load_dwordx4 v[4:7], v3, s[10:11]", V(4, 4), V(3), tok=('slot', -1))
        late_srds()
        for fn in setup: fn()
        e("s_mov_b32 s33, 0")
        if env('EPOLL', 2) == 2:
            e("s_cmp_lg_u32 s24, 3"); e("s_cbranch_scc1 FU_noep")
            e("global_load_dword v9, v252, s[8:9] sc1"); e("global_load_dword v8, v255, s[8:9] sc1")
            E.label("FU_noep")
        E.wait(0, None)
        e("s_waitcnt vmcnt(0)")
        fstamp(3)
        e("s_cmp_lg_u32 s24, 3"); e("s_cbranch_scc1 FU_sig")
        if env('EPOLL', 2):
            e("v_mov_b32 v3, v9")
        else:
            poll_loads(0, raw=True)
            e("s_waitcnt vmcnt(0)")
        poll_test(0, "FU_poll0_again", raw=True)
        E.label("FU_poll0_ok")
        E.label("FU_sig")
        signal1((12, 13))
        E.barrier()
        fstamp(4)
        for f in pre: load(f, -1)
    else:
        for f in pre[:NP1]: load(f, -1)
        late_srds()
        for fn in setup: fn()
        for f in pre[NP1:]: load(f, -1)
        E.vload("global_load_dwordx4 v[4:7], v3, s[10:11]", V(4, 4), V(3), tok=('slot', -1))
    if STAMP and STAMP != 3: e("s_memtime s[72:73]")
    if FUSED:
        for ph in (1, 2):
            first = min(f.issue for f in frags if f.ch >= ph)
            mp2 = first - 1; mp1 = max(1, mp2 - env('MPL', 80))
            def p_issue(ph=ph): poll_loads(ph)
            def p_check(ph=ph):
                E._need(V(3) + V(252 + ph))
                poll_test(ph, "FU_poll%d_again" % ph)
                E.label("FU_poll%d_ok" % ph)
                E.barrier()
            gap[mp1].append(('ins', p_issue, 'poll')); gap[mp2].insert(0, ('ins', p_check, 'poll'))
            sys.stderr.write("fused: poll %d issued at %d, checked at %d\n" % (ph, mp1, mp2))
        D0 = env('DEF0', 110); DS_ = env('DEFS', 4)
        DR = [40, 44, 48, 52]
        seq = []
        for n_, (task, i) in enumerate([(t_, i_) for t_ in range(2) for i_ in range(4)]):
            r = DR[n_ % 4]
            def rd(r=r, task=task, i=i): E.dsread("ds_read_b128 v[%d:%d], v%d offset:%d" % (r, r + 3, 16 + i, task * 12352 + 768 * i + 128), V(r, 4), V(16 + i))
            def st_(r=r, task=task, i=i):
                e("s_add_u32 s33, s%d, %d" % (88 + task, i * XW + 2 * 32768))
                E.vstore("buffer_store_dwordx4 v[%d:%d], v11, s[84:87], s33 offen sc1" % (r, r + 3), V(r, 4), V(11), tok=('def2',))
            gap[D0 + n_ * DS_].append(('ins', rd, 'def')); gap[D0 + n_ * DS_ + 10].append(('ins', st_, 'def'))
        def sig2():
            E._need([('def2',)])
            signal12(20480, (12, 13))
        gap[D0 + 7 * DS_ + 10 + env('DEFW', 80)].append(('ins', sig2, 'def'))
    started = set()
    for i in range(N + 1):
        slot_now[0] = i
        if i == N and STAMP: e("s_memtime s[76:77]"); e("s_memrealtime s[82:83]")
        for x in gap[i]:
            if x[0] == 'load': load(x[1], i)
            elif x[0] == 'touch': touch(x[1])
            else: x[1]()
        if i == N:
            final(); break
        a, (ch, c, rho), w = ops[i]
        xf = XS[ch, c, rho] if (rho < 0 and (ch, c) in SHL) else X[ch, c, rho if rho >= 0 else rho + S]
        prewait(regs(xf.reg) + regs(w.reg))
        if STAMP:
            if i == 0 and STAMP != 3: e("s_memtime s[74:75]")
            if i == 0: e("s_memrealtime s[88:89]")
            m1, m2 = (N // 3, 2 * N // 3) if STAMP == 1 else (env('M1', 0), env('M2', 0))
            if STAMP != 3 and i == m1: e("s_memtime s[84:85]"); e("s_memrealtime s[90:91]")
            if STAMP != 3 and i == m2: e("s_memtime s[86:87]"); e("s_memrealtime s[92:93]")
        if i == 0: fstamp(5)
        E.mfma(accreg[a], xf.reg, w.reg, accreg[a] if a in started else None)
        started.add(a)
    if STAMP:
        e("s_memtime s[94:95]"); e("s_memrealtime s[66:67]"); e("s_waitcnt lgkmcnt(0)")
        e("s_add_u32 s4, s8, %d" % ST_OFF); e("s_addc_u32 s5, s9, 0"); e("s_and_b32 s5, s5, 0xffff"); e("s_mov_b32 s6, %d" % (256 * 4 * 64))
        e("s_lshl_b32 s33, s2, 2"); e("s_add_u32 s33, s33, s24"); e("s_lshl_b32 s33, s33, 6")
        for k2, sr in enumerate((70, 72, 74, 76, 80, 82, 84, 86, 88, 90, 92, 94, 66)):
            e("v_mov_b32 v6, s%d" % sr); e("v_mov_b32 v5, %d" % (4 * k2)); e("s_mov_b64 exec, 1")
            e("buffer_store_dword v6, v5, s[4:7], s33 offen"); e("s_mov_b64 exec, -1")
    if FST == 2:
        fstamp(6); e("s_waitcnt lgkmcnt(0)")
        e("s_load_dwordx2 s[4:5], s[0:1], 24"); e("s_waitcnt lgkmcnt(0)")
        e("s_cmp_eq_u32 s2, 37"); e("s_cselect_b32 s33, 4, 0")
        e("s_cmp_eq_u32 s2, 150"); e("s_cselect_b32 s33, 32, s33")
        e("s_cmp_eq_u32 s33, 0"); e("s_cbranch_scc1 K2_end")
        e("s_cmp_lg_u32 s24, 2"); e("s_cbranch_scc1 K2_end")
        for k2, kk in enumerate([2, 3, 4, 5, 6]):
            e("s_sub_u32 s34, s%d, s100" % fs_regs[kk])
            e("v_mov_b32 v6, s34"); e("v_mov_b32 v5, s33"); e("v_add_u32 v5, %d, v5" % (4 * k2)); e("s_mov_b64 exec, 1")
            e("global_store_dword v5, v6, s[4:5]"); e("s_mov_b64 exec, -1")
    elif FST:
        fstamp(6); e("s_waitcnt lgkmcnt(0)")
        e("s_add_u32 s4, s8, %d" % ST_OFF); e("s_addc_u32 s5, s9, 0"); e("s_and_b32 s5, s5, 0xffff"); e("s_mov_b32 s6, %d" % (256 * 4 * 64)); e("s_mov_b32 s7, 0x00020000")
        e("s_lshl_b32 s33, s2, 2"); e("s_add_u32 s33, s33, s24"); e("s_lshl_b32 s33, s33, 6")
        for k2, sr in enumerate([100] + [fs_regs[k_] for k_ in range(1, 7)]):
            e("v_mov_b32 v6, s%d" % sr); e("v_mov_b32 v5, %d" % (4 * k2)); e("s_mov_b64 exec, 1")
            e("buffer_store_dword v6, v5, s[4:7], s33 offen"); e("s_mov_b64 exec, -1")
    E.label("K2_end")
    e("s_endpgm")
    if FUSED:
        E.label("FU_idle")
        for task in range(2):
            for i in range(4):
                r = 72 + 16 * task + 4 * i
                e("ds_read_b128 v[%d:%d], v%d offset:%d" % (r, r + 3, 16 + i, task * 12352 + 768 * i + 128))
        e("s_waitcnt lgkmcnt(0)")
        for task in range(2):
            for i in range(4):
                r = 72 + 16 * task + 4 * i
                e("s_add_u32 s33, s%d, %d" % (88 + task, i * XW + 2 * 32768))
                e("buffer_store_dwordx4 v[%d:%d], v11, s[84:87], s33 offen sc1" % (r, r + 3))
        e("s_waitcnt vmcnt(0)")
        signal1((12, 13))
        signal12(20480)
        e("s_endpgm")
        for n_ in range(3):
            E.label("FU_poll%d_again" % n_)
            e("s_mov_b32 s34, 0")
            E.label("FU_poll%d_loop" % n_)
            e("s_add_u32 s34, s34, 1"); e("s_cmp_ge_u32 s34, %d" % SPIN); e("s_cbranch_scc1 FU_poll%d_ok" % n_)
            e("s_sleep %d" % env('PSL', 16))
            poll_loads(n_, raw=True); e("s_waitcnt vmcnt(0)")
            poll_test(n_, "FU_poll%d_loop" % n_, raw=True)
            e("s_branch FU_poll%d_ok" % n_)
        pagen.tables(E, G)
    tb = np.zeros((4, 64, 8), dtype=np.float64)
    for v in range(4):
        for l in range(64):
            n, kg = l % 16, l // 16
            if n >= cfg.m: continue
            if kg < 2:
                for ww in range(2):
                    for sl in range(3): tb[v, l, 4 * ww + sl] = cfg.ATs[2 * kg + ww, sl, n]
            elif kg == 2:
                for p in range(4):
                    ww = p ^ v
                    tb[v, l, 2 * p] = cfg.ATs[ww, 3, n]; tb[v, l, 2 * p + 1] = cfg.ATs[ww, 4, n]
    E.raw(".p2align 8"); E.label("K2_at"); E.raw(G['table'](bf16bits(tb).reshape(-1)))
    E.label("K2_code_end")
    sys.stderr.write("K2: %d MFMA main, %d instr, %d waits, %d nops\n" % (N, E.ninst, E.nwait, E.nnop))
    name = "standalone__fft_conv__vision_kernel" if FUSED else "k2_kernel"
    return G['head'](name) + E.text() + G['KD'] % (name, 512, 102, 256), LDS
```

```python
import sys, os
import numpy as np
from emit import *
from consts import bf16bits, bf16r

class Task:
    def __init__(s, name, ins, lo, hi, deps=()):
        s.name, s.ins, s.lo, s.hi = name, list(ins), lo, hi
        s.deps = [d if isinstance(d, tuple) else (d, 0) for d in deps]
        s.done_at = None

def gen_k2(G):
    FUSED = G.get('FUSED', 0)
    env = G['env']; cfg = G['cfg']; S = G['S']; NREG = G['NREG']; NC = G['NC']; NCH = G['NCH']
    XW, XREG, XF_SIZE, WW, WF_OFF, WF_SIZE, ST_OFF, XBYTES, ROWB = [G[k] for k in 'XW XREG XF_SIZE WW WF_OFF WF_SIZE ST_OFF XBYTES ROWB'.split()]
    STAMP = env('STAMP', 0)
    PACE = env('PACE', 5); WLAT = env('WLAT', 90)
    E = Em(); e = E.salu
    va = lambda t, d, s_, **kw: E.valu(t, d, s_, **kw)
    class Frag:
        def __init__(s, kind, ch, c, idx, off):
            s.kind, s.ch, s.c, s.idx, s.off = kind, ch, c, idx, off
            s.first = None; s.last = None; s.reg = None; s.issue = None
        def __repr__(s): return "%s(ch%d c%d i%d)" % (s.kind, s.ch, s.c, s.idx)
    X = {}; Hf = {}; W = {}
    for ch in range(NCH):
        for c in range(NC):
            for r in range(S): X[ch, c, r] = Frag('X', ch, c, r, ((ch * NC + c) * S + r) * 1024)
            Hf[ch, c] = Frag('H', ch, c, 0, ((ch * NC + c) * S) * 1024)
            for kh in range(7): W[ch, c, kh] = Frag('W', ch, c, kh, ((ch * NC + c) * 7 + kh) * 1024)
    SHL = set([(NCH - 1, 2), (NCH - 1, 3)]) if env('SHL', 1) else set()
    XS = {}
    for (ch_, c_) in SHL:
        for n in range(1, 7): XS[ch_, c_, -n] = Frag('S', ch_, c_, -n, ((ch_ * NC + c_) * S + S - n) * 1024)
    ops = []
    def op(sl, r, ch, c, kh, cw): ops.append(((sl, r), (ch, c, r - kh), W[ch, cw, kh]))
    marks = {}
    def pstage(ch):
        for hi_, hs in enumerate([[0, 1, 2, 3], [4, 5, 6]]):
            marks['P%d_%d' % (ch, hi_)] = len(ops)
            if ch == 0 and hi_ == 0 and env('WAVEF', 1):
                prs = sorted([(max(7 - (r - kh), kh + env('WFB', 0)), -r, kh) for r in range(S) for kh in hs])
                fl = 0
                for lev, mr, kh in prs:
                    r = -mr
                    seq = [(0, 0, 0), (1, 0, 1), (1, 1, 0), (2, 1, 1)]
                    if fl: seq = seq[::-1]
                    for sl, cx, cw in seq: op(sl, r, ch, cx, kh, cw)
                    fl ^= 1
                continue
            for r in range(S - 1, -1, -1):
                for kh in hs: op(0, r, ch, 0, kh, 0)
                for kh in hs[::-1]: op(1, r, ch, 0, kh, 1)
                for kh in hs: op(1, r, ch, 1, kh, 0)
                for kh in hs[::-1]: op(2, r, ch, 1, kh, 1)
    def rstage(ch, u):
        for r in range(S - 1, -1, -1):
            for kh in range(7): op(2 + u, r, ch, 1 + u, kh, 1 + u)
    for ch in range(NCH - 1):
        pstage(ch); rstage(ch, 1); rstage(ch, 2)
    ch = NCH - 1
    pstage(ch)
    FIN = env('FIN', 2)
    step_end = {}
    if FIN == 1:
        rstage(ch, 1)
        marks['F'] = len(ops)
        for r in range(S - 1, -1, -1):
            for kh in range(7): op(4, r, ch, 3, kh, 3)
            step_end[r] = len(ops) - 1
    else:
        marks['F'] = len(ops)
        for r in range(S - 1, -1, -1):
            for kh in range(7): op(3, r, ch, 2, kh, 2)
            for kh in range(6, -1, -1): op(4, r, ch, 3, kh, 3)
            step_end[r] = len(ops) - 1
    N = len(ops)
    use = {}; acc_last = {}
    for i, (a, xk, w) in enumerate(ops):
        use.setdefault(xk, [i, i])[1] = i
        if w.first is None: w.first = i
        w.last = i
        acc_last[a] = i
    shifts = []
    for (ch, c, r), f in X.items():
        f.first, f.last = use[ch, c, r]
        if (ch, c) in SHL: continue
        if (ch, c, r - S) in use:
            a, b = use[ch, c, r - S]
            assert f.last < a - 12, (ch, c, r, f.last, a)
            shifts.append([f, S - r, f.last, a]); f.last = b
    for key, f in XS.items(): f.first, f.last = use[key]
    for key in SHL: del Hf[key]
    for (ch, c), h in Hf.items():
        sh = [s_ for s_ in shifts if s_[0].ch == ch and s_[0].c == c]
        h.first = max(env('H0', 50), min(s_[2] for s_ in sh) - env('HEARLY', 20)); h.last = max(s_[3] for s_ in sh)
    V_L16, V_HOFF, V_FR = 1, 2, 247
    accreg = {}
    for sl in range(3):
        for r in range(S): accreg[sl, r] = ('a', 4 * (sl * S + r))
    RV = env('RV', 1)
    vbase = 8
    abase = 96
    for sl in (3, 4):
        for r in range(S):
            if RV: accreg[sl, r] = ('v', vbase); vbase += 4
            else: accreg[sl, r] = ('a', abase); abase += 4
    vfree = [('v', x) for x in range(vbase, 253, 4) if x not in ((244, 248, 252) if FUSED else (244, 248))]
    afree = [('a', x) for x in range(abase, 253, 4)]
    vlast = {r: -1 for r in vfree}
    frags = list(X.values()) + list(Hf.values()) + list(W.values()) + list(XS.values())
    frags.sort(key=lambda f: (f.first - (env('SEARLY', 30) if f.kind == 'S' else 0), {'W': 1, 'X': 0, 'H': 2, 'S': 3}[f.kind]))
    gap = [[] for _ in range(N + 1)]
    pending = list(frags); active = []; pre = []
    TEMP_T = marks['P2_1'] - env('TEMPE', 60)
    NTEMP = env('NTEMP', 4)
    reserved = vfree[-NTEMP:]
    def alloc(f):
        if f.kind in 'WS':
            if afree: return afree.pop(0)
            return None
        for r in vfree:
            if r in reserved and f.last >= TEMP_T: continue
            vfree.remove(r); return r
        return None
    def release(upto):
        for f in list(active):
            if f.last < upto:
                active.remove(f); (afree if f.reg[0] == 'a' else vfree).append(f.reg)
    while pending and len(pre) < env('NPRE', 16):
        f = pending.pop(0); f.reg = alloc(f); f.issue = -1; pre.append(f); active.append(f)
    lastload = -100
    for i in range(1, N):
        release(i - 1)
        pace = env('PACE0', PACE) if i < env('RAMP', 0) else PACE
        if pending and (i - lastload >= pace or pending[0].first - i < env('URG', 40)):
            f = pending[0]; r = alloc(f)
            if r is not None:
                f.reg = r; f.issue = i; active.append(f); pending.pop(0); gap[i].append(('load', f)); lastload = i
            elif f.first - i < 3: raise Exception("no register for %s at %d" % (f, i))
    assert not pending
    for f in frags:
        if f.reg[0] == 'v': vlast[f.reg] = max(vlast[f.reg], f.last)
    la = [f.first - f.issue for f in frags if f.issue > 0]
    sys.stderr.write("K2 lookahead (slots): min %d p10 %d median %d\n" % (min(la), np.percentile(la, 10), np.median(la)))
    TPF = env('TPF', 0); TP = env('TP', 6); TLEAD = env('TLEAD', 90); NT0 = env('NT0', 14)
    touches = []
    if TPF:
        cand = []
        for m in range(768 // 6):
            line = 6 * m + 3
            f = X[(6 * m // 8) // (NC * S), ((6 * m // 8) // S) % NC, (6 * m // 8) % S]
            cand.append((f.issue, 'X', m * 768))
        for m in range(672 // 5):
            fi = 5 * m // 8
            f = W[fi // (NC * 7), (fi // 7) % NC, fi % 7]
            cand.append((f.issue, 'W', m * 640))
        cand.sort()
        cand = [c for c in cand if c[0] > env('TSKIP', 0)]
        pre_t = cand[:NT0]; rest = cand[NT0:]
        touches = pre_t
        i = env('T0', 40)
        while rest and i < N:
            while rest and rest[0][0] - i < TLEAD: rest.pop(0)
            if not rest: break
            gap[i].append(('touch', rest.pop(0))); i += TP
        sys.stderr.write("K2 touches: %d in prologue, %d in loop\n" % (len(pre_t), sum(1 for g in gap for x in g if x[0] == 'touch')))
    cnt = [len(g) for g in gap]
    if env('PREDW', 1):
        order_ = pre + [x[1] for g in gap for x in g if x[0] == 'load']
        posn = {id(f): k for k, f in enumerate(order_)}
        done_ = -1; nw_ = 0
        for i, (a_, xk, w_) in enumerate(ops):
            ch_, c_, rho_ = xk
            xf_ = XS[xk] if (rho_ < 0 and (ch_, c_) in SHL) else X[ch_, c_, rho_ if rho_ >= 0 else rho_ + S]
            k = max(posn[id(xf_)], posn[id(w_)])
            if k > done_:
                while k + 1 < len(order_) and order_[k + 1].issue >= 0 and order_[k + 1].issue + WLAT <= i and order_[k + 1].issue < i: k += 1
                done_ = k; cnt[i] += 1; nw_ += 1
        sys.stderr.write("K2 predicted waits: %d\n" % nw_)
    tasks = []
    slot_now = [0]
    def prewait(rs):
        rs = set(rs); idx = None; cur = slot_now[0]
        for i, d in enumerate(E.vm):
            if d & rs: idx = i
        if idx is None: return
        while idx + 1 < len(E.vm):
            sl = [t[1] for t in E.vm[idx + 1] if t[0] == 'slot']
            if sl and sl[0] >= 0 and sl[0] + WLAT <= cur: idx += 1
            else: break
        E.wait(len(E.vm) - 1 - idx, None)
    def mk_shift(f, n):
        h = Hf[f.ch, f.c]
        ins = []
        if env('NODPP', 0): return [lambda: None]
        for d in range(4):
            def mv(d=d):
                r = f.reg[1] + d; prewait(V(r))
                va("v_mov_b32_dpp v%d, v%d row_shr:1 row_mask:0xf bank_mask:0xf" % (r, r), V(r), [], dpp=V(r))
            ins.append(mv)
        for d in range(4):
            def cm(d=d):
                r = f.reg[1] + d; hr = h.reg[1] + d; k = 6 - n
                prewait(V(hr))
                if k > 0: va("v_cndmask_b32_dpp v%d, v%d, v%d, vcc row_shl:%d row_mask:0xf bank_mask:0xf" % (r, hr, r, k), V(r), V(r), dpp=V(hr))
                else: va("v_cndmask_b32 v%d, v%d, v%d, vcc" % (r, hr, r), V(r), V(r) + V(hr))
            ins.append(cm)
        return ins
    for f, n, lo, hi in shifts:
        h = Hf[f.ch, f.c]
        lo2 = max(lo + 1, min(h.issue + env('HLAT', 60), hi - 20) if h.issue > 0 else 0)
        tasks.append(Task('sh', mk_shift(f, n), lo2, hi - 3))
    PL = 32768; STG = 3 * PL; LDS = STG + 4 * 16384
    tmp = [r[1] for r in reserved]
    late = sorted([r[1] for r, l in vlast.items() if r not in reserved and l < marks['F'] + 2])
    a0, a1 = 244, 248
    AT = 4
    V_WP, V_WR, V_IR, V_SW = a0, a0 + 1, a0 + 2, a0 + 3
    assert env('DST', 1)
    V_SW = 240
    V_SR, V_O0, V_O1, V_SH = a1, a1 + 1, a1 + 2, a1 + 3
    V_SR = 241
    sc = [236 + i for i in range(8)]
    PT = [tmp[0], tmp[1], tmp[2], tmp[3]]
    setup = []
    MK = 64 if STAMP else 70
    def S_(fn): setup.append(fn)
    t0, t1, t2, t3, t4, t5, t6, t7 = sc
    vv = lambda t, d, s_: S_(lambda: va(t, d, s_))
    ss = lambda t: S_(lambda: e(t))
    vv("v_and_b32 v%d, 15, v0" % t1, V(t1), V(0))
    vv("v_lshrrev_b32 v%d, 4, v0" % t2, V(t2), V(0))
    vv("v_lshlrev_b32 v%d, 10, v%d" % (t3, t2), V(t3), V(t2))
    vv("v_lshl_add_u32 v%d, v%d, 4, v%d" % (t3, t1, t3), V(t3), V(t1) + V(t3))
    ss("s_lshr_b32 s33, s24, 1"); ss("s_mul_i32 s33, s33, %d" % PL); ss("s_and_b32 s34, s24, 1"); ss("s_lshl_b32 s34, s34, 3"); ss("s_add_u32 s33, s33, s34")
    vv("v_add_u32 v%d, s33, v%d" % (V_WP, t3), V(V_WP), V(t3))
    vv("v_xor_b32 v%d, s24, v%d" % (t4, t2), V(t4), V(t2))
    vv("v_lshl_add_u32 v%d, v%d, 2, v%d" % (t4, t4, t3), V(t4), V(t4) + V(t3))
    vv("v_add_u32 v%d, %d, v%d" % (V_WR, 2 * PL, t4), V(V_WR), V(t4))
    vv("v_min_u32 v%d, 2, v%d" % (t3, t2), V(t3), V(t2))
    vv("v_lshlrev_b32 v%d, 15, v%d" % (t3, t3), V(t3), V(t3))
    vv("v_lshl_add_u32 v%d, v%d, 4, v%d" % (t3, t1, t3), V(t3), V(t1) + V(t3))
    ss("s_lshl_b32 s33, s24, 10")
    vv("v_add_u32 v%d, s33, v%d" % (V_IR, t3), V(V_IR), V(t3))
    ss("s_lshl_b32 s33, s24, 14"); ss("s_add_u32 s33, s33, %d" % STG)
    vv("v_and_b32 v%d, 15, v0" % t1, V(t1), V(0))
    vv("v_lshrrev_b32 v%d, 1, v%d" % (t3, t2), V(t3), V(t2))
    vv("v_lshl_add_u32 v%d, v%d, 1, v%d" % (t3, t1, t3), V(t3), V(t1) + V(t3))
    vv("v_bfe_u32 v%d, v%d, 2, 1" % (t4, t1), V(t4), V(t1))
    vv("v_xor_b32 v%d, v%d, v%d" % (t3, t3, t4), V(t3), V(t3) + V(t4))
    vv("v_and_b32 v%d, 1, v%d" % (t4, t2), V(t4), V(t2))
    vv("v_lshlrev_b32 v%d, %d, v%d" % (t4, 9 if env('B128', 1) else 3, t4), V(t4), V(t4))
    vv("v_lshl_add_u32 v%d, v%d, 4, v%d" % (t3, t3, t4), V(t3), V(t3) + V(t4))
    vv("v_add_u32 v%d, s33, v%d" % (V_SW, t3), V(V_SW), V(t3))
    vv("v_bfe_u32 v%d, v0, 3, 1" % t4, V(t4), V(0))
    vv("v_xor_b32 v%d, v0, v%d" % (t4, t4), V(t4), V(0) + V(t4))
    vv("v_lshl_add_u32 v%d, v%d, 4, s33" % (V_SR, t4), V(V_SR), V(t4))
    if env('DST', 1):
        vv("v_bfe_u32 v%d, v0, 4, 1" % t0, V(t0), V(0))
        vv("v_and_b32 v%d, 15, v0" % t1, V(t1), V(0))
        vv("v_lshrrev_b32 v%d, 5, v0" % t2, V(t2), V(0))
    else:
        vv("v_lshrrev_b32 v%d, 5, v0" % t0, V(t0), V(0))
        vv("v_bfe_u32 v%d, v0, 1, 4" % t1, V(t1), V(0))
        vv("v_and_b32 v%d, 1, v0" % t2, V(t2), V(0))
    ss("s_mov_b32 s38, 224"); ss("s_mov_b32 s35, 2260"); ss("s_mov_b32 s37, 192")
    for p in range(2):
        o = V_O0 + p
        ss("s_lshl_b32 s33, s27, 4"); ss("s_lshl_b32 s34, s24, 2"); ss("s_add_u32 s33, s33, s34"); ss("s_add_u32 s33, s33, %d" % (2 * p))
        vv("v_add_u32 v%d, s33, v%d" % (t3, t0), V(t3), V(t0))
        vv("v_mul_u32_u24 v%d, s35, v%d" % (t4, t3), V(t4), V(t3))
        vv("v_lshrrev_b32 v%d, 16, v%d" % (t4, t4), V(t4), V(t4))
        vv("v_mul_u32_u24 v%d, 29, v%d" % (t5, t4), V(t5), V(t4))
        vv("v_sub_u32 v%d, v%d, v%d" % (t5, t3, t5), V(t5), V(t3) + V(t5))
        vv("v_mul_u32_u24 v%d, 10, v%d" % (t6, t4), V(t6), V(t4))
        vv("v_add_u32 v%d, v%d, v%d" % (t6, t6, t1), V(t6), V(t6) + V(t1))
        vv("v_subrev_u32 v%d, 1, v%d" % (t7, t5), V(t7), V(t5))
        vv("v_mul_u32_u24 v%d, %d, v%d" % (t7, 8 * 224, t7), V(t7), V(t7))
        vv("v_add_u32 v%d, v%d, v%d" % (t7, t7, t6), V(t7), V(t7) + V(t6))
        vv("v_mul_lo_u32 v%d, v%d, s37" % (t7, t7), V(t7), V(t7))
        vv("v_lshl_add_u32 v%d, v%d, 4, v%d" % (t7, t2, t7), V(t7), V(t7) + V(t2))
        ss("s_lshl_b32 s34, s28, 5")
        vv("v_add_u32 v%d, s34, v%d" % (t7, t7), V(t7), V(t7))
        vv("v_cmp_ne_u32 s[%d:%d], 0, v%d" % (MK, MK + 1, t5), [], V(t5))
        vv("v_cmp_gt_u32 s[%d:%d], 10, v%d" % (MK + 2, MK + 3, t1), [], V(t1))
        vv("v_cmp_gt_u32 s[%d:%d], s38, v%d" % (MK + 4, MK + 5, t6), [], V(t6))
        vv("v_mov_b32 v%d, 0x7fffffff" % t3, V(t3), [])
        S_(lambda: E.nop(3))
        ss("s_and_b64 s[%d:%d], s[%d:%d], s[%d:%d]" % (MK, MK + 1, MK, MK + 1, MK + 2, MK + 3)); ss("s_and_b64 s[%d:%d], s[%d:%d], s[%d:%d]" % (MK, MK + 1, MK, MK + 1, MK + 4, MK + 5))
        S_(lambda: E.nop(1))
        vv("v_cndmask_b32 v%d, v%d, v%d, s[%d:%d]" % (o, t3, t7, MK, MK + 1), V(o), V(t3) + V(t7))
    ss("s_cmp_eq_u32 s27, 0"); ss("s_cselect_b32 s33, 0, %d" % XREG)
    vv("v_and_b32 v%d, 15, v0" % t3, V(t3), V(0))
    vv("v_add_u32 v%d, -1, v%d" % (t3, t3), V(t3), V(t3))
    vv("v_lshrrev_b32 v%d, 2, v%d" % (t4, t3), V(t4), V(t3))
    vv("v_lshlrev_b32 v%d, 8, v%d" % (t4, t4), V(t4), V(t4))
    vv("v_and_b32 v%d, 3, v%d" % (t3, t3), V(t3), V(t3))
    vv("v_lshl_add_u32 v%d, v%d, 4, v%d" % (t3, t3, t4), V(t3), V(t3) + V(t4))
    vv("v_lshrrev_b32 v%d, 4, v0" % t4, V(t4), V(0))
    vv("v_lshlrev_b32 v%d, 6, v%d" % (t4, t4), V(t4), V(t4))
    vv("v_add3_u32 v%d, v%d, v%d, s33" % (t3, t3, t4), V(t3), V(t3) + V(t4))
    vv("v_add_u32 v%d, 816, v%d" % (t4, t4), V(t4), V(t4))
    vv("v_cndmask_b32 v%d, v%d, v%d, vcc" % (V_SH, t4, t3), V(V_SH), V(t4) + V(t3))
    ss("s_mov_b32 s6, %d" % XBYTES); ss("s_mov_b32 s7, 0x00020000"); ss("s_and_b32 s5, s5, 0xffff")
    mreg = 64 if STAMP else 94
    ss("s_mov_b32 s%d, 0x03ff03ff" % mreg); ss("s_mov_b32 s%d, 0x03ff03ff" % (mreg + 1))
    T_setup = Task('setup', [], 0, 0); T_setup.done_at = 0
    T_pp = {}
    prev = T_setup
    for r in range(S - 1, -1, -1):
        rd = {}; cv = {}; wr = {}
        for j in range(4):
            t = PT[j]
            rd[j] = [(lambda t=t, sl=sl, ar=accreg[sl, r][1] + j: va("v_accvgpr_read_b32 v%d, a%d" % (t + sl, ar), V(t + sl), A(ar))) for sl in range(3)]
            cv[j] = [lambda t=t: va("v_cvt_pk_bf16_f32 v%d, v%d, v%d" % (t, t, t + 1), V(t), V(t, 2)), lambda t=t: va("v_cvt_pk_bf16_f32 v%d, v%d, 0" % (t + 1, t + 2), V(t + 1), V(t + 2))]
            wr[j] = [lambda t=t, j=j, r=r: E.dswrite("ds_write_b64 v%d, v[%d:%d] offset:%d" % (V_WP, t, t + 1, (r * 16 + j) * 256), V(t, 2), V(V_WP))]
        ins = rd[0] + rd[1] + cv[0] + rd[2] + wr[0] + cv[1] + rd[3] + wr[1] + cv[2] + cv[3] + wr[2] + wr[3]
        lo = max(acc_last[sl, r] for sl in range(3)) + 6
        T_pp[r] = Task('pp%d' % r, ins, lo, step_end[r] + 4, [prev]); prev = T_pp[r]; tasks.append(T_pp[r])
    RT = late[0:2]
    order = list(range(S - 1, -1, -1))
    T_rp = {}
    for si, r in enumerate(order):
        se = step_end[r]
        ins = []
        for j in range(4):
            t = RT[si % 2] + j
            r1 = accreg[3, r][1] + j; r2 = accreg[4, r][1] + j
            ins.append(lambda t=t, r1=r1, r2=r2: va("v_cvt_pk_bf16_f32 v%d, v%d, v%d" % (t, r1, r2), V(t), V(r1) + V(r2)))
        for j in range(4):
            t = RT[si % 2] + j
            ins.append(lambda t=t, j=j, r=r: E.dswrite("ds_write_b32 v%d, v%d offset:%d" % (V_WR, t, (r * 16 + j) * 256), V(t), V(V_WR), tok=('rp', r)))
        T_rp[r] = Task('rp%d' % r, ins, se + 4, se + 10, [T_pp[r]])
        tasks.append(T_rp[r])
    B128 = env('B128', 1)
    lateA = [x for x in late if x not in RT]
    def inv_seq(rows, AFp, DIp, OUTp):
        na, nd, no = len(AFp) // 4, len(DIp) // 4, len(OUTp) // 2
        def reads(si):
            r = rows[si]
            return [lambda a=a, r=r, f=AFp[4 * (si % na) + a]: E.dsread("ds_read_b128 v[%d:%d], v%d offset:%d" % (f, f + 3, V_IR, (r * 16 + a) * 256), V(f, 4), V(V_IR)) for a in range(4)]
        def mm(si):
            return [lambda a=a: E.mfma(('v', DIp[4 * (si % nd) + a]), ('v', AFp[4 * (si % na) + a]), ('v', AT), None) for a in range(4)]
        def cw(si):
            r = rows[si]; ins = []
            D = [DIp[4 * (si % nd) + a] for a in range(4)]
            if not B128:
                for a in range(4):
                    d = D[a]
                    ins.append(lambda d=d: va("v_cvt_pk_bf16_f32 v%d, v%d, v%d" % (d, d, d + 1), V(d), V(d, 2)))
                    ins.append(lambda d=d: va("v_cvt_pk_bf16_f32 v%d, v%d, v%d" % (d + 1, d + 2, d + 3), V(d + 1), V(d + 2, 2)))
            if B128:
                for p in range(2):
                    d0 = D[2 * p]
                    ins.append(lambda d0=d0: va("v_cvt_pk_bf16_f32 v%d, v%d, v%d" % (d0, d0, d0 + 1), V(d0), V(d0, 2)))
                    ins.append(lambda d0=d0: va("v_cvt_pk_bf16_f32 v%d, v%d, v%d" % (d0 + 1, d0 + 2, d0 + 3), V(d0 + 1), V(d0 + 2, 2)))
                for p in range(2):
                    d0, d1 = D[2 * p], D[2 * p + 1]
                    ins.append(lambda d0=d0, d1=d1: va("v_cvt_pk_bf16_f32 v%d, v%d, v%d" % (d0 + 2, d1, d1 + 1), V(d0 + 2), V(d1, 2)))
                    ins.append(lambda d0=d0, d1=d1: va("v_cvt_pk_bf16_f32 v%d, v%d, v%d" % (d0 + 3, d1 + 2, d1 + 3), V(d0 + 3), V(d1 + 2, 2)))
                for p in range(2):
                    d0 = D[2 * p]
                    ins.append(lambda d0=d0: va("v_permlane16_swap_b32 v%d, v%d" % (d0, d0 + 2), V(d0) + V(d0 + 2), V(d0) + V(d0 + 2), perm=True))
                    ins.append(lambda d0=d0: va("v_permlane16_swap_b32 v%d, v%d" % (d0 + 1, d0 + 3), V(d0 + 1) + V(d0 + 3), V(d0 + 1) + V(d0 + 3), perm=True))
                if env('DST', 1):
                    def both(r=r, D=D):
                        e("s_mov_b32 s33, %d" % (r * ROWB))
                        E._need(V(D[0], 4) + V(D[2], 4))
                        E._pad(max(E._dist(V(D[0], 4) + V(D[2], 4), {'mfma': 8}), 0))
                        if env('XM', 1): e("s_mov_b64 exec, s[94:95]" if not STAMP else "s_mov_b64 exec, s[64:65]")
                        for p in range(2):
                            d0 = D[2 * p]
                            if env('NOOUT', 0) == 1 or (env('NOOUT', 0) == 2 and p): continue
                            E.vstore("buffer_store_dwordx4 v[%d:%d], v%d, s[4:7], s33 offen%s" % (d0, d0 + 3, V_O0 + p, env('OSF', '')), V(d0, 4), V(V_O0 + p))
                        if env('XM', 1): e("s_mov_b64 exec, -1")
                        if str(r) in env('WB', '').split(','):
                            e("s_lshl_b32 s34, s2, 2"); e("s_add_u32 s34, s34, s24")
                            e("s_cmp_ge_u32 s34, %d" % env('WBN', 32)); e("s_cbranch_scc1 K2_nowb%d" % r)
                            e("s_cmp_lg_u32 s24, 0"); e("s_cbranch_scc1 K2_nowb%d" % r)
                            e("buffer_wbl2 sc1")
                            E.label("K2_nowb%d" % r)
                    ins.append(both)
                    return ins
                for p in range(2):
                    d0 = D[2 * p]
                    ins.append(lambda d0=d0, p=p, r=r: E.dswrite("ds_write_b128 v%d, v[%d:%d] offset:%d" % (V_SW, d0, d0 + 3, (r * 4 + 2 * p) * 512), V(d0, 4), V(V_SW)))
            else:
                for a in range(4):
                    d = D[a]
                    ins.append(lambda d=d, a=a, r=r: E.dswrite("ds_write_b64 v%d, v[%d:%d] offset:%d" % (V_SW, d, d + 1, (r * 4 + a) * 512), V(d, 2), V(V_SW)))
            for p in range(2):
                o = OUTp[2 * (si % no) + p]
                ins.append(lambda o=o, p=p, r=r: E.dsread("ds_read_b128 v[%d:%d], v%d offset:%d" % (o, o + 3, V_SR, (r * 4 + 2 * p) * 512), V(o, 4), V(V_SR)))
            return ins
        def st(si):
            if env('DST', 1): return []
            r = rows[si]; ins = [lambda r=r: e("s_mov_b32 s33, %d" % (r * ROWB))]
            for p in range(2):
                o = OUTp[2 * (si % no) + p]
                if env('NOOUT', 0): continue
                ins.append(lambda o=o, p=p: E.vstore("buffer_store_dwordx4 v[%d:%d], v%d, s[4:7], s33 offen%s" % (o, o + 3, V_O0 + p, env('OSF', '')), V(o, 4), V(V_O0 + p)))
            return ins
        n = len(rows); seq = []
        head = []
        for si in range(min(na, n)): head += reads(si)
        for si in range(n + 2):
            if si < n: seq += mm(si)
            if si + na < n: seq += reads(si + na)
            if no == 1 and 0 <= si - 2 < n: seq += st(si - 2)
            if 0 <= si - 1 < n: seq += cw(si - 1)
            if no > 1 and 0 <= si - 2 < n: seq += st(si - 2)
        return head, seq
    NA = env('NA', 4 if FIN == 1 else 7)
    rowsA = order[:NA]; rowsB = order[NA:]
    T_A = None
    if NA and FIN == 1:
        assert len(lateA) >= 16, lateA
        hA, sA = inv_seq(rowsA, lateA[0:8], lateA[8:16], [lateA[16], lateA[17]] if len(lateA) >= 18 else [0, 0])
        def barA(): E._need([('rp', rowsA[-1])]); E.barrier()
        T_barA = Task('barA', [barA], 0, step_end[rowsA[-1]] + 12, [(T_rp[rowsA[-1]], env('LBA', 4))])
        T_A = Task('invA', hA + sA, 0, N + 500, [T_barA])
        tasks += [T_barA, T_A]
    if NA and FIN == 2:
        assert len(lateA) >= 16, lateA
        AF2 = lateA[0:8]; DI2 = lateA[8:16]
        L1, L2, L3 = env('L1', 4), env('L2', 7), env('L3', 3)
        pb = None; pm = {}; pc = {}
        for si, r in enumerate(rowsA):
            se = step_end[r]
            def bar(r=r):
                if env('NOBAR', 0) in (1, 2):
                    if env('NOBAR', 0) == 2: E._need([('rp', r)])
                    return
                E._need([('rp', r)]); E.barrier()
            tb_ = Task('bar%d' % r, [bar], 0, se + 12, [(T_rp[r], L1)] + ([pb] if pb else []))
            pb = tb_
            af = AF2[4 * (si % 2):4 * (si % 2) + 4]; di = DI2[4 * (si % 2):4 * (si % 2) + 4]
            h_, s_ = inv_seq([r], af, di, [0, 0])
            mms, rest = s_[:4], s_[4:]
            t1_ = Task('rd%d' % r, h_, 0, se + 16, [tb_] + ([pm[si - 2]] if si >= 2 else []))
            t2_ = Task('mm%d' % r, mms, 0, se + 26, [(t1_, L2)] + ([pc[si - 2]] if si >= 2 else []))
            t3_ = Task('cw%d' % r, rest, 0, se + 40, [(t2_, L3)])
            pm[si] = t2_; pc[si] = t3_
            tasks += [tb_, t1_, t2_, t3_]
    def final():
        used = set(lateA[:18]) if NA else set()
        pool = sorted(set([accreg[sl, r][1] for sl in (3, 4) for r in rowsA] + [r_[1] for r_ in vlast.keys() if r_ not in reserved]) - set(RT) - used)
        nb = len(rowsB)
        hB, sB = inv_seq(rowsB, pool[0:4 * min(nb, 4)], pool[16:24], pool[24:28])
        E.wait(None, 0)
        if STAMP == 3: e("s_memtime s[72:73]")
        E.barrier()
        if STAMP == 3: e("s_memtime s[74:75]")
        for f in hB: f()
        if T_A is not None:
            for f in T_A.rest: f()
        for x in deferred:
            for f in x: f()
        if STAMP == 3: e("s_memtime s[84:85]")
        for k_, f in enumerate(sB):
            f()
            if STAMP == 3 and k_ == len(sB) // 2: e("s_memtime s[86:87]")
    deferred = []
    def budget(i):
        if i >= marks['F']: return env('BF', 3)
        if i >= TEMP_T: return env('BP', 2)
        return 1
    MAXF = env('MAXF', 2)
    delay = {}
    for i in range(1, N + 1):
        k = 0
        while True:
            avail = [x for x in tasks if x.ins and (x.lo <= i or i == N) and all(d.done_at is not None and (i == N or i >= d.done_at + lg) for d, lg in x.deps)]
            if not avail: break
            avail.sort(key=lambda x: x.hi)
            if i < N:
                b = budget(i) - cnt[i]
                urgent = False
                if b <= k:
                    if k >= max(MAXF, budget(i)) - cnt[i]: break
                    tot = 0
                    for y in sorted([x for x in tasks if x.ins and x.lo <= i + 40 and x.name == 'sh'], key=lambda x: x.hi):
                        tot += len(y.ins)
                        cap = sum(1 for g in range(i + 1, min(y.hi + 1, N)) if cnt[g] == 0)
                        if tot - 1 > cap * env('URGF', 0.9): urgent = True; break
                    if not urgent: break
            x = avail[0]
            if i == N and x.name == 'invA':
                x.rest = list(x.ins); x.ins = []; x.done_at = i; continue
            if i == N and x.name[:2] in ('mm', 'cw'):
                deferred.append(list(x.ins)); x.ins = []; x.done_at = i; continue
            if x.name == 'sh': assert i <= x.hi, ("shift late", i, x.hi)
            gap[i].append(('ins', x.ins.pop(0), x.name)); k += 1
            if not x.ins: x.done_at = i
        cnt[i] += k
    if T_A is not None and not hasattr(T_A, 'rest'): T_A.rest = []
    assert all(not x.ins for x in tasks), [x.name for x in tasks if x.ins]
    sys.stderr.write("K2 tail after last MFMA: %d instr; done: %s\n" % (len(gap[N]), " ".join("%s@%d" % (x.name, x.done_at - marks['F']) for x in tasks if x.name[:2] in ('pp', 'ba', 'cw'))))
    KN = "FU" if FUSED else "K2"
    FST = env('FSTAMP', 0)
    fs_regs = {1: 88, 2: 90, 3: 92, 4: 96, 5: 98, 6: 82}
    def fs2(n): e("s_memrealtime s[%d:%d]" % (fs_regs[n], fs_regs[n] + 1))
    G['fs2'] = fs2
    def fstamp(n):
        if env('FS2', 0) and n in (3, 4, 5): return
        if FST and n in fs_regs: e("s_memrealtime s[%d:%d]" % (fs_regs[n], fs_regs[n] + 1))
    if FUSED:
        import pagen
        G['fstamp'] = (lambda n: fstamp(n) if n < 3 else None)
        e("s_load_dwordx4 s[84:87], s[0:1], 0" if not FST else "s_load_dwordx4 s[84:87], s[0:1], 0")
        e("s_load_dwordx4 s[4:7], s[0:1], 16")
        e("s_load_dwordx2 s[8:9], s[0:1], 32")
        if FST: e("s_memrealtime s[100:101]")
        e("s_getpc_b64 s[10:11]")
        E.label("FU_pc")
        e("s_cmp_ge_u32 s2, 256"); e("s_cbranch_scc1 K2_end")
        va("v_lshrrev_b32 v3, 6, v0", V(3), V(0))
        va("v_and_b32 v0, 63, v0", V(0), V(0))
        E.nop(1)
        e("v_readfirstlane_b32 s24, v3")
        pagen.phase_a(E, G)
        E.label("FU_pb")
        E.vm = []; E.lg = []; E.w = {}; E.mc = {}; E.sd = {}
        e("s_waitcnt lgkmcnt(0)")
        e("s_mov_b32 s88, s60"); e("s_mov_b32 s89, s61")
        e("s_mov_b32 s84, s8"); e("s_and_b32 s85, s9, 0xffff"); e("s_mov_b32 s86, %d" % XF_SIZE); e("s_mov_b32 s87, 0x00020000")
        if env('CPF', 1):
            e("s_cmp_ge_u32 s2, 8"); e("s_cbranch_scc1 K2_nocpf")
            e("s_lshl_b32 s33, s24, 13")
            va("v_lshlrev_b32 v4, 7, v0", V(4), V(0))
            va("v_add_u32 v4, s33, v4", V(4), V(4))
            va("v_min_u32 v4, K2_code_end-FU_pc-4, v4", V(4), V(4))
            E.vload("global_load_dword v72, v4, s[10:11]", V(72), V(4))
            E.label("K2_nocpf")
            E.vm = []
    else:
        e("s_load_dwordx2 s[8:9], s[0:1], 32")
        e("s_load_dwordx2 s[4:5], s[0:1], 16")
        if STAMP: e("s_memtime s[70:71]"); e("s_memrealtime s[80:81]")
        e("s_getpc_b64 s[10:11]")
        E.label("K2_pc")
        e("s_cmp_ge_u32 s2, 256"); e("s_cbranch_scc1 K2_end")
        va("v_lshrrev_b32 v3, 6, v0", V(3), V(0))
        if env('CPF', 1):
            va("v_lshlrev_b32 v4, 7, v0", V(4), V(0))
            va("v_min_u32 v4, K2_code_end-K2_pc-4, v4", V(4), V(4))
        va("v_and_b32 v0, 63, v0", V(0), V(0))
        E.nop(1)
        e("v_readfirstlane_b32 s24, v3")
        if env('CPF', 1):
            e("s_cmp_ge_u32 s2, 8"); e("s_cbranch_scc1 K2_nocpf")
            E.vload("global_load_dword v255, v4, s[10:11]", V(255), V(4))
            E.label("K2_nocpf")
    FL_OFF = G.get('FL_OFF', 0)
    nsig = [0]
    def signal12(plane=6144, tv=(10, 11), srcs=(78, 79)):
        for o in srcs:
            e("s_cmp_eq_u32 s%d, 0" % o); e("s_cbranch_scc1 FU_nosig%d_%d" % (nsig[0], o))
            e("s_add_u32 s33, s%d, %d" % (o, plane))
            e("v_mov_b32 v%d, s33" % tv[0]); e("v_mov_b32 v%d, s82" % tv[1])
            e("s_mov_b64 exec, 1")
            e("global_atomic_swap v%d, v%d, s[8:9] sc1" % tv)
            e("s_mov_b64 exec, -1")
            E.label("FU_nosig%d_%d" % (nsig[0], o))
        nsig[0] += 1
    def signal1(tv):
        signal12(6144, tv, (80, 81))
    e("s_and_b32 s25, s2, 7"); e("s_lshr_b32 s26, s2, 3")
    e("s_mul_i32 s27, s26, 43"); e("s_lshr_b32 s27, s27, 8"); e("s_mul_i32 s28, s27, 6"); e("s_sub_u32 s28, s26, s28")
    e("s_lshl_b32 s27, s27, 3"); e("s_add_u32 s27, s27, s25")
    e("s_cmp_lt_u32 s26, 30"); e("s_cbranch_scc1 K2_map")
    e("s_lshl_b32 s29, s25, 1"); e("s_add_u32 s29, s29, s26"); e("s_sub_u32 s29, s29, 30")
    e("s_mul_i32 s27, s29, 43"); e("s_lshr_b32 s27, s27, 8"); e("s_mul_i32 s28, s27, 6"); e("s_sub_u32 s28, s29, s28"); e("s_add_u32 s27, s27, 40")
    E.label("K2_map")
    e("s_cmp_ge_u32 s27, %d" % NREG); e("s_cbranch_scc1 %s" % ("FU_idle" if FUSED else "K2_end"))
    va("v_lshlrev_b32 v%d, 4, v0" % V_L16, V(V_L16), V(0))
    va("v_and_b32 v3, 15, v0", V(3), V(0))
    va("v_cmp_ne_u32 vcc, 0, v3", [], V(3))
    va("v_lshrrev_b32 v4, 4, v0", V(4), V(0))
    va("v_lshlrev_b32 v4, 6, v4", V(4), V(4))
    va("v_lshrrev_b32 v5, 2, v3", V(5), V(3))
    va("v_lshl_add_u32 v5, v5, 8, v4", V(5), V(5) + V(4))
    va("v_and_b32 v6, 3, v0", V(6), V(0))
    va("v_lshl_add_u32 v%d, v6, 4, v5" % V_FR, V(V_FR), V(5) + V(6))
    va("v_min_u32 v3, 5, v3", V(3), V(3))
    va("v_add_u32 v3, %d, v3" % (S - 6), V(3), V(3))
    va("v_lshlrev_b32 v3, 10, v3", V(3), V(3))
    va("v_add3_u32 v%d, v3, v4, s%d" % (V_HOFF, 33) if False else "v_add_u32 v3, v3, v4", V(3), V(3) + V(4))
    va("v_add_u32 v%d, 816, v3" % V_HOFF, V(V_HOFF), V(3))
    e("s_lshl_b32 s29, s27, 2"); e("s_add_u32 s29, s29, s24"); e("s_mul_i32 s29, s29, %d" % XW)
    e("s_max_u32 s30, s27, 1"); e("s_sub_u32 s30, s30, 1"); e("s_lshl_b32 s30, s30, 2"); e("s_add_u32 s30, s30, s24"); e("s_mul_i32 s30, s30, %d" % XW)
    e("s_lshl_b32 s31, s28, 2"); e("s_add_u32 s31, s31, s24"); e("s_mul_i32 s31, s31, %d" % WW); e("s_add_u32 s31, s31, %d" % WF_OFF)
    ROT = env('ROT', 0)
    if ROT:
        e("s_lshr_b32 s33, s27, 3"); e("s_add_u32 s33, s33, s28")
        if ROT == 2:
            e("s_and_b32 s32, s33, 1"); e("s_xor_b32 s36, s32, 1"); e("s_mov_b32 s39, 2")
        else:
            e("s_mul_i32 s34, s33, 86"); e("s_lshr_b32 s34, s34, 8"); e("s_mul_i32 s34, s34, 3"); e("s_sub_u32 s32, s33, s34")
            e("s_add_u32 s36, s32, 1"); e("s_cmp_eq_u32 s36, 3"); e("s_cselect_b32 s36, 0, s36")
            e("s_add_u32 s39, s36, 1"); e("s_cmp_eq_u32 s39, 3"); e("s_cselect_b32 s39, 0, s39")
    else:
        e("s_mov_b32 s32, 0"); e("s_mov_b32 s36, 1"); e("s_mov_b32 s39, 2")
    SRD = {'X': [12, 40, 44], 'W': [16, 48, 52], 'H': [20, 56, 60]}
    CH = [32, 36, 39]
    def srd_off(kind, ch):
        base = {'X': 29, 'W': 31, 'H': 30}[kind]; stride = {'X': 32768, 'W': 28672, 'H': 32768}[kind]
        sr = SRD[kind][ch]
        e("s_mul_i32 s%d, s%d, %d" % (sr + 2, CH[ch], stride)); e("s_add_u32 s%d, s%d, s%d" % (sr + 2, sr + 2, base))
    def srd_fin(kind, ch):
        sr = SRD[kind][ch]; sz = {'X': 32768, 'W': 28672, 'H': XREG + 32768}[kind]
        e("s_add_u32 s%d, s8, s%d" % (sr, sr + 2)); e("s_addc_u32 s%d, s9, 0" % (sr + 1)); e("s_and_b32 s%d, s%d, 0xffff" % (sr + 1, sr + 1))
        e("s_mov_b32 s%d, %d" % (sr + 2, sz)); e("s_mov_b32 s%d, 0x00020000" % (sr + 3))
    for kind in 'XW': srd_off(kind, 0)
    if not FUSED: e("s_waitcnt lgkmcnt(0)")
    for kind in 'XW': srd_fin(kind, 0)
    CST = [None, 25, 26, 64, 65, 66, 67, 68] if not STAMP else [None, 25, 26, 96, 97, 98, 99, 100]
    need0 = sorted(set((f.off % (32768 if f.kind != 'W' else 28672)) // 4096 for f in pre) - {0})
    for j in need0: e("s_mov_b32 s%d, %d" % (CST[j], j * 4096))
    def late_srds():
        for j in range(1, 8):
            if j not in need0: e("s_mov_b32 s%d, %d" % (CST[j], j * 4096))
        for kind, ch in [('H', 0), ('X', 1), ('W', 1), ('H', 1), ('X', 2), ('W', 2), ('H', 2)]:
            srd_off(kind, ch); srd_fin(kind, ch)
    def load(f, slot):
        if slot > 100 and ((env('SKIPW', 0) and f.kind == 'W') or (env('SKIPX', 0) and f.kind != 'W')): return
        stride = 28672 if f.kind == 'W' else 32768
        off = f.off % stride
        assert f.off // stride == f.ch
        so = off // 4096; io = off % 4096
        sreg = "0" if so == 0 else "s%d" % CST[so]
        kind = {'X': 'X', 'W': 'W', 'H': 'H', 'S': 'H'}[f.kind]
        sr = SRD[kind][f.ch]
        vo = {'X': V_FR, 'W': V_L16, 'H': V_HOFF, 'S': V_SH}[f.kind]
        E.vload("buffer_load_dwordx4 %s, v%d, s[%d:%d], %s offen offset:%d%s" % (rn(f.reg), vo, sr, sr + 3, sreg, io, env('LDW', ' sc1') if f.kind == 'W' else env('LDX', ' sc1')), regs(f.reg), V(vo), tok=('slot', slot))
    assert all(f.kind in 'XW' and f.ch == 0 for f in pre), pre
    e("s_add_u32 s10, s10, K2_at-%s_pc" % KN); e("s_addc_u32 s11, s11, 0")
    e("s_lshl_b32 s33, s24, 10")
    va("v_add_u32 v3, s33, v%d" % V_L16, V(3), V(V_L16))
    def touch(c): raise Exception('touch disabled')
    NP1 = env('NP1', 12)
    SPIN = env('SPIN', 400000)
    def poll_loads(phase, raw=False):
        ld = (lambda t, d, a: e(t)) if raw else (lambda t, d, a: E.vload(t, V(d), V(a), tok=('slot', slot_now[0])))
        if phase == 0:
            ld("global_load_dword v3, v252, s[8:9] sc1", 3, 252)
            ld("global_load_dword v8, v255, s[8:9] sc1", 8, 255)
        else:
            if raw: e("v_add_u32 v%d, %d, v252" % (252 + phase, 6144 if phase == 1 else 20480))
            ld("global_load_dword v3, v%d, s[8:9] sc1" % (252 + phase), 3, 252 + phase)
            ld("global_load_dword v%d, v255, s[8:9] offset:%d sc1" % (252 + phase, 256 * phase), 252 + phase, 255)
    def poll_test(phase, lab, raw=False):
        regs_ = [3, 8] if phase == 0 else [3, 252 + phase]
        for k_, r_ in enumerate(regs_):
            t = "v_cmp_ne_u32 s[%d:%d], s82, v%d" % (72 + 2 * k_, 73 + 2 * k_, r_)
            if raw: e(t)
            else: va(t, [], V(r_))
        e("s_nop 4")
        e("s_or_b64 s[72:73], s[72:73], s[74:75]")
        e("s_cmp_lg_u64 s[72:73], 0")
        e("s_cbranch_scc1 %s" % lab)
    if FUSED:
        E.vload("global_load_dwordx4 v[4:7], v3, s[10:11]", V(4, 4), V(3), tok=('slot', -1))
        late_srds()
        for fn in setup: fn()
        e("s_lshl_b32 s33, s27, 7"); e("s_max_u32 s34, s27, 1"); e("s_sub_u32 s34, s34, 1"); e("s_lshl_b32 s34, s34, 7")
        va("v_mov_b32 v252, s33", V(252), []); va("v_mov_b32 v253, s34", V(253), [])
        va("v_cmp_gt_u32 s[72:73], 32, v0", [], V(0)); E.nop(2)
        va("v_cndmask_b32 v252, v253, v252, s[72:73]", V(252), V(252) + V(253))
        va("v_and_b32 v253, 31, v0", V(253), V(0))
        va("v_lshl_add_u32 v252, v253, 2, v252", V(252), V(252) + V(253))
        va("v_add_u32 v252, %d, v252" % FL_OFF, V(252), V(252))
        va("v_add_u32 v253, 6144, v252", V(253), V(252))
        va("v_add_u32 v254, 20480, v252", V(254), V(252))
        va("v_min_u32 v255, 55, v0", V(255), V(0))
        va("v_lshlrev_b32 v255, 2, v255", V(255), V(255))
        e("s_and_b32 s33, s2, 7"); e("s_lshl_b32 s33, s33, 10"); e("s_add_u32 s33, s33, %d" % (FL_OFF + 12288))
        va("v_add_u32 v255, s33, v255", V(255), V(255))
        if env('EPOLL', 2):
            e("s_cmp_lg_u32 s24, 3"); e("s_cbranch_scc1 FU_noep")
            e("global_load_dword v3, v252, s[8:9] sc1"); e("global_load_dword v8, v255, s[8:9] sc1")
            E.label("FU_noep")
        e("s_waitcnt vmcnt(0)")
        E.wait(0, None)
        fstamp(3)
        e("s_cmp_lg_u32 s24, 3"); e("s_cbranch_scc1 FU_sig")
        if not env('EPOLL', 2):
            poll_loads(0, raw=True)
            e("s_waitcnt vmcnt(0)")
        poll_test(0, "FU_poll0_again", raw=True)
        E.label("FU_poll0_ok")
        E.label("FU_sig")
        signal1((12, 13))
        E.barrier()
        fstamp(4)
        for f in pre: load(f, -1)
    else:
        for f in pre[:NP1]: load(f, -1)
        late_srds()
        for fn in setup: fn()
        for f in pre[NP1:]: load(f, -1)
        E.vload("global_load_dwordx4 v[4:7], v3, s[10:11]", V(4, 4), V(3), tok=('slot', -1))
    if STAMP and STAMP != 3: e("s_memtime s[72:73]")
    if FUSED:
        for ph in (1, 2):
            first = min(f.issue for f in frags if f.ch >= ph)
            mp2 = first - 1; mp1 = max(1, mp2 - env('MPL', 80))
            def p_issue(ph=ph): poll_loads(ph)
            def p_check(ph=ph):
                E._need(V(3) + V(252 + ph))
                poll_test(ph, "FU_poll%d_again" % ph)
                E.label("FU_poll%d_ok" % ph)
                E.barrier()
            gap[mp1].append(('ins', p_issue, 'poll')); gap[mp2].insert(0, ('ins', p_check, 'poll'))
            sys.stderr.write("fused: poll %d issued at %d, checked at %d\n" % (ph, mp1, mp2))
        D0 = env('DEF0', 110); DS_ = env('DEFS', 4)
        DR = [40, 44, 48, 52]
        seq = []
        for n_, (task, i) in enumerate([(t_, i_) for t_ in range(2) for i_ in range(4)]):
            r = DR[n_ % 4]
            def rd(r=r, task=task, i=i): E.dsread("ds_read_b128 v[%d:%d], v%d offset:%d" % (r, r + 3, 16 + 4 * task + i, 768 * i + 128), V(r, 4), V(16 + 4 * task + i))
            def st_(r=r, task=task, i=i):
                e("s_add_u32 s33, s%d, %d" % (88 + task, i * XW + 2 * 32768))
                E.vstore("buffer_store_dwordx4 v[%d:%d], v11, s[84:87], s33 offen sc1" % (r, r + 3), V(r, 4), V(11), tok=('def2',))
            gap[D0 + n_ * DS_].append(('ins', rd, 'def')); gap[D0 + n_ * DS_ + 10].append(('ins', st_, 'def'))
        def sig2():
            E._need([('def2',)])
            signal12(20480, (12, 13))
        gap[D0 + 7 * DS_ + 10 + env('DEFW', 80)].append(('ins', sig2, 'def'))
    started = set()
    for i in range(N + 1):
        slot_now[0] = i
        if i == N and STAMP: e("s_memtime s[76:77]"); e("s_memrealtime s[82:83]")
        for x in gap[i]:
            if x[0] == 'load': load(x[1], i)
            elif x[0] == 'touch': touch(x[1])
            else: x[1]()
        if i == N:
            final(); break
        a, (ch, c, rho), w = ops[i]
        xf = XS[ch, c, rho] if (rho < 0 and (ch, c) in SHL) else X[ch, c, rho if rho >= 0 else rho + S]
        prewait(regs(xf.reg) + regs(w.reg))
        if STAMP:
            if i == 0 and STAMP != 3: e("s_memtime s[74:75]")
            if i == 0: e("s_memrealtime s[88:89]")
            m1, m2 = (N // 3, 2 * N // 3) if STAMP == 1 else (env('M1', 0), env('M2', 0))
            if STAMP != 3 and i == m1: e("s_memtime s[84:85]"); e("s_memrealtime s[90:91]")
            if STAMP != 3 and i == m2: e("s_memtime s[86:87]"); e("s_memrealtime s[92:93]")
        if i == 0: fstamp(5)
        E.mfma(accreg[a], xf.reg, w.reg, accreg[a] if a in started else None)
        started.add(a)
    if STAMP:
        e("s_memtime s[94:95]"); e("s_memrealtime s[66:67]"); e("s_waitcnt lgkmcnt(0)")
        e("s_add_u32 s4, s8, %d" % ST_OFF); e("s_addc_u32 s5, s9, 0"); e("s_and_b32 s5, s5, 0xffff"); e("s_mov_b32 s6, %d" % (256 * 4 * 64))
        e("s_lshl_b32 s33, s2, 2"); e("s_add_u32 s33, s33, s24"); e("s_lshl_b32 s33, s33, 6")
        for k2, sr in enumerate((70, 72, 74, 76, 80, 82, 84, 86, 88, 90, 92, 94, 66)):
            e("v_mov_b32 v6, s%d" % sr); e("v_mov_b32 v5, %d" % (4 * k2)); e("s_mov_b64 exec, 1")
            e("buffer_store_dword v6, v5, s[4:7], s33 offen"); e("s_mov_b64 exec, -1")
    if FST:
        fstamp(6); e("s_waitcnt lgkmcnt(0)")
        e("s_add_u32 s4, s8, %d" % ST_OFF); e("s_addc_u32 s5, s9, 0"); e("s_and_b32 s5, s5, 0xffff"); e("s_mov_b32 s6, %d" % (256 * 4 * 64)); e("s_mov_b32 s7, 0x00020000")
        e("s_lshl_b32 s33, s2, 2"); e("s_add_u32 s33, s33, s24"); e("s_lshl_b32 s33, s33, 6")
        for k2, sr in enumerate([100] + [fs_regs[k_] for k_ in range(1, 7)]):
            e("v_mov_b32 v6, s%d" % sr); e("v_mov_b32 v5, %d" % (4 * k2)); e("s_mov_b64 exec, 1")
            e("buffer_store_dword v6, v5, s[4:7], s33 offen"); e("s_mov_b64 exec, -1")
    E.label("K2_end")
    e("s_endpgm")
    if FUSED:
        E.label("FU_idle")
        for task in range(2):
            for i in range(4):
                r = 72 + 16 * task + 4 * i
                e("ds_read_b128 v[%d:%d], v%d offset:%d" % (r, r + 3, 16 + 4 * task + i, 768 * i + 128))
        e("s_waitcnt lgkmcnt(0)")
        for task in range(2):
            for i in range(4):
                r = 72 + 16 * task + 4 * i
                e("s_add_u32 s33, s%d, %d" % (88 + task, i * XW + 2 * 32768))
                e("buffer_store_dwordx4 v[%d:%d], v11, s[84:87], s33 offen sc1" % (r, r + 3))
        e("s_waitcnt vmcnt(0)")
        signal1((12, 13))
        signal12(20480)
        e("s_endpgm")
        for n_ in range(3):
            E.label("FU_poll%d_again" % n_)
            e("s_mov_b32 s34, 0")
            E.label("FU_poll%d_loop" % n_)
            e("s_add_u32 s34, s34, 1"); e("s_cmp_ge_u32 s34, %d" % SPIN); e("s_cbranch_scc1 FU_poll%d_ok" % n_)
            e("s_sleep %d" % env('PSL', 16))
            poll_loads(n_, raw=True); e("s_waitcnt vmcnt(0)")
            poll_test(n_, "FU_poll%d_loop" % n_, raw=True)
            e("s_branch FU_poll%d_ok" % n_)
        pagen.tables(E, G)
    tb = np.zeros((4, 64, 8), dtype=np.float64)
    for v in range(4):
        for l in range(64):
            n, kg = l % 16, l // 16
            if n >= cfg.m: continue
            if kg < 2:
                for ww in range(2):
                    for sl in range(3): tb[v, l, 4 * ww + sl] = cfg.ATs[2 * kg + ww, sl, n]
            elif kg == 2:
                for p in range(4):
                    ww = p ^ v
                    tb[v, l, 2 * p] = cfg.ATs[ww, 3, n]; tb[v, l, 2 * p + 1] = cfg.ATs[ww, 4, n]
    E.raw(".p2align 8"); E.label("K2_at"); E.raw(G['table'](bf16bits(tb).reshape(-1)))
    E.label("K2_code_end")
    sys.stderr.write("K2: %d MFMA main, %d instr, %d waits, %d nops\n" % (N, E.ninst, E.nwait, E.nnop))
    name = "standalone__fft_conv__vision_kernel" if FUSED else "k2_kernel"
    return G['head'](name) + E.text() + G['KD'] % (name, 512, 102, 256), LDS
```

```python
import numpy as np
from emit import *
from consts import bf16bits, bf16r

WLDS = 27008
SL1 = 12352
KS = 2080

def phase_a(E, G):
    env = G['env']; cfg = G['cfg']
    XW, XREG, XF_SIZE, WF_OFF, WF_SIZE, XBYTES, WBYTES, ROWB = [G[k] for k in 'XW XREG XF_SIZE WF_OFF WF_SIZE XBYTES WBYTES ROWB'.split()]
    SF = env('K1SF', ' sc1')
    e = E.salu
    va = lambda t, d, s_, **kw: E.valu(t, d, s_, **kw)
    st = G.get('fstamp', lambda n: None)
    e("s_and_b32 s20, s2, 7")
    e("s_lshr_b32 s21, s2, 3"); e("s_lshl_b32 s21, s21, 2"); e("s_add_u32 s21, s21, s24")
    e("s_lshr_b32 s83, s2, 3"); e("s_lshl_b32 s83, s83, 1"); e("s_add_u32 s83, s83, s24"); e("s_cmp_lt_u32 s24, 2"); e("s_cselect_b32 s83, s83, 64")
    e("s_add_u32 s22, s83, 128"); e("s_min_u32 s22, s22, 167")
    e("s_mov_b32 s80, 0")
    e("s_cmp_lt_u32 s24, 2"); e("s_cbranch_scc1 FA_noas")
    e("s_lshr_b32 s57, s2, 3"); e("s_lshl_b32 s58, s57, 1"); e("s_add_u32 s58, s58, s24"); e("s_sub_u32 s58, s58, 2")
    e("s_cmp_ge_u32 s58, 61"); e("s_cbranch_scc1 FA_noas")
    e("s_mov_b32 s80, 1")
    e("s_add_u32 s22, s58, 128"); e("s_mov_b32 s81, %d" % (SL1 - 2 * WLDS))
    e("s_cmp_lt_u32 s58, 40"); e("s_cbranch_scc1 FA_noas")
    e("s_sub_u32 s22, s21, 2"); e("s_mov_b32 s81, %d" % (-2 * WLDS))
    E.label("FA_noas")
    va("v_and_b32 v1, 3, v0", V(1), V(0))
    va("v_bfe_u32 v5, v0, 2, 1", V(5), V(0))
    e("s_sub_u32 s23, s22, s21")
    va("v_mul_u32_u24 v5, s23, v5", V(5), V(5))
    va("v_add_u32 v5, s21, v5", V(5), V(5))
    va("v_lshl_add_u32 v1, v5, 2, v1", V(1), V(1) + V(5))
    va("v_mul_u32_u24 v2, 2260, v1", V(2), V(1))
    va("v_lshrrev_b32 v2, 16, v2", V(2), V(2))
    va("v_mul_u32_u24 v3, 29, v2", V(3), V(2))
    va("v_sub_u32 v3, v1, v3", V(3), V(1) + V(3))
    va("v_min_u32 v2, 22, v2", V(2), V(2))
    va("v_lshlrev_b32 v4, 3, v3", V(4), V(3))
    va("v_add_u32 v4, 216, v4", V(4), V(4))
    va("v_subrev_u32 v5, 224, v4", V(5), V(4))
    va("v_min_u32 v4, v4, v5", V(4), V(4) + V(5))
    va("v_add_u32 v4, s20, v4", V(4), V(4))
    va("v_mul_u32_u24 v4, %d, v4" % ROWB, V(4), V(4))
    va("v_mul_u32_u24 v6, 1920, v2", V(6), V(2))
    va("v_add_u32 v7, v4, v6", V(7), V(4) + V(6))
    va("v_cmp_eq_u32 vcc, 0, v2", [], V(2))
    va("v_mov_b32 v5, %d" % ROWB, V(5), [])
    va("v_mov_b32 v6, 0", V(6), [])
    va("v_cndmask_b32 v3, v6, v5, vcc", V(3), V(5) + V(6))
    E.nop(1)
    for a in range(8): e("v_readlane_b32 s%d, v7, %d" % (40 + a, a))
    for a in range(8): e("v_readlane_b32 s%d, v3, %d" % (48 + a, a))
    for n in range(3):
        va("v_add_u32 v8, %d, v0" % (64 * n), V(8), V(0))
        va("v_mul_u32_u24 v9, 5462, v8", V(9), V(8))
        va("v_bfe_u32 v10, v9, 18, 2", V(10), V(9))
        va("v_xor_b32 v8, v8, v10", V(8), V(8) + V(10))
        va("v_lshlrev_b32 v%d, 4, v8" % (12 + n), V(12 + n), V(8))
        if n < 2:
            va("v_lshrrev_b32 v9, 16, v9", V(9), V(9))
            va("v_cmp_gt_u32 vcc, 6, v9", [], V(9))
            E.nop(2)
            va("v_cndmask_b32 v%d, 0, 1, vcc" % (16 + n), V(16 + n), [])
    e("s_mul_i32 s56, s24, %d" % WLDS)
    e("s_waitcnt lgkmcnt(0)")
    e("s_mov_b64 s[76:77], s[6:7]")
    e("s_sub_u32 s12, s84, 1152"); e("s_subb_u32 s13, s85, 0"); e("s_and_b32 s13, s13, 0xffff"); e("s_mov_b32 s14, %d" % (XBYTES + 1152)); e("s_mov_b32 s15, 0x00020000")
    def xloads(task):
        for a in range(4):
            for n in range(3):
                t = 8 + (3 * a + n) % 2
                e("s_add_u32 m0, s56, %d" % (task * SL1 + a * 3088 + n * 1024))
                if n < 2: va("v_mad_i32_i24 v%d, v%d, s%d, v%d" % (t, 16 + n, 48 + 4 * task + a, 12 + n), V(t), V(16 + n) + V(12 + n))
                else:
                    t = 14; E.nop(1)
                E.vload("buffer_load_dwordx4 v%d, s[12:15], s%d offen lds" % (t, 40 + 4 * task + a), [], V(t), tok=('x', task, a))
    e("s_or_b32 s57, s2, s24"); e("s_cmp_lg_u32 s57, 0"); e("s_cbranch_scc1 FA_nononce")
    e("s_memrealtime s[58:59]"); e("s_waitcnt lgkmcnt(0)"); e("s_or_b32 s58, s58, 1")
    va("v_mov_b32 v8, 0", V(8), []); va("v_mov_b32 v9, s58", V(9), [])
    e("s_mov_b64 exec, 1"); e("global_store_dword v8, v9, s[76:77] sc1"); e("s_mov_b64 exec, -1")
    E.label("FA_nononce")
    def first_loads():
        xloads(0)
        va("v_mov_b32 v30, 0", V(30), [])
        E.vload("global_load_dword v31, v30, s[76:77] sc1", V(31), V(30), tok=('nonce',))
    e("s_cmp_lt_u32 s83, 40"); e("s_cbranch_scc1 FA_xx")
    e("s_cmp_lt_u32 s83, 61"); e("s_cbranch_scc1 FA_xw")
    import copy
    def snap(): return copy.deepcopy((E.pos, E.w, E.mc, E.sd, E.vm, E.lg))
    def rest(s_): E.pos, E.w, E.mc, E.sd, E.vm, E.lg = copy.deepcopy(s_)
    base_state = snap()

    def xsetup():
        va("v_lshlrev_b32 v1, 3, v0", V(1), V(0))
        e("s_add_u32 s58, s10, FU_bt-FU_pc"); e("s_addc_u32 s59, s11, 0")
        E.vload("global_load_dwordx2 v[20:21], v1, s[58:59]", V(20, 2), V(1))
        va("v_lshrrev_b32 v2, 4, v0", V(2), V(0))
        va("v_and_b32 v3, 15, v0", V(3), V(0))
        va("v_lshrrev_b32 v4, 2, v3", V(4), V(3))
        va("v_and_b32 v5, 3, v0", V(5), V(0))
        va("v_lshl_add_u32 v6, v2, 2, v4", V(6), V(2) + V(4))
        va("v_mul_u32_u24 v7, 193, v5", V(7), V(5))
        va("v_mul_u32_u24 v8, 12, v6", V(8), V(6))
        va("v_add_u32 v7, v7, v8", V(7), V(7) + V(8))
        va("v_mov_b32 v10, s56", V(10), [])
        for kg in range(4):
            va("v_xor_b32 v9, %d, v2" % kg, V(9), V(2))
            va("v_add_u32 v9, v7, v9", V(9), V(7) + V(9))
            va("v_lshl_add_u32 v%d, v9, 4, v10" % (24 + kg), V(24 + kg), V(9) + V(10))
        va("v_mul_u32_u24 v7, 193, v2", V(7), V(2))
        va("v_mul_u32_u24 v8, 12, v3", V(8), V(3))
        va("v_add_u32 v7, v7, v8", V(7), V(7) + V(8))
        va("v_lshrrev_b32 v8, 2, v3", V(8), V(3))
        for kg in range(4):
            va("v_xor_b32 v9, %d, v8" % kg, V(9), V(8))
            va("v_add_u32 v9, v7, v9", V(9), V(7) + V(9))
            va("v_lshl_add_u32 v%d, v9, 4, v10" % (244 + kg), V(244 + kg), V(9) + V(10))
        va("v_lshrrev_b32 v2, 4, v0", V(2), V(0))
        va("v_bfe_u32 v3, v0, 2, 2", V(3), V(0))
        va("v_and_b32 v4, 3, v0", V(4), V(0))
        va("v_mul_u32_u24 v7, 193, v4", V(7), V(4))
        va("v_mul_u32_u24 v8, 12, v2", V(8), V(2))
        va("v_add_u32 v7, v7, v8", V(7), V(7) + V(8))
        for v in range(4):
            va("v_xor_b32 v9, %d, v3" % v, V(9), V(3))
            va("v_add_u32 v9, v7, v9", V(9), V(7) + V(9))
            va("v_lshl_add_u32 v%d, v9, 4, v10" % (16 + v), V(16 + v), V(9) + V(10))
        va("v_lshlrev_b32 v7, 13, v2", V(7), V(2))
        va("v_lshl_add_u32 v7, v3, 6, v7", V(7), V(3) + V(7))
        va("v_lshl_add_u32 v11, v4, 4, v7", V(11), V(4) + V(7))
        for task, qs in ((0, 21), (1, 22)):
            e("s_lshr_b32 s62, s%d, 2" % qs); e("s_lshl_b32 s%d, s62, 7" % (78 + task)); e("s_mul_i32 s%d, s62, %d" % (60 + task, XREG))
            e("s_lshl_b32 s62, s20, 2"); e("s_and_b32 s57, s%d, 3" % qs); e("s_add_u32 s62, s62, s57"); e("s_lshl_b32 s62, s62, 2")
            e("s_add_u32 s%d, s%d, s62" % (78 + task, 78 + task)); e("s_add_u32 s%d, s%d, %d" % (78 + task, 78 + task, G['FL_OFF']))
            e("s_lshl_b32 s62, s20, 10"); e("s_add_u32 s%d, s%d, s62" % (60 + task, 60 + task))
            e("s_and_b32 s62, s%d, 3" % qs); e("s_lshl_b32 s62, s62, 8"); e("s_add_u32 s%d, s%d, s62" % (60 + task, 60 + task))
        e("s_mov_b32 s16, s8"); e("s_and_b32 s17, s9, 0xffff"); e("s_mov_b32 s18, %d" % XF_SIZE); e("s_mov_b32 s19, 0x00020000")
    AFR = [32, 160]
    def reads(task, k):
        for kg in range(4):
            for hf in range(2):
                a = AFR[task] + 16 * k + 2 * (2 * kg + hf)
                E.dsread("ds_read_b64_tr_b16 v[%d:%d], v%d offset:%d" % (a, a + 1, 24 + kg, task * SL1 + k * 64 + 8 * hf), V(a, 2), V(24 + kg))
    def mm(task, k, d):
        for i in range(8): E.mfma16(('v', d + 4 * i), ('v', AFR[task] + 16 * k + 2 * i), ('v', 20), None)
    def pack(task, k, d):
        for kg in range(4):
            d0 = d + 8 * kg
            for i in range(4):
                va("v_cvt_pk_bf16_f32 v%d, v%d, v%d" % (d0 + i, d0 + 2 * i, d0 + 2 * i + 1), V(d0 + i), V(d0 + 2 * i, 2))
            E.dswrite("ds_write_b128 v%d, v[%d:%d] offset:%d" % (244 + kg, d0, d0 + 3, task * SL1 + k * 64), V(d0, 4), V(244 + kg))
    ring = [0]
    def out(task, k):
        base = 144 if ring[0] % 2 == 0 else 208
        ring[0] += 1
        for i in range(4):
            r = base + 4 * i
            E.dsread("ds_read_b128 v[%d:%d], v%d offset:%d" % (r, r + 3, 16 + i, task * SL1 + 768 * i + 64 * k), V(r, 4), V(16 + i))
        for i in range(4):
            r = base + 4 * i
            e("s_add_u32 s62, s%d, %d" % (60 + task, i * XW + k * 32768))
            E.vstore("buffer_store_dwordx4 v[%d:%d], v11, s[16:19], s62 offen%s" % (r, r + 3, SF), V(r, 4), V(11), tok=('st', task, k))
    def get_nonce(tag):
        E._need(V(31))
        E.nop(1)
        e("v_readfirstlane_b32 s82, v31")
        e("s_mov_b32 s57, 0")
        E.label("FA_n%s" % tag)
        e("s_cmp_lg_u32 s82, 0"); e("s_cbranch_scc1 FA_nok%s" % tag)
        e("s_add_u32 s57, s57, 1"); e("s_cmp_ge_u32 s57, %d" % env('SPIN', 400000)); e("s_cbranch_scc1 FA_nok%s" % tag)
        e("s_sleep 4")
        e("v_mov_b32 v30, 0"); e("global_load_dword v31, v30, s[76:77] sc1"); e("s_waitcnt vmcnt(0)"); e("v_readfirstlane_b32 s82, v31")
        e("s_branch FA_n%s" % tag)
        E.label("FA_nok%s" % tag)
    def signal(offs):
        for o in offs:
            va("v_mov_b32 v1, s%d" % o, V(1), [])
            va("v_mov_b32 v2, s82", V(2), [])
            e("s_mov_b64 exec, 1")
            E.vstore("global_atomic_swap v1, v2, s[8:9] sc1", V(2), V(1))
            e("s_mov_b64 exec, -1")
    first_loads()
    xsetup()
    E.wait_token(('x', 0, 3))
    st(1)
    for k in range(3): reads(0, k)
    mm(0, 0, 80); mm(0, 1, 112); pack(0, 0, 80); out(0, 0)
    mm(0, 2, 80); pack(0, 1, 112); out(0, 1)
    E.barrier()
    e("s_cmp_eq_u32 s80, 0"); e("s_cbranch_scc1 FA_noassist")
    st_as = snap()
    for i in range(4):
        va("v_add_u32 v%d, s81, v%d" % (200 + i, 24 + i), V(200 + i), V(24 + i))
        va("v_add_u32 v%d, s81, v%d" % (248 + i, 244 + i), V(248 + i), V(244 + i))
        va("v_add_u32 v%d, s81, v%d" % (204 + i, 16 + i), V(204 + i), V(16 + i))
    for k in (1, 2):
        for kg in range(4):
            for hf in range(2):
                a_ = 160 + 16 * (k - 1) + 2 * (2 * kg + hf)
                E.dsread("ds_read_b64_tr_b16 v[%d:%d], v%d offset:%d" % (a_, a_ + 1, 200 + kg, k * 64 + 8 * hf), V(a_, 2), V(200 + kg))
    pack(0, 2, 80)
    def mmP(k, d):
        for i in range(8): E.mfma16(('v', d + 4 * i), ('v', 160 + 16 * (k - 1) + 2 * i), ('v', 20), None)
    def packP(k, d):
        for kg in range(4):
            d0 = d + 8 * kg
            for i in range(4):
                va("v_cvt_pk_bf16_f32 v%d, v%d, v%d" % (d0 + i, d0 + 2 * i, d0 + 2 * i + 1), V(d0 + i), V(d0 + 2 * i, 2))
            E.dswrite("ds_write_b128 v%d, v[%d:%d] offset:%d" % (248 + kg, d0, d0 + 3, k * 64), V(d0, 4), V(248 + kg))
    mmP(1, 112); mmP(2, 80); packP(1, 112)
    for i in range(4):
        r = 144 + 4 * i
        E.dsread("ds_read_b128 v[%d:%d], v%d offset:%d" % (r, r + 3, 204 + i, 768 * i + 64), V(r, 4), V(204 + i))
    for i in range(4):
        r = 144 + 4 * i
        e("s_add_u32 s62, s61, %d" % (i * XW + 32768))
        E.vstore("buffer_store_dwordx4 v[%d:%d], v11, s[16:19], s62 offen%s" % (r, r + 3, SF), V(r, 4), V(11))
    get_nonce('a')
    E._need([('st', 0, 0)])
    signal([78])
    packP(2, 80)
    st(2)
    for i in range(4): va("v_mov_b32 v%d, v%d" % (20 + i, 204 + i), V(20 + i), V(204 + i))
    e("s_mov_b32 s80, s78"); e("s_mov_b32 s81, s79")
    e("s_branch FU_pb")
    E.label("FA_noassist"); rest(st_as)
    pack(0, 2, 80)
    get_nonce('d')
    E._need([('st', 0, 0)])
    signal([78])
    st(2)
    e("s_mov_b32 s80, s78"); e("s_mov_b32 s81, 0"); e("s_mov_b32 s79, 0"); e("s_mov_b32 s61, 0x40000000")
    e("s_branch FU_pb")
    E.label("FA_xx"); rest(base_state); ring[0] = 0
    first_loads()
    xloads(1)
    xsetup()
    E.wait_token(('x', 0, 3))
    st(1)
    for k in range(3): reads(0, k)
    mm(0, 0, 80); mm(0, 1, 112); pack(0, 0, 80); out(0, 0)
    E.wait_token(('x', 1, 3))
    reads(1, 0)
    mm(1, 0, 80); pack(0, 1, 112); pack(1, 0, 80); out(1, 0)
    E.barrier()
    mm(0, 2, 80); out(0, 1)
    get_nonce('b')
    E._need([('st', 0, 0)])
    signal([78])
    pack(0, 2, 80)
    E._need([('st', 1, 0)])
    signal([79])
    st(2)
    e("s_mov_b32 s80, s78"); e("s_mov_b32 s81, 0"); e("s_mov_b32 s79, 0"); e("s_mov_b32 s61, 0x40000000")
    e("s_branch FU_pb")
    E.label("FA_xw"); rest(base_state); ring[0] = 0
    e("s_mul_i32 s63, s20, 21"); e("s_add_u32 s63, s63, s83"); e("s_sub_u32 s63, s63, 40")
    e("s_and_b32 s64, s63, 1")
    e("s_lshr_b32 s63, s63, 1")
    e("s_and_b32 s65, s63, 3")
    e("s_lshr_b32 s63, s63, 2")
    e("s_mul_i32 s66, s63, 86"); e("s_lshr_b32 s66, s66, 8")
    e("s_mul_i32 s67, s66, 3"); e("s_sub_u32 s67, s63, s67")
    va("v_lshlrev_b32 v22, 4, v0", V(22), V(0))
    va("v_add_u32 v23, 1024, v22", V(23), V(22))
    e("s_mul_i32 s68, s66, %d" % (7 * 18432))
    e("s_mul_i32 s69, s67, %d" % (32 * 192)); e("s_add_u32 s68, s68, s69")
    e("s_mul_i32 s69, s65, %d" % (8 * 192)); e("s_add_u32 s68, s68, s69")
    e("s_mov_b32 s72, s86"); e("s_and_b32 s73, s87, 0xffff"); e("s_mov_b32 s74, %d" % WBYTES); e("s_mov_b32 s75, 0x00020000")
    for kw in range(7):
        for hf in range(2):
            e("s_add_u32 m0, s56, %d" % (SL1 + kw * KS + hf * 1024))
            e("s_add_u32 s69, s68, %d" % (kw * 18432))
            E.vload("buffer_load_dwordx4 v%d, s[72:75], s69 offen lds" % (22 + hf), [], V(22 + hf), tok=('w', kw, hf))
    va("v_lshlrev_b32 v2, 3, v0", V(2), V(0))
    e("s_add_u32 s58, s10, FU_gt-FU_pc"); e("s_addc_u32 s59, s11, 0")
    E.vload("global_load_dwordx2 v[22:23], v2, s[58:59]", V(22, 2), V(2))
    first_loads()
    xsetup()
    va("v_bfe_u32 v3, v0, 4, 1", V(3), V(0))
    va("v_bfe_u32 v4, v0, 2, 2", V(4), V(0))
    va("v_lshl_add_u32 v3, v3, 2, v4", V(3), V(3) + V(4))
    va("v_min_u32 v3, 6, v3", V(3), V(3))
    va("v_mul_u32_u24 v3, %d, v3" % KS, V(3), V(3))
    va("v_and_b32 v4, 3, v0", V(4), V(0))
    va("v_lshl_add_u32 v3, v4, 3, v3", V(3), V(3) + V(4))
    e("s_mul_i32 s69, s64, 96"); e("s_add_u32 s69, s69, s56")
    va("v_add_u32 v240, s69, v3", V(240), V(3))
    va("v_lshrrev_b32 v4, 4, v0", V(4), V(0))
    va("v_mul_u32_u24 v241, %d, v4" % (3 * 28 * 1024), V(241), V(4))
    va("v_and_b32 v4, 15, v0", V(4), V(0))
    va("v_lshl_add_u32 v241, v4, 4, v241", V(241), V(241) + V(4))
    e("s_mul_i32 s68, s64, %d" % (3 * 4 * 3 * 28 * 1024))
    e("s_mul_i32 s69, s67, %d" % (28 * 1024)); e("s_add_u32 s68, s68, s69")
    e("s_lshl_b32 s69, s66, 10"); e("s_add_u32 s68, s68, s69")
    e("s_lshl_b32 s69, s65, 8"); e("s_add_u32 s68, s68, s69")
    e("s_add_u32 s72, s8, %d" % WF_OFF); e("s_addc_u32 s73, s9, 0"); e("s_and_b32 s73, s73, 0xffff"); e("s_mov_b32 s74, %d" % WF_SIZE)
    E.wait_token(('w', 6, 1))
    for u in range(3):
        for i in range(8):
            a = 160 + 16 * u + 2 * i
            E.dsread("ds_read_b64_tr_b16 v[%d:%d], v240 offset:%d" % (a, a + 1, SL1 + i * 192 + u * 32), V(a, 2), V(240))
    for u in range(3):
        d = 80 if u % 2 == 0 else 112
        for i in range(8): E.mfma16(('v', d + 4 * i), ('v', 22), ('v', 160 + 16 * u + 2 * i), None)
        for j in range(4):
            p = 224 + 4 * j
            for dd in range(4):
                va("v_cvt_pk_bf16_f32 v%d, v%d, v%d" % (p + dd, d + 8 * dd + j, d + 8 * dd + 4 + j), V(p + dd), V(d + 8 * dd + j) + V(d + 8 * dd + 4 + j))
            e("s_add_u32 s69, s68, %d" % (u * 4 * 3 * 28 * 1024 + j * 7 * 1024))
            E.vstore("buffer_store_dwordx4 v[%d:%d], v241, s[72:75], s69 offen%s" % (p, p + 3, SF), V(p, 4), V(241), tok=('wst', u, j))
    E.wait_token(('x', 0, 3))
    st(1)
    reads(0, 0)
    mm(0, 0, 80); pack(0, 0, 80); out(0, 0)
    E.barrier()
    get_nonce('c')
    E._need([('wst', 2, 3)])
    e("s_lshl_b32 s79, s66, 2"); e("s_add_u32 s79, s79, s65"); e("s_lshl_b32 s79, s79, 1"); e("s_add_u32 s79, s79, s64"); e("s_lshl_b32 s79, s79, 2")
    e("s_lshl_b32 s69, s67, 8"); e("s_add_u32 s79, s79, s69"); e("s_add_u32 s79, s79, %d" % (G['FL_OFF'] + 12288))
    va("v_lshlrev_b32 v1, 10, v0", V(1), V(0))
    va("v_add_u32 v1, s79, v1", V(1), V(1))
    va("v_mov_b32 v2, s82", V(2), [])
    e("s_mov_b64 exec, 0xff")
    E.vstore("global_atomic_swap v1, v2, s[8:9] sc1", V(2), V(1))
    e("s_mov_b64 exec, -1")
    E._need([('st', 0, 0)])
    signal([78])
    st(2)
    e("s_mov_b32 s78, 0"); e("s_mov_b32 s79, 0"); e("s_mov_b32 s80, 0"); e("s_mov_b32 s81, 0")
    e("s_mov_b32 s60, 0x40000000"); e("s_mov_b32 s61, 0x40000000")
    e("s_branch FU_pb")

def tables(E, G):
    cfg = G['cfg']
    tb = np.zeros((64, 4), dtype=np.uint16)
    for l in range(64):
        n, g = l % 16, l // 16
        tb[l] = bf16bits(cfg.BT[n, 4 * g:4 * g + 4])
    E.raw(".p2align 8"); E.label("FU_bt"); E.raw(G['table'](tb.reshape(-1)))
    gc = np.zeros((16, 8)); gc[:, :7] = cfg.G[:, ::-1]
    ghi = bf16r(gc); glo = bf16r(gc - ghi.astype(np.float64))
    tg = np.zeros((64, 4), dtype=np.uint16)
    for l in range(64):
        n, g = l % 16, l // 16
        tg[l] = bf16bits((ghi if g < 2 else glo)[n, 4 * (g % 2):4 * (g % 2) + 4])
    E.label("FU_gt"); E.raw(G['table'](tg.reshape(-1)))
```

```python
import sys, os
import numpy as np
from emit import *
from consts import bf16bits, bf16r

class Task:
    def __init__(s, name, ins, lo, hi, deps=()):
        s.name, s.ins, s.lo, s.hi = name, list(ins), lo, hi
        s.deps = [d if isinstance(d, tuple) else (d, 0) for d in deps]
        s.done_at = None

def gen_k2(G):
    FUSED = G.get('FUSED', 0)
    env = G['env']; cfg = G['cfg']; S = G['S']; NREG = G['NREG']; NC = G['NC']; NCH = G['NCH']
    XW, XREG, XF_SIZE, WW, WF_OFF, WF_SIZE, ST_OFF, XBYTES, ROWB = [G[k] for k in 'XW XREG XF_SIZE WW WF_OFF WF_SIZE ST_OFF XBYTES ROWB'.split()]
    STAMP = env('STAMP', 0)
    PACE = env('PACE', 5); WLAT = env('WLAT', 90)
    E = Em(); e = E.salu
    va = lambda t, d, s_, **kw: E.valu(t, d, s_, **kw)
    class Frag:
        def __init__(s, kind, ch, c, idx, off):
            s.kind, s.ch, s.c, s.idx, s.off = kind, ch, c, idx, off
            s.first = None; s.last = None; s.reg = None; s.issue = None
        def __repr__(s): return "%s(ch%d c%d i%d)" % (s.kind, s.ch, s.c, s.idx)
    X = {}; Hf = {}; W = {}
    for ch in range(NCH):
        for c in range(NC):
            for r in range(S): X[ch, c, r] = Frag('X', ch, c, r, ((ch * NC + c) * S + r) * 1024)
            Hf[ch, c] = Frag('H', ch, c, 0, ((ch * NC + c) * S) * 1024)
            for kh in range(7): W[ch, c, kh] = Frag('W', ch, c, kh, ((ch * NC + c) * 7 + kh) * 1024)
    SHL = set([(NCH - 1, 2), (NCH - 1, 3)]) if env('SHL', 1) else set()
    XS = {}
    for (ch_, c_) in SHL:
        for n in range(1, 7): XS[ch_, c_, -n] = Frag('S', ch_, c_, -n, ((ch_ * NC + c_) * S + S - n) * 1024)
    ops = []
    def op(sl, r, ch, c, kh, cw): ops.append(((sl, r), (ch, c, r - kh), W[ch, cw, kh]))
    marks = {}
    def pstage(ch):
        for hi_, hs in enumerate([[0, 1, 2, 3], [4, 5, 6]]):
            marks['P%d_%d' % (ch, hi_)] = len(ops)
            if ch == 0 and hi_ == 0 and env('WAVEF', 1):
                prs = sorted([(max(7 - (r - kh), kh + env('WFB', 0)), -r, kh) for r in range(S) for kh in hs])
                fl = 0
                for lev, mr, kh in prs:
                    r = -mr
                    seq = [(0, 0, 0), (1, 0, 1), (1, 1, 0), (2, 1, 1)]
                    if fl: seq = seq[::-1]
                    for sl, cx, cw in seq: op(sl, r, ch, cx, kh, cw)
                    fl ^= 1
                continue
            for r in range(S - 1, -1, -1):
                for kh in hs: op(0, r, ch, 0, kh, 0)
                for kh in hs[::-1]: op(1, r, ch, 0, kh, 1)
                for kh in hs: op(1, r, ch, 1, kh, 0)
                for kh in hs[::-1]: op(2, r, ch, 1, kh, 1)
    def rstage(ch, u):
        for r in range(S - 1, -1, -1):
            for kh in range(7): op(2 + u, r, ch, 1 + u, kh, 1 + u)
    for ch in range(NCH - 1):
        pstage(ch); rstage(ch, 1); rstage(ch, 2)
    ch = NCH - 1
    pstage(ch)
    FIN = env('FIN', 2)
    step_end = {}
    if FIN == 1:
        rstage(ch, 1)
        marks['F'] = len(ops)
        for r in range(S - 1, -1, -1):
            for kh in range(7): op(4, r, ch, 3, kh, 3)
            step_end[r] = len(ops) - 1
    else:
        marks['F'] = len(ops)
        for r in range(S - 1, -1, -1):
            for kh in range(7): op(3, r, ch, 2, kh, 2)
            for kh in range(6, -1, -1): op(4, r, ch, 3, kh, 3)
            step_end[r] = len(ops) - 1
    N = len(ops)
    use = {}; acc_last = {}
    for i, (a, xk, w) in enumerate(ops):
        use.setdefault(xk, [i, i])[1] = i
        if w.first is None: w.first = i
        w.last = i
        acc_last[a] = i
    shifts = []
    for (ch, c, r), f in X.items():
        f.first, f.last = use[ch, c, r]
        if (ch, c) in SHL: continue
        if (ch, c, r - S) in use:
            a, b = use[ch, c, r - S]
            assert f.last < a - 12, (ch, c, r, f.last, a)
            shifts.append([f, S - r, f.last, a]); f.last = b
    for key, f in XS.items(): f.first, f.last = use[key]
    for key in SHL: del Hf[key]
    for (ch, c), h in Hf.items():
        sh = [s_ for s_ in shifts if s_[0].ch == ch and s_[0].c == c]
        h.first = max(env('H0', 50), min(s_[2] for s_ in sh) - env('HEARLY', 20)); h.last = max(s_[3] for s_ in sh)
    V_L16, V_HOFF, V_FR = 1, 2, 247
    accreg = {}
    for sl in range(3):
        for r in range(S): accreg[sl, r] = ('a', 4 * (sl * S + r))
    RV = env('RV', 1)
    vbase = 8
    abase = 96
    for sl in (3, 4):
        for r in range(S):
            if RV: accreg[sl, r] = ('v', vbase); vbase += 4
            else: accreg[sl, r] = ('a', abase); abase += 4
    vfree = [('v', x) for x in range(vbase, 253, 4) if x not in ((244, 248, 252) if FUSED else (244, 248))]
    afree = [('a', x) for x in range(abase, 253, 4)]
    vlast = {r: -1 for r in vfree}
    frags = list(X.values()) + list(Hf.values()) + list(W.values()) + list(XS.values())
    frags.sort(key=lambda f: (f.first - (env('SEARLY', 30) if f.kind == 'S' else 0), {'W': 1, 'X': 0, 'H': 2, 'S': 3}[f.kind]))
    gap = [[] for _ in range(N + 1)]
    pending = list(frags); active = []; pre = []
    TEMP_T = marks['P2_1'] - env('TEMPE', 60)
    NTEMP = env('NTEMP', 4)
    reserved = vfree[-NTEMP:]
    def alloc(f):
        if f.kind in 'WS':
            if afree: return afree.pop(0)
            return None
        for r in vfree:
            if r in reserved and f.last >= TEMP_T: continue
            vfree.remove(r); return r
        return None
    def release(upto):
        for f in list(active):
            if f.last < upto:
                active.remove(f); (afree if f.reg[0] == 'a' else vfree).append(f.reg)
    while pending and len(pre) < env('NPRE', 16):
        f = pending.pop(0); f.reg = alloc(f); f.issue = -1; pre.append(f); active.append(f)
    lastload = -100
    for i in range(1, N):
        release(i - 1)
        pace = env('PACE0', PACE) if i < env('RAMP', 0) else PACE
        if pending and (i - lastload >= pace or pending[0].first - i < env('URG', 40)):
            f = pending[0]; r = alloc(f)
            if r is not None:
                f.reg = r; f.issue = i; active.append(f); pending.pop(0); gap[i].append(('load', f)); lastload = i
            elif f.first - i < 3: raise Exception("no register for %s at %d" % (f, i))
    assert not pending
    for f in frags:
        if f.reg[0] == 'v': vlast[f.reg] = max(vlast[f.reg], f.last)
    la = [f.first - f.issue for f in frags if f.issue > 0]
    sys.stderr.write("K2 lookahead (slots): min %d p10 %d median %d\n" % (min(la), np.percentile(la, 10), np.median(la)))
    TPF = env('TPF', 0); TP = env('TP', 6); TLEAD = env('TLEAD', 90); NT0 = env('NT0', 14)
    touches = []
    if TPF:
        cand = []
        for m in range(768 // 6):
            line = 6 * m + 3
            f = X[(6 * m // 8) // (NC * S), ((6 * m // 8) // S) % NC, (6 * m // 8) % S]
            cand.append((f.issue, 'X', m * 768))
        for m in range(672 // 5):
            fi = 5 * m // 8
            f = W[fi // (NC * 7), (fi // 7) % NC, fi % 7]
            cand.append((f.issue, 'W', m * 640))
        cand.sort()
        cand = [c for c in cand if c[0] > env('TSKIP', 0)]
        pre_t = cand[:NT0]; rest = cand[NT0:]
        touches = pre_t
        i = env('T0', 40)
        while rest and i < N:
            while rest and rest[0][0] - i < TLEAD: rest.pop(0)
            if not rest: break
            gap[i].append(('touch', rest.pop(0))); i += TP
        sys.stderr.write("K2 touches: %d in prologue, %d in loop\n" % (len(pre_t), sum(1 for g in gap for x in g if x[0] == 'touch')))
    cnt = [len(g) for g in gap]
    if env('PREDW', 1):
        order_ = pre + [x[1] for g in gap for x in g if x[0] == 'load']
        posn = {id(f): k for k, f in enumerate(order_)}
        done_ = -1; nw_ = 0
        for i, (a_, xk, w_) in enumerate(ops):
            ch_, c_, rho_ = xk
            xf_ = XS[xk] if (rho_ < 0 and (ch_, c_) in SHL) else X[ch_, c_, rho_ if rho_ >= 0 else rho_ + S]
            k = max(posn[id(xf_)], posn[id(w_)])
            if k > done_:
                while k + 1 < len(order_) and order_[k + 1].issue >= 0 and order_[k + 1].issue + WLAT <= i and order_[k + 1].issue < i: k += 1
                done_ = k; cnt[i] += 1; nw_ += 1
        sys.stderr.write("K2 predicted waits: %d\n" % nw_)
    tasks = []
    slot_now = [0]
    def prewait(rs):
        rs = set(rs); idx = None; cur = slot_now[0]
        for i, d in enumerate(E.vm):
            if d & rs: idx = i
        if idx is None: return
        while idx + 1 < len(E.vm):
            sl = [t[1] for t in E.vm[idx + 1] if t[0] == 'slot']
            if sl and sl[0] >= 0 and sl[0] + WLAT <= cur: idx += 1
            else: break
        E.wait(len(E.vm) - 1 - idx, None)
    def mk_shift(f, n):
        h = Hf[f.ch, f.c]
        ins = []
        if env('NODPP', 0): return [lambda: None]
        for d in range(4):
            def mv(d=d):
                r = f.reg[1] + d; prewait(V(r))
                va("v_mov_b32_dpp v%d, v%d row_shr:1 row_mask:0xf bank_mask:0xf" % (r, r), V(r), [], dpp=V(r))
            ins.append(mv)
        for d in range(4):
            def cm(d=d):
                r = f.reg[1] + d; hr = h.reg[1] + d; k = 6 - n
                prewait(V(hr))
                if k > 0: va("v_cndmask_b32_dpp v%d, v%d, v%d, vcc row_shl:%d row_mask:0xf bank_mask:0xf" % (r, hr, r, k), V(r), V(r), dpp=V(hr))
                else: va("v_cndmask_b32 v%d, v%d, v%d, vcc" % (r, hr, r), V(r), V(r) + V(hr))
            ins.append(cm)
        return ins
    for f, n, lo, hi in shifts:
        h = Hf[f.ch, f.c]
        lo2 = max(lo + 1, min(h.issue + env('HLAT', 60), hi - 20) if h.issue > 0 else 0)
        tasks.append(Task('sh', mk_shift(f, n), lo2, hi - 3))
    PL = 32768; STG = 3 * PL; LDS = STG + 4 * 16384
    tmp = [r[1] for r in reserved]
    late = sorted([r[1] for r, l in vlast.items() if r not in reserved and l < marks['F'] + 2])
    a0, a1 = 244, 248
    AT = 4
    V_WP, V_WR, V_IR, V_SW = a0, a0 + 1, a0 + 2, a0 + 3
    assert env('DST', 1)
    V_SW = 240
    V_SR, V_O0, V_O1, V_SH = a1, a1 + 1, a1 + 2, a1 + 3
    V_SR = 241
    sc = [236 + i for i in range(8)]
    PT = [tmp[0], tmp[1], tmp[2], tmp[3]]
    setup = []
    MK = 64 if STAMP else 70
    def S_(fn): setup.append(fn)
    t0, t1, t2, t3, t4, t5, t6, t7 = sc
    vv = lambda t, d, s_: S_(lambda: va(t, d, s_))
    ss = lambda t: S_(lambda: e(t))
    vv("v_and_b32 v%d, 15, v0" % t1, V(t1), V(0))
    vv("v_lshrrev_b32 v%d, 4, v0" % t2, V(t2), V(0))
    vv("v_lshlrev_b32 v%d, 10, v%d" % (t3, t2), V(t3), V(t2))
    vv("v_lshl_add_u32 v%d, v%d, 4, v%d" % (t3, t1, t3), V(t3), V(t1) + V(t3))
    ss("s_lshr_b32 s33, s24, 1"); ss("s_mul_i32 s33, s33, %d" % PL); ss("s_and_b32 s34, s24, 1"); ss("s_lshl_b32 s34, s34, 3"); ss("s_add_u32 s33, s33, s34")
    vv("v_add_u32 v%d, s33, v%d" % (V_WP, t3), V(V_WP), V(t3))
    vv("v_xor_b32 v%d, s24, v%d" % (t4, t2), V(t4), V(t2))
    vv("v_lshl_add_u32 v%d, v%d, 2, v%d" % (t4, t4, t3), V(t4), V(t4) + V(t3))
    vv("v_add_u32 v%d, %d, v%d" % (V_WR, 2 * PL, t4), V(V_WR), V(t4))
    vv("v_min_u32 v%d, 2, v%d" % (t3, t2), V(t3), V(t2))
    vv("v_lshlrev_b32 v%d, 15, v%d" % (t3, t3), V(t3), V(t3))
    vv("v_lshl_add_u32 v%d, v%d, 4, v%d" % (t3, t1, t3), V(t3), V(t1) + V(t3))
    ss("s_lshl_b32 s33, s24, 10")
    vv("v_add_u32 v%d, s33, v%d" % (V_IR, t3), V(V_IR), V(t3))
    ss("s_lshl_b32 s33, s24, 14"); ss("s_add_u32 s33, s33, %d" % STG)
    vv("v_and_b32 v%d, 15, v0" % t1, V(t1), V(0))
    vv("v_lshrrev_b32 v%d, 1, v%d" % (t3, t2), V(t3), V(t2))
    vv("v_lshl_add_u32 v%d, v%d, 1, v%d" % (t3, t1, t3), V(t3), V(t1) + V(t3))
    vv("v_bfe_u32 v%d, v%d, 2, 1" % (t4, t1), V(t4), V(t1))
    vv("v_xor_b32 v%d, v%d, v%d" % (t3, t3, t4), V(t3), V(t3) + V(t4))
    vv("v_and_b32 v%d, 1, v%d" % (t4, t2), V(t4), V(t2))
    vv("v_lshlrev_b32 v%d, %d, v%d" % (t4, 9 if env('B128', 1) else 3, t4), V(t4), V(t4))
    vv("v_lshl_add_u32 v%d, v%d, 4, v%d" % (t3, t3, t4), V(t3), V(t3) + V(t4))
    vv("v_add_u32 v%d, s33, v%d" % (V_SW, t3), V(V_SW), V(t3))
    vv("v_bfe_u32 v%d, v0, 3, 1" % t4, V(t4), V(0))
    vv("v_xor_b32 v%d, v0, v%d" % (t4, t4), V(t4), V(0) + V(t4))
    vv("v_lshl_add_u32 v%d, v%d, 4, s33" % (V_SR, t4), V(V_SR), V(t4))
    if env('DST', 1):
        vv("v_bfe_u32 v%d, v0, 4, 1" % t0, V(t0), V(0))
        vv("v_and_b32 v%d, 15, v0" % t1, V(t1), V(0))
        vv("v_lshrrev_b32 v%d, 5, v0" % t2, V(t2), V(0))
    else:
        vv("v_lshrrev_b32 v%d, 5, v0" % t0, V(t0), V(0))
        vv("v_bfe_u32 v%d, v0, 1, 4" % t1, V(t1), V(0))
        vv("v_and_b32 v%d, 1, v0" % t2, V(t2), V(0))
    ss("s_mov_b32 s38, 224"); ss("s_mov_b32 s35, 2260"); ss("s_mov_b32 s37, 192")
    for p in range(2):
        o = V_O0 + p
        ss("s_lshl_b32 s33, s27, 4"); ss("s_lshl_b32 s34, s24, 2"); ss("s_add_u32 s33, s33, s34"); ss("s_add_u32 s33, s33, %d" % (2 * p))
        vv("v_add_u32 v%d, s33, v%d" % (t3, t0), V(t3), V(t0))
        vv("v_mul_u32_u24 v%d, s35, v%d" % (t4, t3), V(t4), V(t3))
        vv("v_lshrrev_b32 v%d, 16, v%d" % (t4, t4), V(t4), V(t4))
        vv("v_mul_u32_u24 v%d, 29, v%d" % (t5, t4), V(t5), V(t4))
        vv("v_sub_u32 v%d, v%d, v%d" % (t5, t3, t5), V(t5), V(t3) + V(t5))
        vv("v_mul_u32_u24 v%d, 10, v%d" % (t6, t4), V(t6), V(t4))
        vv("v_add_u32 v%d, v%d, v%d" % (t6, t6, t1), V(t6), V(t6) + V(t1))
        vv("v_subrev_u32 v%d, 1, v%d" % (t7, t5), V(t7), V(t5))
        vv("v_mul_u32_u24 v%d, %d, v%d" % (t7, 8 * 224, t7), V(t7), V(t7))
        vv("v_add_u32 v%d, v%d, v%d" % (t7, t7, t6), V(t7), V(t7) + V(t6))
        vv("v_mul_lo_u32 v%d, v%d, s37" % (t7, t7), V(t7), V(t7))
        vv("v_lshl_add_u32 v%d, v%d, 4, v%d" % (t7, t2, t7), V(t7), V(t7) + V(t2))
        ss("s_lshl_b32 s34, s28, 5")
        vv("v_add_u32 v%d, s34, v%d" % (t7, t7), V(t7), V(t7))
        vv("v_cmp_ne_u32 s[%d:%d], 0, v%d" % (MK, MK + 1, t5), [], V(t5))
        vv("v_cmp_gt_u32 s[%d:%d], 10, v%d" % (MK + 2, MK + 3, t1), [], V(t1))
        vv("v_cmp_gt_u32 s[%d:%d], s38, v%d" % (MK + 4, MK + 5, t6), [], V(t6))
        vv("v_mov_b32 v%d, 0x7fffffff" % t3, V(t3), [])
        S_(lambda: E.nop(3))
        ss("s_and_b64 s[%d:%d], s[%d:%d], s[%d:%d]" % (MK, MK + 1, MK, MK + 1, MK + 2, MK + 3)); ss("s_and_b64 s[%d:%d], s[%d:%d], s[%d:%d]" % (MK, MK + 1, MK, MK + 1, MK + 4, MK + 5))
        S_(lambda: E.nop(1))
        vv("v_cndmask_b32 v%d, v%d, v%d, s[%d:%d]" % (o, t3, t7, MK, MK + 1), V(o), V(t3) + V(t7))
    ss("s_cmp_eq_u32 s27, 0"); ss("s_cselect_b32 s33, 0, %d" % XREG)
    vv("v_and_b32 v%d, 15, v0" % t3, V(t3), V(0))
    vv("v_add_u32 v%d, -1, v%d" % (t3, t3), V(t3), V(t3))
    vv("v_lshrrev_b32 v%d, 2, v%d" % (t4, t3), V(t4), V(t3))
    vv("v_lshlrev_b32 v%d, 8, v%d" % (t4, t4), V(t4), V(t4))
    vv("v_and_b32 v%d, 3, v%d" % (t3, t3), V(t3), V(t3))
    vv("v_lshl_add_u32 v%d, v%d, 4, v%d" % (t3, t3, t4), V(t3), V(t3) + V(t4))
    vv("v_lshrrev_b32 v%d, 4, v0" % t4, V(t4), V(0))
    vv("v_lshlrev_b32 v%d, 6, v%d" % (t4, t4), V(t4), V(t4))
    vv("v_add3_u32 v%d, v%d, v%d, s33" % (t3, t3, t4), V(t3), V(t3) + V(t4))
    vv("v_add_u32 v%d, 816, v%d" % (t4, t4), V(t4), V(t4))
    vv("v_cndmask_b32 v%d, v%d, v%d, vcc" % (V_SH, t4, t3), V(V_SH), V(t4) + V(t3))
    ss("s_mov_b32 s6, %d" % XBYTES); ss("s_mov_b32 s7, 0x00020000"); ss("s_and_b32 s5, s5, 0xffff")
    mreg = 64 if STAMP else 94
    ss("s_mov_b32 s%d, 0x03ff03ff" % mreg); ss("s_mov_b32 s%d, 0x03ff03ff" % (mreg + 1))
    T_setup = Task('setup', [], 0, 0); T_setup.done_at = 0
    T_pp = {}
    prev = T_setup
    for r in range(S - 1, -1, -1):
        rd = {}; cv = {}; wr = {}
        for j in range(4):
            t = PT[j]
            rd[j] = [(lambda t=t, sl=sl, ar=accreg[sl, r][1] + j: va("v_accvgpr_read_b32 v%d, a%d" % (t + sl, ar), V(t + sl), A(ar))) for sl in range(3)]
            cv[j] = [lambda t=t: va("v_cvt_pk_bf16_f32 v%d, v%d, v%d" % (t, t, t + 1), V(t), V(t, 2)), lambda t=t: va("v_cvt_pk_bf16_f32 v%d, v%d, 0" % (t + 1, t + 2), V(t + 1), V(t + 2))]
            wr[j] = [lambda t=t, j=j, r=r: E.dswrite("ds_write_b64 v%d, v[%d:%d] offset:%d" % (V_WP, t, t + 1, (r * 16 + j) * 256), V(t, 2), V(V_WP))]
        ins = rd[0] + rd[1] + cv[0] + rd[2] + wr[0] + cv[1] + rd[3] + wr[1] + cv[2] + cv[3] + wr[2] + wr[3]
        lo = max(acc_last[sl, r] for sl in range(3)) + 6
        T_pp[r] = Task('pp%d' % r, ins, lo, step_end[r] + 4, [prev]); prev = T_pp[r]; tasks.append(T_pp[r])
    RT = late[0:2]
    order = list(range(S - 1, -1, -1))
    T_rp = {}
    for si, r in enumerate(order):
        se = step_end[r]
        ins = []
        for j in range(4):
            t = RT[si % 2] + j
            r1 = accreg[3, r][1] + j; r2 = accreg[4, r][1] + j
            ins.append(lambda t=t, r1=r1, r2=r2: va("v_cvt_pk_bf16_f32 v%d, v%d, v%d" % (t, r1, r2), V(t), V(r1) + V(r2)))
        for j in range(4):
            t = RT[si % 2] + j
            ins.append(lambda t=t, j=j, r=r: E.dswrite("ds_write_b32 v%d, v%d offset:%d" % (V_WR, t, (r * 16 + j) * 256), V(t), V(V_WR), tok=('rp', r)))
        T_rp[r] = Task('rp%d' % r, ins, se + 4, se + 10, [T_pp[r]])
        tasks.append(T_rp[r])
    B128 = env('B128', 1)
    lateA = [x for x in late if x not in RT]
    def inv_seq(rows, AFp, DIp, OUTp):
        na, nd, no = len(AFp) // 4, len(DIp) // 4, len(OUTp) // 2
        def reads(si):
            r = rows[si]
            return [lambda a=a, r=r, f=AFp[4 * (si % na) + a]: E.dsread("ds_read_b128 v[%d:%d], v%d offset:%d" % (f, f + 3, V_IR, (r * 16 + a) * 256), V(f, 4), V(V_IR)) for a in range(4)]
        def mm(si):
            return [lambda a=a: E.mfma(('v', DIp[4 * (si % nd) + a]), ('v', AFp[4 * (si % na) + a]), ('v', AT), None) for a in range(4)]
        def cw(si):
            r = rows[si]; ins = []
            D = [DIp[4 * (si % nd) + a] for a in range(4)]
            if not B128:
                for a in range(4):
                    d = D[a]
                    ins.append(lambda d=d: va("v_cvt_pk_bf16_f32 v%d, v%d, v%d" % (d, d, d + 1), V(d), V(d, 2)))
                    ins.append(lambda d=d: va("v_cvt_pk_bf16_f32 v%d, v%d, v%d" % (d + 1, d + 2, d + 3), V(d + 1), V(d + 2, 2)))
            if B128:
                for p in range(2):
                    d0 = D[2 * p]
                    ins.append(lambda d0=d0: va("v_cvt_pk_bf16_f32 v%d, v%d, v%d" % (d0, d0, d0 + 1), V(d0), V(d0, 2)))
                    ins.append(lambda d0=d0: va("v_cvt_pk_bf16_f32 v%d, v%d, v%d" % (d0 + 1, d0 + 2, d0 + 3), V(d0 + 1), V(d0 + 2, 2)))
                for p in range(2):
                    d0, d1 = D[2 * p], D[2 * p + 1]
                    ins.append(lambda d0=d0, d1=d1: va("v_cvt_pk_bf16_f32 v%d, v%d, v%d" % (d0 + 2, d1, d1 + 1), V(d0 + 2), V(d1, 2)))
                    ins.append(lambda d0=d0, d1=d1: va("v_cvt_pk_bf16_f32 v%d, v%d, v%d" % (d0 + 3, d1 + 2, d1 + 3), V(d0 + 3), V(d1 + 2, 2)))
                for p in range(2):
                    d0 = D[2 * p]
                    ins.append(lambda d0=d0: va("v_permlane16_swap_b32 v%d, v%d" % (d0, d0 + 2), V(d0) + V(d0 + 2), V(d0) + V(d0 + 2), perm=True))
                    ins.append(lambda d0=d0: va("v_permlane16_swap_b32 v%d, v%d" % (d0 + 1, d0 + 3), V(d0 + 1) + V(d0 + 3), V(d0 + 1) + V(d0 + 3), perm=True))
                if env('DST', 1):
                    def both(r=r, D=D):
                        e("s_mov_b32 s33, %d" % (r * ROWB))
                        E._need(V(D[0], 4) + V(D[2], 4))
                        E._pad(max(E._dist(V(D[0], 4) + V(D[2], 4), {'mfma': 8}), 0))
                        if env('XM', 1): e("s_mov_b64 exec, s[94:95]" if not STAMP else "s_mov_b64 exec, s[64:65]")
                        for p in range(2):
                            d0 = D[2 * p]
                            if env('NOOUT', 0) == 1 or (env('NOOUT', 0) == 2 and p): continue
                            E.vstore("buffer_store_dwordx4 v[%d:%d], v%d, s[4:7], s33 offen%s" % (d0, d0 + 3, V_O0 + p, env('OSF', '')), V(d0, 4), V(V_O0 + p))
                        if env('XM', 1): e("s_mov_b64 exec, -1")
                        if str(r) in env('WB', '').split(','):
                            e("s_lshl_b32 s34, s2, 2"); e("s_add_u32 s34, s34, s24")
                            e("s_cmp_ge_u32 s34, %d" % env('WBN', 32)); e("s_cbranch_scc1 K2_nowb%d" % r)
                            e("s_cmp_lg_u32 s24, 0"); e("s_cbranch_scc1 K2_nowb%d" % r)
                            e("buffer_wbl2 sc1")
                            E.label("K2_nowb%d" % r)
                    ins.append(both)
                    return ins
                for p in range(2):
                    d0 = D[2 * p]
                    ins.append(lambda d0=d0, p=p, r=r: E.dswrite("ds_write_b128 v%d, v[%d:%d] offset:%d" % (V_SW, d0, d0 + 3, (r * 4 + 2 * p) * 512), V(d0, 4), V(V_SW)))
            else:
                for a in range(4):
                    d = D[a]
                    ins.append(lambda d=d, a=a, r=r: E.dswrite("ds_write_b64 v%d, v[%d:%d] offset:%d" % (V_SW, d, d + 1, (r * 4 + a) * 512), V(d, 2), V(V_SW)))
            for p in range(2):
                o = OUTp[2 * (si % no) + p]
                ins.append(lambda o=o, p=p, r=r: E.dsread("ds_read_b128 v[%d:%d], v%d offset:%d" % (o, o + 3, V_SR, (r * 4 + 2 * p) * 512), V(o, 4), V(V_SR)))
            return ins
        def st(si):
            if env('DST', 1): return []
            r = rows[si]; ins = [lambda r=r: e("s_mov_b32 s33, %d" % (r * ROWB))]
            for p in range(2):
                o = OUTp[2 * (si % no) + p]
                if env('NOOUT', 0): continue
                ins.append(lambda o=o, p=p: E.vstore("buffer_store_dwordx4 v[%d:%d], v%d, s[4:7], s33 offen%s" % (o, o + 3, V_O0 + p, env('OSF', '')), V(o, 4), V(V_O0 + p)))
            return ins
        n = len(rows); seq = []
        head = []
        for si in range(min(na, n)): head += reads(si)
        for si in range(n + 2):
            if si < n: seq += mm(si)
            if si + na < n: seq += reads(si + na)
            if no == 1 and 0 <= si - 2 < n: seq += st(si - 2)
            if 0 <= si - 1 < n: seq += cw(si - 1)
            if no > 1 and 0 <= si - 2 < n: seq += st(si - 2)
        return head, seq
    NA = env('NA', 4 if FIN == 1 else 7)
    rowsA = order[:NA]; rowsB = order[NA:]
    T_A = None
    if NA and FIN == 1:
        assert len(lateA) >= 16, lateA
        hA, sA = inv_seq(rowsA, lateA[0:8], lateA[8:16], [lateA[16], lateA[17]] if len(lateA) >= 18 else [0, 0])
        def barA(): E._need([('rp', rowsA[-1])]); E.barrier()
        T_barA = Task('barA', [barA], 0, step_end[rowsA[-1]] + 12, [(T_rp[rowsA[-1]], env('LBA', 4))])
        T_A = Task('invA', hA + sA, 0, N + 500, [T_barA])
        tasks += [T_barA, T_A]
    if NA and FIN == 2:
        assert len(lateA) >= 16, lateA
        AF2 = lateA[0:8]; DI2 = lateA[8:16]
        L1, L2, L3 = env('L1', 4), env('L2', 7), env('L3', 3)
        pb = None; pm = {}; pc = {}
        for si, r in enumerate(rowsA):
            se = step_end[r]
            def bar(r=r):
                if env('NOBAR', 0) in (1, 2):
                    if env('NOBAR', 0) == 2: E._need([('rp', r)])
                    return
                E._need([('rp', r)]); E.barrier()
            tb_ = Task('bar%d' % r, [bar], 0, se + 12, [(T_rp[r], L1)] + ([pb] if pb else []))
            pb = tb_
            af = AF2[4 * (si % 2):4 * (si % 2) + 4]; di = DI2[4 * (si % 2):4 * (si % 2) + 4]
            h_, s_ = inv_seq([r], af, di, [0, 0])
            mms, rest = s_[:4], s_[4:]
            t1_ = Task('rd%d' % r, h_, 0, se + 16, [tb_] + ([pm[si - 2]] if si >= 2 else []))
            t2_ = Task('mm%d' % r, mms, 0, se + 26, [(t1_, L2)] + ([pc[si - 2]] if si >= 2 else []))
            t3_ = Task('cw%d' % r, rest, 0, se + 40, [(t2_, L3)])
            pm[si] = t2_; pc[si] = t3_
            tasks += [tb_, t1_, t2_, t3_]
    def final():
        used = set(lateA[:18]) if NA else set()
        pool = sorted(set([accreg[sl, r][1] for sl in (3, 4) for r in rowsA] + [r_[1] for r_ in vlast.keys() if r_ not in reserved]) - set(RT) - used)
        nb = len(rowsB)
        hB, sB = inv_seq(rowsB, pool[0:4 * min(nb, 4)], pool[16:24], pool[24:28])
        E.wait(None, 0)
        if STAMP == 3: e("s_memtime s[72:73]")
        E.barrier()
        if STAMP == 3: e("s_memtime s[74:75]")
        for f in hB: f()
        if T_A is not None:
            for f in T_A.rest: f()
        for x in deferred:
            for f in x: f()
        if STAMP == 3: e("s_memtime s[84:85]")
        for k_, f in enumerate(sB):
            f()
            if STAMP == 3 and k_ == len(sB) // 2: e("s_memtime s[86:87]")
    deferred = []
    def budget(i):
        if i >= marks['F']: return env('BF', 3)
        if i >= TEMP_T: return env('BP', 2)
        return 1
    MAXF = env('MAXF', 2)
    delay = {}
    for i in range(1, N + 1):
        k = 0
        while True:
            avail = [x for x in tasks if x.ins and (x.lo <= i or i == N) and all(d.done_at is not None and (i == N or i >= d.done_at + lg) for d, lg in x.deps)]
            if not avail: break
            avail.sort(key=lambda x: x.hi)
            if i < N:
                b = budget(i) - cnt[i]
                urgent = False
                if b <= k:
                    if k >= max(MAXF, budget(i)) - cnt[i]: break
                    tot = 0
                    for y in sorted([x for x in tasks if x.ins and x.lo <= i + 40 and x.name == 'sh'], key=lambda x: x.hi):
                        tot += len(y.ins)
                        cap = sum(1 for g in range(i + 1, min(y.hi + 1, N)) if cnt[g] == 0)
                        if tot - 1 > cap * env('URGF', 0.9): urgent = True; break
                    if not urgent: break
            x = avail[0]
            if i == N and x.name == 'invA':
                x.rest = list(x.ins); x.ins = []; x.done_at = i; continue
            if i == N and x.name[:2] in ('mm', 'cw'):
                deferred.append(list(x.ins)); x.ins = []; x.done_at = i; continue
            if x.name == 'sh': assert i <= x.hi, ("shift late", i, x.hi)
            gap[i].append(('ins', x.ins.pop(0), x.name)); k += 1
            if not x.ins: x.done_at = i
        cnt[i] += k
    if T_A is not None and not hasattr(T_A, 'rest'): T_A.rest = []
    assert all(not x.ins for x in tasks), [x.name for x in tasks if x.ins]
    sys.stderr.write("K2 tail after last MFMA: %d instr; done: %s\n" % (len(gap[N]), " ".join("%s@%d" % (x.name, x.done_at - marks['F']) for x in tasks if x.name[:2] in ('pp', 'ba', 'cw'))))
    KN = "FU" if FUSED else "K2"
    FST = env('FSTAMP', 0)
    fs_regs = {1: 88, 2: 90, 3: 92, 4: 96, 5: 98, 6: 82}
    def fs2(n): e("s_memrealtime s[%d:%d]" % (fs_regs[n], fs_regs[n] + 1))
    G['fs2'] = fs2
    def fstamp(n):
        if env('FS2', 0) and n in (3, 4, 5): return
        if FST and n in fs_regs: e("s_memrealtime s[%d:%d]" % (fs_regs[n], fs_regs[n] + 1))
    if FUSED:
        import pagen
        G['fstamp'] = (lambda n: fstamp(n) if n < 3 else None)
        e("s_load_dwordx4 s[84:87], s[0:1], 0" if not FST else "s_load_dwordx4 s[84:87], s[0:1], 0")
        e("s_load_dwordx4 s[4:7], s[0:1], 16")
        e("s_load_dwordx2 s[8:9], s[0:1], 32")
        if FST: e("s_memrealtime s[100:101]")
        e("s_getpc_b64 s[10:11]")
        E.label("FU_pc")
        e("s_cmp_ge_u32 s2, 256"); e("s_cbranch_scc1 K2_end")
        va("v_lshrrev_b32 v3, 6, v0", V(3), V(0))
        va("v_and_b32 v0, 63, v0", V(0), V(0))
        E.nop(1)
        e("v_readfirstlane_b32 s24, v3")
        pagen.phase_a(E, G)
        E.label("FU_pb")
        E.vm = []; E.lg = []; E.w = {}; E.mc = {}; E.sd = {}
        e("s_waitcnt lgkmcnt(0)")
        e("s_mov_b32 s88, s60"); e("s_mov_b32 s89, s61")
        e("s_mov_b32 s84, s8"); e("s_and_b32 s85, s9, 0xffff"); e("s_mov_b32 s86, %d" % XF_SIZE); e("s_mov_b32 s87, 0x00020000")
        if env('CPF', 1):
            e("s_cmp_ge_u32 s2, 8"); e("s_cbranch_scc1 K2_nocpf")
            e("s_lshl_b32 s33, s24, 13")
            va("v_lshlrev_b32 v4, 7, v0", V(4), V(0))
            va("v_add_u32 v4, s33, v4", V(4), V(4))
            va("v_min_u32 v4, K2_code_end-FU_pc-4, v4", V(4), V(4))
            E.vload("global_load_dword v72, v4, s[10:11]", V(72), V(4))
            E.label("K2_nocpf")
            E.vm = []
    else:
        e("s_load_dwordx2 s[8:9], s[0:1], 32")
        e("s_load_dwordx2 s[4:5], s[0:1], 16")
        if STAMP: e("s_memtime s[70:71]"); e("s_memrealtime s[80:81]")
        e("s_getpc_b64 s[10:11]")
        E.label("K2_pc")
        e("s_cmp_ge_u32 s2, 256"); e("s_cbranch_scc1 K2_end")
        va("v_lshrrev_b32 v3, 6, v0", V(3), V(0))
        if env('CPF', 1):
            va("v_lshlrev_b32 v4, 7, v0", V(4), V(0))
            va("v_min_u32 v4, K2_code_end-K2_pc-4, v4", V(4), V(4))
        va("v_and_b32 v0, 63, v0", V(0), V(0))
        E.nop(1)
        e("v_readfirstlane_b32 s24, v3")
        if env('CPF', 1):
            e("s_cmp_ge_u32 s2, 8"); e("s_cbranch_scc1 K2_nocpf")
            E.vload("global_load_dword v255, v4, s[10:11]", V(255), V(4))
            E.label("K2_nocpf")
    FL_OFF = G.get('FL_OFF', 0)
    nsig = [0]
    def signal12(plane=6144, tv=(10, 11), srcs=(78, 79)):
        for o in srcs:
            e("s_cmp_eq_u32 s%d, 0" % o); e("s_cbranch_scc1 FU_nosig%d_%d" % (nsig[0], o))
            e("s_add_u32 s33, s%d, %d" % (o, plane))
            e("v_mov_b32 v%d, s33" % tv[0]); e("v_mov_b32 v%d, s82" % tv[1])
            e("s_mov_b64 exec, 1")
            e("global_atomic_swap v%d, v%d, s[8:9] sc1" % tv)
            e("s_mov_b64 exec, -1")
            E.label("FU_nosig%d_%d" % (nsig[0], o))
        nsig[0] += 1
    def signal1(tv):
        e("s_cmp_eq_u32 s80, 3"); e("s_cselect_b32 s80, 0, s78")
        signal12(6144, tv, (80, 81))
    e("s_and_b32 s25, s2, 7"); e("s_lshr_b32 s26, s2, 3")
    e("s_mul_i32 s27, s26, 43"); e("s_lshr_b32 s27, s27, 8"); e("s_mul_i32 s28, s27, 6"); e("s_sub_u32 s28, s26, s28")
    e("s_lshl_b32 s27, s27, 3"); e("s_add_u32 s27, s27, s25")
    e("s_cmp_lt_u32 s26, 30"); e("s_cbranch_scc1 K2_map")
    e("s_lshl_b32 s29, s25, 1"); e("s_add_u32 s29, s29, s26"); e("s_sub_u32 s29, s29, 30")
    e("s_mul_i32 s27, s29, 43"); e("s_lshr_b32 s27, s27, 8"); e("s_mul_i32 s28, s27, 6"); e("s_sub_u32 s28, s29, s28"); e("s_add_u32 s27, s27, 40")
    E.label("K2_map")
    e("s_cmp_ge_u32 s27, %d" % NREG); e("s_cbranch_scc1 %s" % ("FU_idle" if FUSED else "K2_end"))
    va("v_lshlrev_b32 v%d, 4, v0" % V_L16, V(V_L16), V(0))
    va("v_and_b32 v3, 15, v0", V(3), V(0))
    va("v_cmp_ne_u32 vcc, 0, v3", [], V(3))
    va("v_lshrrev_b32 v4, 4, v0", V(4), V(0))
    va("v_lshlrev_b32 v4, 6, v4", V(4), V(4))
    va("v_lshrrev_b32 v5, 2, v3", V(5), V(3))
    va("v_lshl_add_u32 v5, v5, 8, v4", V(5), V(5) + V(4))
    va("v_and_b32 v6, 3, v0", V(6), V(0))
    va("v_lshl_add_u32 v%d, v6, 4, v5" % V_FR, V(V_FR), V(5) + V(6))
    va("v_min_u32 v3, 5, v3", V(3), V(3))
    va("v_add_u32 v3, %d, v3" % (S - 6), V(3), V(3))
    va("v_lshlrev_b32 v3, 10, v3", V(3), V(3))
    va("v_add3_u32 v%d, v3, v4, s%d" % (V_HOFF, 33) if False else "v_add_u32 v3, v3, v4", V(3), V(3) + V(4))
    va("v_add_u32 v%d, 816, v3" % V_HOFF, V(V_HOFF), V(3))
    e("s_lshl_b32 s29, s27, 2"); e("s_add_u32 s29, s29, s24"); e("s_mul_i32 s29, s29, %d" % XW)
    e("s_max_u32 s30, s27, 1"); e("s_sub_u32 s30, s30, 1"); e("s_lshl_b32 s30, s30, 2"); e("s_add_u32 s30, s30, s24"); e("s_mul_i32 s30, s30, %d" % XW)
    e("s_lshl_b32 s31, s28, 2"); e("s_add_u32 s31, s31, s24"); e("s_mul_i32 s31, s31, %d" % WW); e("s_add_u32 s31, s31, %d" % WF_OFF)
    ROT = env('ROT', 0)
    if ROT:
        e("s_lshr_b32 s33, s27, 3"); e("s_add_u32 s33, s33, s28")
        if ROT == 2:
            e("s_and_b32 s32, s33, 1"); e("s_xor_b32 s36, s32, 1"); e("s_mov_b32 s39, 2")
        else:
            e("s_mul_i32 s34, s33, 86"); e("s_lshr_b32 s34, s34, 8"); e("s_mul_i32 s34, s34, 3"); e("s_sub_u32 s32, s33, s34")
            e("s_add_u32 s36, s32, 1"); e("s_cmp_eq_u32 s36, 3"); e("s_cselect_b32 s36, 0, s36")
            e("s_add_u32 s39, s36, 1"); e("s_cmp_eq_u32 s39, 3"); e("s_cselect_b32 s39, 0, s39")
    else:
        e("s_mov_b32 s32, 0"); e("s_mov_b32 s36, 1"); e("s_mov_b32 s39, 2")
    SRD = {'X': [12, 40, 44], 'W': [16, 48, 52], 'H': [20, 56, 60]}
    CH = [32, 36, 39]
    def srd_off(kind, ch):
        base = {'X': 29, 'W': 31, 'H': 30}[kind]; stride = {'X': 32768, 'W': 28672, 'H': 32768}[kind]
        sr = SRD[kind][ch]
        e("s_mul_i32 s%d, s%d, %d" % (sr + 2, CH[ch], stride)); e("s_add_u32 s%d, s%d, s%d" % (sr + 2, sr + 2, base))
    def srd_fin(kind, ch):
        sr = SRD[kind][ch]; sz = {'X': 32768, 'W': 28672, 'H': XREG + 32768}[kind]
        e("s_add_u32 s%d, s8, s%d" % (sr, sr + 2)); e("s_addc_u32 s%d, s9, 0" % (sr + 1)); e("s_and_b32 s%d, s%d, 0xffff" % (sr + 1, sr + 1))
        e("s_mov_b32 s%d, %d" % (sr + 2, sz)); e("s_mov_b32 s%d, 0x00020000" % (sr + 3))
    for kind in 'XW': srd_off(kind, 0)
    if not FUSED: e("s_waitcnt lgkmcnt(0)")
    for kind in 'XW': srd_fin(kind, 0)
    CST = [None, 25, 26, 64, 65, 66, 67, 68] if not STAMP else [None, 25, 26, 96, 97, 98, 99, 100]
    need0 = sorted(set((f.off % (32768 if f.kind != 'W' else 28672)) // 4096 for f in pre) - {0})
    for j in need0: e("s_mov_b32 s%d, %d" % (CST[j], j * 4096))
    def late_srds():
        for j in range(1, 8):
            if j not in need0: e("s_mov_b32 s%d, %d" % (CST[j], j * 4096))
        for kind, ch in [('H', 0), ('X', 1), ('W', 1), ('H', 1), ('X', 2), ('W', 2), ('H', 2)]:
            srd_off(kind, ch); srd_fin(kind, ch)
    def load(f, slot):
        if slot > 100 and ((env('SKIPW', 0) and f.kind == 'W') or (env('SKIPX', 0) and f.kind != 'W')): return
        stride = 28672 if f.kind == 'W' else 32768
        off = f.off % stride
        assert f.off // stride == f.ch
        so = off // 4096; io = off % 4096
        sreg = "0" if so == 0 else "s%d" % CST[so]
        kind = {'X': 'X', 'W': 'W', 'H': 'H', 'S': 'H'}[f.kind]
        sr = SRD[kind][f.ch]
        vo = {'X': V_FR, 'W': V_L16, 'H': V_HOFF, 'S': V_SH}[f.kind]
        E.vload("buffer_load_dwordx4 %s, v%d, s[%d:%d], %s offen offset:%d%s" % (rn(f.reg), vo, sr, sr + 3, sreg, io, env('LDW', ' sc1') if f.kind == 'W' else env('LDX', ' sc1')), regs(f.reg), V(vo), tok=('slot', slot))
    assert all(f.kind in 'XW' and f.ch == 0 for f in pre), pre
    e("s_add_u32 s10, s10, K2_at-%s_pc" % KN); e("s_addc_u32 s11, s11, 0")
    e("s_lshl_b32 s33, s24, 10")
    va("v_add_u32 v3, s33, v%d" % V_L16, V(3), V(V_L16))
    def touch(c): raise Exception('touch disabled')
    NP1 = env('NP1', 12)
    SPIN = env('SPIN', 400000)
    def poll_loads(phase, raw=False):
        ld = (lambda t, d, a: e(t)) if raw else (lambda t, d, a: E.vload(t, V(d), V(a), tok=('slot', slot_now[0])))
        if phase == 0:
            ld("global_load_dword v3, v252, s[8:9] sc1", 3, 252)
            ld("global_load_dword v8, v255, s[8:9] sc1", 8, 255)
        else:
            if raw: e("v_add_u32 v%d, %d, v252" % (252 + phase, 6144 if phase == 1 else 20480))
            ld("global_load_dword v3, v%d, s[8:9] sc1" % (252 + phase), 3, 252 + phase)
            ld("global_load_dword v%d, v255, s[8:9] offset:%d sc1" % (252 + phase, 256 * phase), 252 + phase, 255)
    def poll_test(phase, lab, raw=False):
        regs_ = [3, 8] if phase == 0 else [3, 252 + phase]
        for k_, r_ in enumerate(regs_):
            t = "v_cmp_ne_u32 s[%d:%d], s82, v%d" % (72 + 2 * k_, 73 + 2 * k_, r_)
            if raw: e(t)
            else: va(t, [], V(r_))
        e("s_nop 4")
        e("s_or_b64 s[72:73], s[72:73], s[74:75]")
        e("s_cmp_lg_u64 s[72:73], 0")
        e("s_cbranch_scc1 %s" % lab)
    if FUSED:
        E.vload("global_load_dwordx4 v[4:7], v3, s[10:11]", V(4, 4), V(3), tok=('slot', -1))
        late_srds()
        for fn in setup: fn()
        e("s_lshl_b32 s33, s27, 7"); e("s_max_u32 s34, s27, 1"); e("s_sub_u32 s34, s34, 1"); e("s_lshl_b32 s34, s34, 7")
        va("v_mov_b32 v252, s33", V(252), []); va("v_mov_b32 v253, s34", V(253), [])
        va("v_cmp_gt_u32 s[72:73], 32, v0", [], V(0)); E.nop(2)
        va("v_cndmask_b32 v252, v253, v252, s[72:73]", V(252), V(252) + V(253))
        va("v_and_b32 v253, 31, v0", V(253), V(0))
        va("v_lshl_add_u32 v252, v253, 2, v252", V(252), V(252) + V(253))
        va("v_add_u32 v252, %d, v252" % FL_OFF, V(252), V(252))
        va("v_add_u32 v253, 6144, v252", V(253), V(252))
        va("v_add_u32 v254, 20480, v252", V(254), V(252))
        va("v_min_u32 v255, 55, v0", V(255), V(0))
        va("v_lshlrev_b32 v255, 2, v255", V(255), V(255))
        e("s_and_b32 s33, s2, 7"); e("s_lshl_b32 s33, s33, 10"); e("s_add_u32 s33, s33, %d" % (FL_OFF + 12288))
        va("v_add_u32 v255, s33, v255", V(255), V(255))
        e("s_mov_b32 s33, 0")
        E.wait(0, None)
        fstamp(3)
        e("s_cmp_lg_u32 s24, 3"); e("s_cbranch_scc1 FU_sig")
        poll_loads(0, raw=True)
        e("s_waitcnt vmcnt(0)")
        poll_test(0, "FU_poll0_again", raw=True)
        E.label("FU_poll0_ok")
        E.label("FU_sig")
        signal1((12, 13))
        E.barrier()
        fstamp(4)
        for f in pre: load(f, -1)
    else:
        for f in pre[:NP1]: load(f, -1)
        late_srds()
        for fn in setup: fn()
        for f in pre[NP1:]: load(f, -1)
        E.vload("global_load_dwordx4 v[4:7], v3, s[10:11]", V(4, 4), V(3), tok=('slot', -1))
    if STAMP and STAMP != 3: e("s_memtime s[72:73]")
    if FUSED:
        for ph in (1, 2):
            first = min(f.issue for f in frags if f.ch >= ph)
            mp2 = first - 1; mp1 = max(1, mp2 - env('MPL', 80))
            def p_issue(ph=ph): poll_loads(ph)
            def p_check(ph=ph):
                E._need(V(3) + V(252 + ph))
                poll_test(ph, "FU_poll%d_again" % ph)
                E.label("FU_poll%d_ok" % ph)
                E.barrier()
            gap[mp1].append(('ins', p_issue, 'poll')); gap[mp2].insert(0, ('ins', p_check, 'poll'))
            sys.stderr.write("fused: poll %d issued at %d, checked at %d\n" % (ph, mp1, mp2))
        D0 = env('DEF0', 110); DS_ = env('DEFS', 4)
        DR = [40, 44, 48, 52]
        seq = []
        for n_, (task, i) in enumerate([(t_, i_) for t_ in range(2) for i_ in range(4)]):
            r = DR[n_ % 4]
            def rd(r=r, task=task, i=i): E.dsread("ds_read_b128 v[%d:%d], v%d offset:%d" % (r, r + 3, 16 + i, task * 12352 + 768 * i + 128), V(r, 4), V(16 + i))
            def st_(r=r, task=task, i=i):
                e("s_add_u32 s33, s%d, %d" % (88 + task, i * XW + 2 * 32768))
                E.vstore("buffer_store_dwordx4 v[%d:%d], v11, s[84:87], s33 offen sc1" % (r, r + 3), V(r, 4), V(11), tok=('def2',))
            gap[D0 + n_ * DS_].append(('ins', rd, 'def')); gap[D0 + n_ * DS_ + 10].append(('ins', st_, 'def'))
        def sig2():
            E._need([('def2',)])
            signal12(20480, (12, 13))
        gap[D0 + 7 * DS_ + 10 + env('DEFW', 80)].append(('ins', sig2, 'def'))
    started = set()
    for i in range(N + 1):
        slot_now[0] = i
        if i == N and STAMP: e("s_memtime s[76:77]"); e("s_memrealtime s[82:83]")
        for x in gap[i]:
            if x[0] == 'load': load(x[1], i)
            elif x[0] == 'touch': touch(x[1])
            else: x[1]()
        if i == N:
            final(); break
        a, (ch, c, rho), w = ops[i]
        xf = XS[ch, c, rho] if (rho < 0 and (ch, c) in SHL) else X[ch, c, rho if rho >= 0 else rho + S]
        prewait(regs(xf.reg) + regs(w.reg))
        if STAMP:
            if i == 0 and STAMP != 3: e("s_memtime s[74:75]")
            if i == 0: e("s_memrealtime s[88:89]")
            m1, m2 = (N // 3, 2 * N // 3) if STAMP == 1 else (env('M1', 0), env('M2', 0))
            if STAMP != 3 and i == m1: e("s_memtime s[84:85]"); e("s_memrealtime s[90:91]")
            if STAMP != 3 and i == m2: e("s_memtime s[86:87]"); e("s_memrealtime s[92:93]")
        if i == 0: fstamp(5)
        E.mfma(accreg[a], xf.reg, w.reg, accreg[a] if a in started else None)
        started.add(a)
    if STAMP:
        e("s_memtime s[94:95]"); e("s_memrealtime s[66:67]"); e("s_waitcnt lgkmcnt(0)")
        e("s_add_u32 s4, s8, %d" % ST_OFF); e("s_addc_u32 s5, s9, 0"); e("s_and_b32 s5, s5, 0xffff"); e("s_mov_b32 s6, %d" % (256 * 4 * 64))
        e("s_lshl_b32 s33, s2, 2"); e("s_add_u32 s33, s33, s24"); e("s_lshl_b32 s33, s33, 6")
        for k2, sr in enumerate((70, 72, 74, 76, 80, 82, 84, 86, 88, 90, 92, 94, 66)):
            e("v_mov_b32 v6, s%d" % sr); e("v_mov_b32 v5, %d" % (4 * k2)); e("s_mov_b64 exec, 1")
            e("buffer_store_dword v6, v5, s[4:7], s33 offen"); e("s_mov_b64 exec, -1")
    if FST == 2:
        fstamp(6); e("s_waitcnt lgkmcnt(0)")
        e("s_load_dwordx2 s[4:5], s[0:1], 24"); e("s_waitcnt lgkmcnt(0)")
        e("s_lshl_b32 s34, s2, 2"); e("s_add_u32 s34, s34, s24"); e("s_mov_b32 s33, 0")
        for n_, (wg, wv) in enumerate(((37, 0), (170, 0), (170, 3))):
            e("s_cmp_eq_u32 s34, %d" % (wg * 4 + wv)); e("s_cselect_b32 s33, %d, s33" % (4 + 20 * n_))
        e("s_cmp_eq_u32 s33, 0"); e("s_cbranch_scc1 K2_end")
        for k2, kk in enumerate([2, 3, 4, 5, 6]):
            e("s_sub_u32 s34, s%d, s100" % fs_regs[kk])
            e("v_mov_b32 v6, s34"); e("v_mov_b32 v5, s33"); e("v_add_u32 v5, %d, v5" % (4 * k2)); e("s_mov_b64 exec, 1")
            e("global_store_dword v5, v6, s[4:5]"); e("s_mov_b64 exec, -1")
    elif FST:
        fstamp(6); e("s_waitcnt lgkmcnt(0)")
        e("s_add_u32 s4, s8, %d" % ST_OFF); e("s_addc_u32 s5, s9, 0"); e("s_and_b32 s5, s5, 0xffff"); e("s_mov_b32 s6, %d" % (256 * 4 * 64)); e("s_mov_b32 s7, 0x00020000")
        e("s_lshl_b32 s33, s2, 2"); e("s_add_u32 s33, s33, s24"); e("s_lshl_b32 s33, s33, 6")
        for k2, sr in enumerate([100] + [fs_regs[k_] for k_ in range(1, 7)]):
            e("v_mov_b32 v6, s%d" % sr); e("v_mov_b32 v5, %d" % (4 * k2)); e("s_mov_b64 exec, 1")
            e("buffer_store_dword v6, v5, s[4:7], s33 offen"); e("s_mov_b64 exec, -1")
    E.label("K2_end")
    e("s_endpgm")
    if FUSED:
        E.label("FU_idle")
        for task in range(2):
            for i in range(4):
                r = 72 + 16 * task + 4 * i
                e("ds_read_b128 v[%d:%d], v%d offset:%d" % (r, r + 3, 16 + i, task * 12352 + 768 * i + 128))
        e("s_waitcnt lgkmcnt(0)")
        for task in range(2):
            for i in range(4):
                r = 72 + 16 * task + 4 * i
                e("s_add_u32 s33, s%d, %d" % (88 + task, i * XW + 2 * 32768))
                e("buffer_store_dwordx4 v[%d:%d], v11, s[84:87], s33 offen sc1" % (r, r + 3))
        e("s_waitcnt vmcnt(0)")
        signal1((12, 13))
        signal12(20480)
        e("s_endpgm")
        for n_ in range(3):
            E.label("FU_poll%d_again" % n_)
            e("s_mov_b32 s34, 0")
            E.label("FU_poll%d_loop" % n_)
            e("s_add_u32 s34, s34, 1"); e("s_cmp_ge_u32 s34, %d" % SPIN); e("s_cbranch_scc1 FU_poll%d_ok" % n_)
            e("s_sleep %d" % env('PSL', 16))
            poll_loads(n_, raw=True); e("s_waitcnt vmcnt(0)")
            poll_test(n_, "FU_poll%d_loop" % n_, raw=True)
            e("s_branch FU_poll%d_ok" % n_)
        pagen.tables(E, G)
    tb = np.zeros((4, 64, 8), dtype=np.float64)
    for v in range(4):
        for l in range(64):
            n, kg = l % 16, l // 16
            if n >= cfg.m: continue
            if kg < 2:
                for ww in range(2):
                    for sl in range(3): tb[v, l, 4 * ww + sl] = cfg.ATs[2 * kg + ww, sl, n]
            elif kg == 2:
                for p in range(4):
                    ww = p ^ v
                    tb[v, l, 2 * p] = cfg.ATs[ww, 3, n]; tb[v, l, 2 * p + 1] = cfg.ATs[ww, 4, n]
    E.raw(".p2align 8"); E.label("K2_at"); E.raw(G['table'](bf16bits(tb).reshape(-1)))
    E.label("K2_code_end")
    sys.stderr.write("K2: %d MFMA main, %d instr, %d waits, %d nops\n" % (N, E.ninst, E.nwait, E.nnop))
    name = "standalone__fft_conv__vision_kernel" if FUSED else "k2_kernel"
    return G['head'](name) + E.text() + G['KD'] % (name, 512, 102, 256), LDS
```

```python
import sys, os
import numpy as np
from emit import *
from consts import bf16bits, bf16r

class Task:
    def __init__(s, name, ins, lo, hi, deps=()):
        s.name, s.ins, s.lo, s.hi = name, list(ins), lo, hi
        s.deps = [d if isinstance(d, tuple) else (d, 0) for d in deps]
        s.done_at = None

def gen_k2(G):
    FUSED = G.get('FUSED', 0)
    env = G['env']; cfg = G['cfg']; S = G['S']; NREG = G['NREG']; NC = G['NC']; NCH = G['NCH']
    XW, XREG, XF_SIZE, WW, WF_OFF, WF_SIZE, ST_OFF, XBYTES, ROWB = [G[k] for k in 'XW XREG XF_SIZE WW WF_OFF WF_SIZE ST_OFF XBYTES ROWB'.split()]
    STAMP = env('STAMP', 0)
    PACE = env('PACE', 5); WLAT = env('WLAT', 90)
    E = Em(); e = E.salu
    va = lambda t, d, s_, **kw: E.valu(t, d, s_, **kw)
    class Frag:
        def __init__(s, kind, ch, c, idx, off):
            s.kind, s.ch, s.c, s.idx, s.off = kind, ch, c, idx, off
            s.first = None; s.last = None; s.reg = None; s.issue = None
        def __repr__(s): return "%s(ch%d c%d i%d)" % (s.kind, s.ch, s.c, s.idx)
    X = {}; Hf = {}; W = {}
    for ch in range(NCH):
        for c in range(NC):
            for r in range(S): X[ch, c, r] = Frag('X', ch, c, r, ((ch * NC + c) * S + r) * 1024)
            Hf[ch, c] = Frag('H', ch, c, 0, ((ch * NC + c) * S) * 1024)
            for kh in range(7): W[ch, c, kh] = Frag('W', ch, c, kh, ((ch * NC + c) * 7 + kh) * 1024)
    SHL = set([(NCH - 1, 2), (NCH - 1, 3)]) if env('SHL', 1) else set()
    XS = {}
    for (ch_, c_) in SHL:
        for n in range(1, 7): XS[ch_, c_, -n] = Frag('S', ch_, c_, -n, ((ch_ * NC + c_) * S + S - n) * 1024)
    ops = []
    def op(sl, r, ch, c, kh, cw): ops.append(((sl, r), (ch, c, r - kh), W[ch, cw, kh]))
    marks = {}
    def pstage(ch):
        for hi_, hs in enumerate([[0, 1, 2, 3], [4, 5, 6]]):
            marks['P%d_%d' % (ch, hi_)] = len(ops)
            if ch == 0 and hi_ == 0 and env('WAVEF', 1):
                prs = sorted([(max(7 - (r - kh), kh + env('WFB', 0)), -r, kh) for r in range(S) for kh in hs])
                fl = 0
                for lev, mr, kh in prs:
                    r = -mr
                    seq = [(0, 0, 0), (1, 0, 1), (1, 1, 0), (2, 1, 1)]
                    if fl: seq = seq[::-1]
                    for sl, cx, cw in seq: op(sl, r, ch, cx, kh, cw)
                    fl ^= 1
                continue
            for r in range(S - 1, -1, -1):
                for kh in hs: op(0, r, ch, 0, kh, 0)
                for kh in hs[::-1]: op(1, r, ch, 0, kh, 1)
                for kh in hs: op(1, r, ch, 1, kh, 0)
                for kh in hs[::-1]: op(2, r, ch, 1, kh, 1)
    def rstage(ch, u):
        for r in range(S - 1, -1, -1):
            for kh in range(7): op(2 + u, r, ch, 1 + u, kh, 1 + u)
    for ch in range(NCH - 1):
        pstage(ch); rstage(ch, 1); rstage(ch, 2)
    ch = NCH - 1
    pstage(ch)
    FIN = env('FIN', 2)
    step_end = {}
    if FIN == 1:
        rstage(ch, 1)
        marks['F'] = len(ops)
        for r in range(S - 1, -1, -1):
            for kh in range(7): op(4, r, ch, 3, kh, 3)
            step_end[r] = len(ops) - 1
    else:
        marks['F'] = len(ops)
        for r in range(S - 1, -1, -1):
            for kh in range(7): op(3, r, ch, 2, kh, 2)
            for kh in range(6, -1, -1): op(4, r, ch, 3, kh, 3)
            step_end[r] = len(ops) - 1
    N = len(ops)
    use = {}; acc_last = {}
    for i, (a, xk, w) in enumerate(ops):
        use.setdefault(xk, [i, i])[1] = i
        if w.first is None: w.first = i
        w.last = i
        acc_last[a] = i
    shifts = []
    for (ch, c, r), f in X.items():
        f.first, f.last = use[ch, c, r]
        if (ch, c) in SHL: continue
        if (ch, c, r - S) in use:
            a, b = use[ch, c, r - S]
            assert f.last < a - 12, (ch, c, r, f.last, a)
            shifts.append([f, S - r, f.last, a]); f.last = b
    for key, f in XS.items(): f.first, f.last = use[key]
    for key in SHL: del Hf[key]
    for (ch, c), h in Hf.items():
        sh = [s_ for s_ in shifts if s_[0].ch == ch and s_[0].c == c]
        h.first = max(env('H0', 50), min(s_[2] for s_ in sh) - env('HEARLY', 20)); h.last = max(s_[3] for s_ in sh)
    V_L16, V_HOFF, V_FR = 1, 2, 247
    accreg = {}
    for sl in range(3):
        for r in range(S): accreg[sl, r] = ('a', 4 * (sl * S + r))
    RV = env('RV', 1)
    vbase = 8
    abase = 96
    for sl in (3, 4):
        for r in range(S):
            if RV: accreg[sl, r] = ('v', vbase); vbase += 4
            else: accreg[sl, r] = ('a', abase); abase += 4
    vfree = [('v', x) for x in range(vbase, 253, 4) if x not in ((244, 248, 252) if FUSED else (244, 248))]
    afree = [('a', x) for x in range(abase, 253, 4)]
    vlast = {r: -1 for r in vfree}
    frags = list(X.values()) + list(Hf.values()) + list(W.values()) + list(XS.values())
    frags.sort(key=lambda f: (f.first - (env('SEARLY', 30) if f.kind == 'S' else 0), {'W': 1, 'X': 0, 'H': 2, 'S': 3}[f.kind]))
    gap = [[] for _ in range(N + 1)]
    pending = list(frags); active = []; pre = []
    TEMP_T = marks['P2_1'] - env('TEMPE', 60)
    NTEMP = env('NTEMP', 4)
    reserved = vfree[-NTEMP:]
    def alloc(f):
        if f.kind in 'WS':
            if afree: return afree.pop(0)
            return None
        for r in vfree:
            if r in reserved and f.last >= TEMP_T: continue
            vfree.remove(r); return r
        return None
    def release(upto):
        for f in list(active):
            if f.last < upto:
                active.remove(f); (afree if f.reg[0] == 'a' else vfree).append(f.reg)
    while pending and len(pre) < env('NPRE', 16):
        f = pending.pop(0); f.reg = alloc(f); f.issue = -1; pre.append(f); active.append(f)
    lastload = -100
    for i in range(1, N):
        release(i - 1)
        pace = env('PACE0', PACE) if i < env('RAMP', 0) else PACE
        if pending and (i - lastload >= pace or pending[0].first - i < env('URG', 40)):
            f = pending[0]; r = alloc(f)
            if r is not None:
                f.reg = r; f.issue = i; active.append(f); pending.pop(0); gap[i].append(('load', f)); lastload = i
            elif f.first - i < 3: raise Exception("no register for %s at %d" % (f, i))
    assert not pending
    for f in frags:
        if f.reg[0] == 'v': vlast[f.reg] = max(vlast[f.reg], f.last)
    la = [f.first - f.issue for f in frags if f.issue > 0]
    sys.stderr.write("K2 lookahead (slots): min %d p10 %d median %d\n" % (min(la), np.percentile(la, 10), np.median(la)))
    TPF = env('TPF', 0); TP = env('TP', 6); TLEAD = env('TLEAD', 90); NT0 = env('NT0', 14)
    touches = []
    if TPF:
        cand = []
        for m in range(768 // 6):
            line = 6 * m + 3
            f = X[(6 * m // 8) // (NC * S), ((6 * m // 8) // S) % NC, (6 * m // 8) % S]
            cand.append((f.issue, 'X', m * 768))
        for m in range(672 // 5):
            fi = 5 * m // 8
            f = W[fi // (NC * 7), (fi // 7) % NC, fi % 7]
            cand.append((f.issue, 'W', m * 640))
        cand.sort()
        cand = [c for c in cand if c[0] > env('TSKIP', 0)]
        pre_t = cand[:NT0]; rest = cand[NT0:]
        touches = pre_t
        i = env('T0', 40)
        while rest and i < N:
            while rest and rest[0][0] - i < TLEAD: rest.pop(0)
            if not rest: break
            gap[i].append(('touch', rest.pop(0))); i += TP
        sys.stderr.write("K2 touches: %d in prologue, %d in loop\n" % (len(pre_t), sum(1 for g in gap for x in g if x[0] == 'touch')))
    cnt = [len(g) for g in gap]
    if env('PREDW', 1):
        order_ = pre + [x[1] for g in gap for x in g if x[0] == 'load']
        posn = {id(f): k for k, f in enumerate(order_)}
        done_ = -1; nw_ = 0
        for i, (a_, xk, w_) in enumerate(ops):
            ch_, c_, rho_ = xk
            xf_ = XS[xk] if (rho_ < 0 and (ch_, c_) in SHL) else X[ch_, c_, rho_ if rho_ >= 0 else rho_ + S]
            k = max(posn[id(xf_)], posn[id(w_)])
            if k > done_:
                while k + 1 < len(order_) and order_[k + 1].issue >= 0 and order_[k + 1].issue + WLAT <= i and order_[k + 1].issue < i: k += 1
                done_ = k; cnt[i] += 1; nw_ += 1
        sys.stderr.write("K2 predicted waits: %d\n" % nw_)
    tasks = []
    slot_now = [0]
    def prewait(rs):
        rs = set(rs); idx = None; cur = slot_now[0]
        for i, d in enumerate(E.vm):
            if d & rs: idx = i
        if idx is None: return
        while idx + 1 < len(E.vm):
            sl = [t[1] for t in E.vm[idx + 1] if t[0] == 'slot']
            if sl and sl[0] >= 0 and sl[0] + WLAT <= cur: idx += 1
            else: break
        E.wait(len(E.vm) - 1 - idx, None)
    def mk_shift(f, n):
        h = Hf[f.ch, f.c]
        ins = []
        if env('NODPP', 0): return [lambda: None]
        for d in range(4):
            def mv(d=d):
                r = f.reg[1] + d; prewait(V(r))
                va("v_mov_b32_dpp v%d, v%d row_shr:1 row_mask:0xf bank_mask:0xf" % (r, r), V(r), [], dpp=V(r))
            ins.append(mv)
        for d in range(4):
            def cm(d=d):
                r = f.reg[1] + d; hr = h.reg[1] + d; k = 6 - n
                prewait(V(hr))
                if k > 0: va("v_cndmask_b32_dpp v%d, v%d, v%d, vcc row_shl:%d row_mask:0xf bank_mask:0xf" % (r, hr, r, k), V(r), V(r), dpp=V(hr))
                else: va("v_cndmask_b32 v%d, v%d, v%d, vcc" % (r, hr, r), V(r), V(r) + V(hr))
            ins.append(cm)
        return ins
    for f, n, lo, hi in shifts:
        h = Hf[f.ch, f.c]
        lo2 = max(lo + 1, min(h.issue + env('HLAT', 60), hi - 20) if h.issue > 0 else 0)
        tasks.append(Task('sh', mk_shift(f, n), lo2, hi - 3))
    PL = 32768; STG = 3 * PL; LDS = STG + 4 * 16384
    tmp = [r[1] for r in reserved]
    late = sorted([r[1] for r, l in vlast.items() if r not in reserved and l < marks['F'] + 2])
    a0, a1 = 244, 248
    AT = 4
    V_WP, V_WR, V_IR, V_SW = a0, a0 + 1, a0 + 2, a0 + 3
    assert env('DST', 1)
    V_SW = 240
    V_SR, V_O0, V_O1, V_SH = a1, a1 + 1, a1 + 2, a1 + 3
    V_SR = 241
    sc = [236 + i for i in range(8)]
    PT = [tmp[0], tmp[1], tmp[2], tmp[3]]
    setup = []
    MK = 64 if STAMP else 70
    def S_(fn): setup.append(fn)
    t0, t1, t2, t3, t4, t5, t6, t7 = sc
    vv = lambda t, d, s_: S_(lambda: va(t, d, s_))
    ss = lambda t: S_(lambda: e(t))
    vv("v_and_b32 v%d, 15, v0" % t1, V(t1), V(0))
    vv("v_lshrrev_b32 v%d, 4, v0" % t2, V(t2), V(0))
    vv("v_lshlrev_b32 v%d, 10, v%d" % (t3, t2), V(t3), V(t2))
    vv("v_lshl_add_u32 v%d, v%d, 4, v%d" % (t3, t1, t3), V(t3), V(t1) + V(t3))
    ss("s_lshr_b32 s33, s24, 1"); ss("s_mul_i32 s33, s33, %d" % PL); ss("s_and_b32 s34, s24, 1"); ss("s_lshl_b32 s34, s34, 3"); ss("s_add_u32 s33, s33, s34")
    vv("v_add_u32 v%d, s33, v%d" % (V_WP, t3), V(V_WP), V(t3))
    vv("v_xor_b32 v%d, s24, v%d" % (t4, t2), V(t4), V(t2))
    vv("v_lshl_add_u32 v%d, v%d, 2, v%d" % (t4, t4, t3), V(t4), V(t4) + V(t3))
    vv("v_add_u32 v%d, %d, v%d" % (V_WR, 2 * PL, t4), V(V_WR), V(t4))
    vv("v_min_u32 v%d, 2, v%d" % (t3, t2), V(t3), V(t2))
    vv("v_lshlrev_b32 v%d, 15, v%d" % (t3, t3), V(t3), V(t3))
    vv("v_lshl_add_u32 v%d, v%d, 4, v%d" % (t3, t1, t3), V(t3), V(t1) + V(t3))
    ss("s_lshl_b32 s33, s24, 10")
    vv("v_add_u32 v%d, s33, v%d" % (V_IR, t3), V(V_IR), V(t3))
    ss("s_lshl_b32 s33, s24, 14"); ss("s_add_u32 s33, s33, %d" % STG)
    vv("v_and_b32 v%d, 15, v0" % t1, V(t1), V(0))
    vv("v_lshrrev_b32 v%d, 1, v%d" % (t3, t2), V(t3), V(t2))
    vv("v_lshl_add_u32 v%d, v%d, 1, v%d" % (t3, t1, t3), V(t3), V(t1) + V(t3))
    vv("v_bfe_u32 v%d, v%d, 2, 1" % (t4, t1), V(t4), V(t1))
    vv("v_xor_b32 v%d, v%d, v%d" % (t3, t3, t4), V(t3), V(t3) + V(t4))
    vv("v_and_b32 v%d, 1, v%d" % (t4, t2), V(t4), V(t2))
    vv("v_lshlrev_b32 v%d, %d, v%d" % (t4, 9 if env('B128', 1) else 3, t4), V(t4), V(t4))
    vv("v_lshl_add_u32 v%d, v%d, 4, v%d" % (t3, t3, t4), V(t3), V(t3) + V(t4))
    vv("v_add_u32 v%d, s33, v%d" % (V_SW, t3), V(V_SW), V(t3))
    vv("v_bfe_u32 v%d, v0, 3, 1" % t4, V(t4), V(0))
    vv("v_xor_b32 v%d, v0, v%d" % (t4, t4), V(t4), V(0) + V(t4))
    vv("v_lshl_add_u32 v%d, v%d, 4, s33" % (V_SR, t4), V(V_SR), V(t4))
    if env('DST', 1):
        vv("v_bfe_u32 v%d, v0, 4, 1" % t0, V(t0), V(0))
        vv("v_and_b32 v%d, 15, v0" % t1, V(t1), V(0))
        vv("v_lshrrev_b32 v%d, 5, v0" % t2, V(t2), V(0))
    else:
        vv("v_lshrrev_b32 v%d, 5, v0" % t0, V(t0), V(0))
        vv("v_bfe_u32 v%d, v0, 1, 4" % t1, V(t1), V(0))
        vv("v_and_b32 v%d, 1, v0" % t2, V(t2), V(0))
    ss("s_mov_b32 s38, 224"); ss("s_mov_b32 s35, 2260"); ss("s_mov_b32 s37, 192")
    for p in range(2):
        o = V_O0 + p
        ss("s_lshl_b32 s33, s27, 4"); ss("s_lshl_b32 s34, s24, 2"); ss("s_add_u32 s33, s33, s34"); ss("s_add_u32 s33, s33, %d" % (2 * p))
        vv("v_add_u32 v%d, s33, v%d" % (t3, t0), V(t3), V(t0))
        vv("v_mul_u32_u24 v%d, s35, v%d" % (t4, t3), V(t4), V(t3))
        vv("v_lshrrev_b32 v%d, 16, v%d" % (t4, t4), V(t4), V(t4))
        vv("v_mul_u32_u24 v%d, 29, v%d" % (t5, t4), V(t5), V(t4))
        vv("v_sub_u32 v%d, v%d, v%d" % (t5, t3, t5), V(t5), V(t3) + V(t5))
        vv("v_mul_u32_u24 v%d, 10, v%d" % (t6, t4), V(t6), V(t4))
        vv("v_add_u32 v%d, v%d, v%d" % (t6, t6, t1), V(t6), V(t6) + V(t1))
        vv("v_subrev_u32 v%d, 1, v%d" % (t7, t5), V(t7), V(t5))
        vv("v_mul_u32_u24 v%d, %d, v%d" % (t7, 8 * 224, t7), V(t7), V(t7))
        vv("v_add_u32 v%d, v%d, v%d" % (t7, t7, t6), V(t7), V(t7) + V(t6))
        vv("v_mul_lo_u32 v%d, v%d, s37" % (t7, t7), V(t7), V(t7))
        vv("v_lshl_add_u32 v%d, v%d, 4, v%d" % (t7, t2, t7), V(t7), V(t7) + V(t2))
        ss("s_lshl_b32 s34, s28, 5")
        vv("v_add_u32 v%d, s34, v%d" % (t7, t7), V(t7), V(t7))
        vv("v_cmp_ne_u32 s[%d:%d], 0, v%d" % (MK, MK + 1, t5), [], V(t5))
        vv("v_cmp_gt_u32 s[%d:%d], 10, v%d" % (MK + 2, MK + 3, t1), [], V(t1))
        vv("v_cmp_gt_u32 s[%d:%d], s38, v%d" % (MK + 4, MK + 5, t6), [], V(t6))
        vv("v_mov_b32 v%d, 0x7fffffff" % t3, V(t3), [])
        S_(lambda: E.nop(3))
        ss("s_and_b64 s[%d:%d], s[%d:%d], s[%d:%d]" % (MK, MK + 1, MK, MK + 1, MK + 2, MK + 3)); ss("s_and_b64 s[%d:%d], s[%d:%d], s[%d:%d]" % (MK, MK + 1, MK, MK + 1, MK + 4, MK + 5))
        S_(lambda: E.nop(1))
        vv("v_cndmask_b32 v%d, v%d, v%d, s[%d:%d]" % (o, t3, t7, MK, MK + 1), V(o), V(t3) + V(t7))
    ss("s_cmp_eq_u32 s27, 0"); ss("s_cselect_b32 s33, 0, %d" % XREG)
    vv("v_and_b32 v%d, 15, v0" % t3, V(t3), V(0))
    vv("v_add_u32 v%d, -1, v%d" % (t3, t3), V(t3), V(t3))
    vv("v_lshrrev_b32 v%d, 2, v%d" % (t4, t3), V(t4), V(t3))
    vv("v_lshlrev_b32 v%d, 8, v%d" % (t4, t4), V(t4), V(t4))
    vv("v_and_b32 v%d, 3, v%d" % (t3, t3), V(t3), V(t3))
    vv("v_lshl_add_u32 v%d, v%d, 4, v%d" % (t3, t3, t4), V(t3), V(t3) + V(t4))
    vv("v_lshrrev_b32 v%d, 4, v0" % t4, V(t4), V(0))
    vv("v_lshlrev_b32 v%d, 6, v%d" % (t4, t4), V(t4), V(t4))
    vv("v_add3_u32 v%d, v%d, v%d, s33" % (t3, t3, t4), V(t3), V(t3) + V(t4))
    vv("v_add_u32 v%d, 816, v%d" % (t4, t4), V(t4), V(t4))
    vv("v_cndmask_b32 v%d, v%d, v%d, vcc" % (V_SH, t4, t3), V(V_SH), V(t4) + V(t3))
    ss("s_mov_b32 s6, %d" % XBYTES); ss("s_mov_b32 s7, 0x00020000"); ss("s_and_b32 s5, s5, 0xffff")
    mreg = 64 if STAMP else 94
    ss("s_mov_b32 s%d, 0x03ff03ff" % mreg); ss("s_mov_b32 s%d, 0x03ff03ff" % (mreg + 1))
    T_setup = Task('setup', [], 0, 0); T_setup.done_at = 0
    T_pp = {}
    prev = T_setup
    for r in range(S - 1, -1, -1):
        rd = {}; cv = {}; wr = {}
        for j in range(4):
            t = PT[j]
            rd[j] = [(lambda t=t, sl=sl, ar=accreg[sl, r][1] + j: va("v_accvgpr_read_b32 v%d, a%d" % (t + sl, ar), V(t + sl), A(ar))) for sl in range(3)]
            cv[j] = [lambda t=t: va("v_cvt_pk_bf16_f32 v%d, v%d, v%d" % (t, t, t + 1), V(t), V(t, 2)), lambda t=t: va("v_cvt_pk_bf16_f32 v%d, v%d, 0" % (t + 1, t + 2), V(t + 1), V(t + 2))]
            wr[j] = [lambda t=t, j=j, r=r: E.dswrite("ds_write_b64 v%d, v[%d:%d] offset:%d" % (V_WP, t, t + 1, (r * 16 + j) * 256), V(t, 2), V(V_WP))]
        ins = rd[0] + rd[1] + cv[0] + rd[2] + wr[0] + cv[1] + rd[3] + wr[1] + cv[2] + cv[3] + wr[2] + wr[3]
        lo = max(acc_last[sl, r] for sl in range(3)) + 6
        T_pp[r] = Task('pp%d' % r, ins, lo, step_end[r] + 4, [prev]); prev = T_pp[r]; tasks.append(T_pp[r])
    RT = late[0:2]
    order = list(range(S - 1, -1, -1))
    T_rp = {}
    for si, r in enumerate(order):
        se = step_end[r]
        ins = []
        for j in range(4):
            t = RT[si % 2] + j
            r1 = accreg[3, r][1] + j; r2 = accreg[4, r][1] + j
            ins.append(lambda t=t, r1=r1, r2=r2: va("v_cvt_pk_bf16_f32 v%d, v%d, v%d" % (t, r1, r2), V(t), V(r1) + V(r2)))
        for j in range(4):
            t = RT[si % 2] + j
            ins.append(lambda t=t, j=j, r=r: E.dswrite("ds_write_b32 v%d, v%d offset:%d" % (V_WR, t, (r * 16 + j) * 256), V(t), V(V_WR), tok=('rp', r)))
        T_rp[r] = Task('rp%d' % r, ins, se + 4, se + 10, [T_pp[r]])
        tasks.append(T_rp[r])
    B128 = env('B128', 1)
    lateA = [x for x in late if x not in RT]
    def inv_seq(rows, AFp, DIp, OUTp):
        na, nd, no = len(AFp) // 4, len(DIp) // 4, len(OUTp) // 2
        def reads(si):
            r = rows[si]
            return [lambda a=a, r=r, f=AFp[4 * (si % na) + a]: E.dsread("ds_read_b128 v[%d:%d], v%d offset:%d" % (f, f + 3, V_IR, (r * 16 + a) * 256), V(f, 4), V(V_IR)) for a in range(4)]
        def mm(si):
            return [lambda a=a: E.mfma(('v', DIp[4 * (si % nd) + a]), ('v', AFp[4 * (si % na) + a]), ('v', AT), None) for a in range(4)]
        def cw(si):
            r = rows[si]; ins = []
            D = [DIp[4 * (si % nd) + a] for a in range(4)]
            if not B128:
                for a in range(4):
                    d = D[a]
                    ins.append(lambda d=d: va("v_cvt_pk_bf16_f32 v%d, v%d, v%d" % (d, d, d + 1), V(d), V(d, 2)))
                    ins.append(lambda d=d: va("v_cvt_pk_bf16_f32 v%d, v%d, v%d" % (d + 1, d + 2, d + 3), V(d + 1), V(d + 2, 2)))
            if B128:
                for p in range(2):
                    d0 = D[2 * p]
                    ins.append(lambda d0=d0: va("v_cvt_pk_bf16_f32 v%d, v%d, v%d" % (d0, d0, d0 + 1), V(d0), V(d0, 2)))
                    ins.append(lambda d0=d0: va("v_cvt_pk_bf16_f32 v%d, v%d, v%d" % (d0 + 1, d0 + 2, d0 + 3), V(d0 + 1), V(d0 + 2, 2)))
                for p in range(2):
                    d0, d1 = D[2 * p], D[2 * p + 1]
                    ins.append(lambda d0=d0, d1=d1: va("v_cvt_pk_bf16_f32 v%d, v%d, v%d" % (d0 + 2, d1, d1 + 1), V(d0 + 2), V(d1, 2)))
                    ins.append(lambda d0=d0, d1=d1: va("v_cvt_pk_bf16_f32 v%d, v%d, v%d" % (d0 + 3, d1 + 2, d1 + 3), V(d0 + 3), V(d1 + 2, 2)))
                for p in range(2):
                    d0 = D[2 * p]
                    ins.append(lambda d0=d0: va("v_permlane16_swap_b32 v%d, v%d" % (d0, d0 + 2), V(d0) + V(d0 + 2), V(d0) + V(d0 + 2), perm=True))
                    ins.append(lambda d0=d0: va("v_permlane16_swap_b32 v%d, v%d" % (d0 + 1, d0 + 3), V(d0 + 1) + V(d0 + 3), V(d0 + 1) + V(d0 + 3), perm=True))
                if env('DST', 1):
                    def both(r=r, D=D):
                        e("s_mov_b32 s33, %d" % (r * ROWB))
                        E._need(V(D[0], 4) + V(D[2], 4))
                        E._pad(max(E._dist(V(D[0], 4) + V(D[2], 4), {'mfma': 8}), 0))
                        if env('XM', 1): e("s_mov_b64 exec, s[94:95]" if not STAMP else "s_mov_b64 exec, s[64:65]")
                        for p in range(2):
                            d0 = D[2 * p]
                            if env('NOOUT', 0) == 1 or (env('NOOUT', 0) == 2 and p): continue
                            E.vstore("buffer_store_dwordx4 v[%d:%d], v%d, s[4:7], s33 offen%s" % (d0, d0 + 3, V_O0 + p, env('OSF', '')), V(d0, 4), V(V_O0 + p))
                        if env('XM', 1): e("s_mov_b64 exec, -1")
                        if str(r) in env('WB', '').split(','):
                            e("s_lshl_b32 s34, s2, 2"); e("s_add_u32 s34, s34, s24")
                            e("s_cmp_ge_u32 s34, %d" % env('WBN', 32)); e("s_cbranch_scc1 K2_nowb%d" % r)
                            e("s_cmp_lg_u32 s24, 0"); e("s_cbranch_scc1 K2_nowb%d" % r)
                            e("buffer_wbl2 sc1")
                            E.label("K2_nowb%d" % r)
                    ins.append(both)
                    return ins
                for p in range(2):
                    d0 = D[2 * p]
                    ins.append(lambda d0=d0, p=p, r=r: E.dswrite("ds_write_b128 v%d, v[%d:%d] offset:%d" % (V_SW, d0, d0 + 3, (r * 4 + 2 * p) * 512), V(d0, 4), V(V_SW)))
            else:
                for a in range(4):
                    d = D[a]
                    ins.append(lambda d=d, a=a, r=r: E.dswrite("ds_write_b64 v%d, v[%d:%d] offset:%d" % (V_SW, d, d + 1, (r * 4 + a) * 512), V(d, 2), V(V_SW)))
            for p in range(2):
                o = OUTp[2 * (si % no) + p]
                ins.append(lambda o=o, p=p, r=r: E.dsread("ds_read_b128 v[%d:%d], v%d offset:%d" % (o, o + 3, V_SR, (r * 4 + 2 * p) * 512), V(o, 4), V(V_SR)))
            return ins
        def st(si):
            if env('DST', 1): return []
            r = rows[si]; ins = [lambda r=r: e("s_mov_b32 s33, %d" % (r * ROWB))]
            for p in range(2):
                o = OUTp[2 * (si % no) + p]
                if env('NOOUT', 0): continue
                ins.append(lambda o=o, p=p: E.vstore("buffer_store_dwordx4 v[%d:%d], v%d, s[4:7], s33 offen%s" % (o, o + 3, V_O0 + p, env('OSF', '')), V(o, 4), V(V_O0 + p)))
            return ins
        n = len(rows); seq = []
        head = []
        for si in range(min(na, n)): head += reads(si)
        for si in range(n + 2):
            if si < n: seq += mm(si)
            if si + na < n: seq += reads(si + na)
            if no == 1 and 0 <= si - 2 < n: seq += st(si - 2)
            if 0 <= si - 1 < n: seq += cw(si - 1)
            if no > 1 and 0 <= si - 2 < n: seq += st(si - 2)
        return head, seq
    NA = env('NA', 4 if FIN == 1 else 7)
    rowsA = order[:NA]; rowsB = order[NA:]
    T_A = None
    if NA and FIN == 1:
        assert len(lateA) >= 16, lateA
        hA, sA = inv_seq(rowsA, lateA[0:8], lateA[8:16], [lateA[16], lateA[17]] if len(lateA) >= 18 else [0, 0])
        def barA(): E._need([('rp', rowsA[-1])]); E.barrier()
        T_barA = Task('barA', [barA], 0, step_end[rowsA[-1]] + 12, [(T_rp[rowsA[-1]], env('LBA', 4))])
        T_A = Task('invA', hA + sA, 0, N + 500, [T_barA])
        tasks += [T_barA, T_A]
    if NA and FIN == 2:
        assert len(lateA) >= 16, lateA
        AF2 = lateA[0:8]; DI2 = lateA[8:16]
        L1, L2, L3 = env('L1', 4), env('L2', 7), env('L3', 3)
        pb = None; pm = {}; pc = {}
        for si, r in enumerate(rowsA):
            se = step_end[r]
            def bar(r=r):
                if env('NOBAR', 0) in (1, 2):
                    if env('NOBAR', 0) == 2: E._need([('rp', r)])
                    return
                E._need([('rp', r)]); E.barrier()
            tb_ = Task('bar%d' % r, [bar], 0, se + 12, [(T_rp[r], L1)] + ([pb] if pb else []))
            pb = tb_
            af = AF2[4 * (si % 2):4 * (si % 2) + 4]; di = DI2[4 * (si % 2):4 * (si % 2) + 4]
            h_, s_ = inv_seq([r], af, di, [0, 0])
            mms, rest = s_[:4], s_[4:]
            t1_ = Task('rd%d' % r, h_, 0, se + 16, [tb_] + ([pm[si - 2]] if si >= 2 else []))
            t2_ = Task('mm%d' % r, mms, 0, se + 26, [(t1_, L2)] + ([pc[si - 2]] if si >= 2 else []))
            t3_ = Task('cw%d' % r, rest, 0, se + 40, [(t2_, L3)])
            pm[si] = t2_; pc[si] = t3_
            tasks += [tb_, t1_, t2_, t3_]
    def final():
        used = set(lateA[:18]) if NA else set()
        pool = sorted(set([accreg[sl, r][1] for sl in (3, 4) for r in rowsA] + [r_[1] for r_ in vlast.keys() if r_ not in reserved]) - set(RT) - used)
        nb = len(rowsB)
        hB, sB = inv_seq(rowsB, pool[0:4 * min(nb, 4)], pool[16:24], pool[24:28])
        E.wait(None, 0)
        if STAMP == 3: e("s_memtime s[72:73]")
        E.barrier()
        if STAMP == 3: e("s_memtime s[74:75]")
        for f in hB: f()
        if T_A is not None:
            for f in T_A.rest: f()
        for x in deferred:
            for f in x: f()
        if STAMP == 3: e("s_memtime s[84:85]")
        for k_, f in enumerate(sB):
            f()
            if STAMP == 3 and k_ == len(sB) // 2: e("s_memtime s[86:87]")
    deferred = []
    def budget(i):
        if i >= marks['F']: return env('BF', 3)
        if i >= TEMP_T: return env('BP', 2)
        return 1
    MAXF = env('MAXF', 2)
    delay = {}
    for i in range(1, N + 1):
        k = 0
        while True:
            avail = [x for x in tasks if x.ins and (x.lo <= i or i == N) and all(d.done_at is not None and (i == N or i >= d.done_at + lg) for d, lg in x.deps)]
            if not avail: break
            avail.sort(key=lambda x: x.hi)
            if i < N:
                b = budget(i) - cnt[i]
                urgent = False
                if b <= k:
                    if k >= max(MAXF, budget(i)) - cnt[i]: break
                    tot = 0
                    for y in sorted([x for x in tasks if x.ins and x.lo <= i + 40 and x.name == 'sh'], key=lambda x: x.hi):
                        tot += len(y.ins)
                        cap = sum(1 for g in range(i + 1, min(y.hi + 1, N)) if cnt[g] == 0)
                        if tot - 1 > cap * env('URGF', 0.9): urgent = True; break
                    if not urgent: break
            x = avail[0]
            if i == N and x.name == 'invA':
                x.rest = list(x.ins); x.ins = []; x.done_at = i; continue
            if i == N and x.name[:2] in ('mm', 'cw'):
                deferred.append(list(x.ins)); x.ins = []; x.done_at = i; continue
            if x.name == 'sh': assert i <= x.hi, ("shift late", i, x.hi)
            gap[i].append(('ins', x.ins.pop(0), x.name)); k += 1
            if not x.ins: x.done_at = i
        cnt[i] += k
    if T_A is not None and not hasattr(T_A, 'rest'): T_A.rest = []
    assert all(not x.ins for x in tasks), [x.name for x in tasks if x.ins]
    sys.stderr.write("K2 tail after last MFMA: %d instr; done: %s\n" % (len(gap[N]), " ".join("%s@%d" % (x.name, x.done_at - marks['F']) for x in tasks if x.name[:2] in ('pp', 'ba', 'cw'))))
    KN = "FU" if FUSED else "K2"
    FST = env('FSTAMP', 0)
    fs_regs = {1: 88, 2: 90, 3: 92, 4: 96, 5: 98, 6: 82}
    def fs2(n): e("s_memrealtime s[%d:%d]" % (fs_regs[n], fs_regs[n] + 1))
    G['fs2'] = fs2
    def fstamp(n):
        if env('FS2', 0) and n in (3, 4, 5): return
        if FST in (1, 2) and n in fs_regs: e("s_memrealtime s[%d:%d]" % (fs_regs[n], fs_regs[n] + 1))
    if FUSED:
        import pagen
        G['fstamp'] = (lambda n: fstamp(n) if n < 3 else None)
        e("s_load_dwordx4 s[84:87], s[0:1], 0" if not FST else "s_load_dwordx4 s[84:87], s[0:1], 0")
        e("s_load_dwordx4 s[4:7], s[0:1], 16")
        e("s_load_dwordx2 s[8:9], s[0:1], 32")
        if FST: e("s_memrealtime s[100:101]")
        e("s_getpc_b64 s[10:11]")
        E.label("FU_pc")
        e("s_cmp_ge_u32 s2, 256"); e("s_cbranch_scc1 K2_end")
        va("v_lshrrev_b32 v3, 6, v0", V(3), V(0))
        va("v_and_b32 v0, 63, v0", V(0), V(0))
        E.nop(1)
        e("v_readfirstlane_b32 s24, v3")
        pagen.phase_a(E, G)
        E.label("FU_pb")
        E.vm = []; E.lg = []; E.w = {}; E.mc = {}; E.sd = {}
        e("s_waitcnt lgkmcnt(0)")
        e("s_mov_b32 s88, s60"); e("s_mov_b32 s89, s61")
        e("s_mov_b32 s84, s8"); e("s_and_b32 s85, s9, 0xffff"); e("s_mov_b32 s86, %d" % XF_SIZE); e("s_mov_b32 s87, 0x00020000")
        if env('CPF', 1):
            e("s_cmp_ge_u32 s2, 8"); e("s_cbranch_scc1 K2_nocpf")
            e("s_lshl_b32 s33, s24, 13")
            va("v_lshlrev_b32 v4, 7, v0", V(4), V(0))
            va("v_add_u32 v4, s33, v4", V(4), V(4))
            va("v_min_u32 v4, K2_code_end-FU_pc-4, v4", V(4), V(4))
            E.vload("global_load_dword v72, v4, s[10:11]", V(72), V(4))
            E.label("K2_nocpf")
            E.vm = []
    else:
        e("s_load_dwordx2 s[8:9], s[0:1], 32")
        e("s_load_dwordx2 s[4:5], s[0:1], 16")
        if STAMP: e("s_memtime s[70:71]"); e("s_memrealtime s[80:81]")
        e("s_getpc_b64 s[10:11]")
        E.label("K2_pc")
        e("s_cmp_ge_u32 s2, 256"); e("s_cbranch_scc1 K2_end")
        va("v_lshrrev_b32 v3, 6, v0", V(3), V(0))
        if env('CPF', 1):
            va("v_lshlrev_b32 v4, 7, v0", V(4), V(0))
            va("v_min_u32 v4, K2_code_end-K2_pc-4, v4", V(4), V(4))
        va("v_and_b32 v0, 63, v0", V(0), V(0))
        E.nop(1)
        e("v_readfirstlane_b32 s24, v3")
        if env('CPF', 1):
            e("s_cmp_ge_u32 s2, 8"); e("s_cbranch_scc1 K2_nocpf")
            E.vload("global_load_dword v255, v4, s[10:11]", V(255), V(4))
            E.label("K2_nocpf")
    FL_OFF = G.get('FL_OFF', 0)
    nsig = [0]
    def signal12(plane=6144, tv=(10, 11), srcs=(78, 79)):
        for o in srcs:
            e("s_cmp_eq_u32 s%d, 0" % o); e("s_cbranch_scc1 FU_nosig%d_%d" % (nsig[0], o))
            e("s_add_u32 s33, s%d, %d" % (o, plane))
            e("v_mov_b32 v%d, s33" % tv[0]); e("v_mov_b32 v%d, s82" % tv[1])
            e("s_mov_b64 exec, 1")
            e("global_atomic_swap v%d, v%d, s[8:9] sc1" % tv)
            e("s_mov_b64 exec, -1")
            E.label("FU_nosig%d_%d" % (nsig[0], o))
        nsig[0] += 1
    def signal1(tv):
        e("s_cmp_eq_u32 s80, 3"); e("s_cselect_b32 s80, 0, s78")
        signal12(6144, tv, (80, 81))
    e("s_and_b32 s25, s2, 7"); e("s_lshr_b32 s26, s2, 3")
    e("s_mul_i32 s27, s26, 43"); e("s_lshr_b32 s27, s27, 8"); e("s_mul_i32 s28, s27, 6"); e("s_sub_u32 s28, s26, s28")
    e("s_lshl_b32 s27, s27, 3"); e("s_add_u32 s27, s27, s25")
    e("s_cmp_lt_u32 s26, 30"); e("s_cbranch_scc1 K2_map")
    e("s_lshl_b32 s29, s25, 1"); e("s_add_u32 s29, s29, s26"); e("s_sub_u32 s29, s29, 30")
    e("s_mul_i32 s27, s29, 43"); e("s_lshr_b32 s27, s27, 8"); e("s_mul_i32 s28, s27, 6"); e("s_sub_u32 s28, s29, s28"); e("s_add_u32 s27, s27, 40")
    E.label("K2_map")
    e("s_cmp_ge_u32 s27, %d" % NREG); e("s_cbranch_scc1 %s" % ("FU_idle" if FUSED else "K2_end"))
    va("v_lshlrev_b32 v%d, 4, v0" % V_L16, V(V_L16), V(0))
    va("v_and_b32 v3, 15, v0", V(3), V(0))
    va("v_cmp_ne_u32 vcc, 0, v3", [], V(3))
    va("v_lshrrev_b32 v4, 4, v0", V(4), V(0))
    va("v_lshlrev_b32 v4, 6, v4", V(4), V(4))
    va("v_lshrrev_b32 v5, 2, v3", V(5), V(3))
    va("v_lshl_add_u32 v5, v5, 8, v4", V(5), V(5) + V(4))
    va("v_and_b32 v6, 3, v0", V(6), V(0))
    va("v_lshl_add_u32 v%d, v6, 4, v5" % V_FR, V(V_FR), V(5) + V(6))
    va("v_min_u32 v3, 5, v3", V(3), V(3))
    va("v_add_u32 v3, %d, v3" % (S - 6), V(3), V(3))
    va("v_lshlrev_b32 v3, 10, v3", V(3), V(3))
    va("v_add3_u32 v%d, v3, v4, s%d" % (V_HOFF, 33) if False else "v_add_u32 v3, v3, v4", V(3), V(3) + V(4))
    va("v_add_u32 v%d, 816, v3" % V_HOFF, V(V_HOFF), V(3))
    e("s_lshl_b32 s29, s27, 2"); e("s_add_u32 s29, s29, s24"); e("s_mul_i32 s29, s29, %d" % XW)
    e("s_max_u32 s30, s27, 1"); e("s_sub_u32 s30, s30, 1"); e("s_lshl_b32 s30, s30, 2"); e("s_add_u32 s30, s30, s24"); e("s_mul_i32 s30, s30, %d" % XW)
    e("s_lshl_b32 s31, s28, 2"); e("s_add_u32 s31, s31, s24"); e("s_mul_i32 s31, s31, %d" % WW); e("s_add_u32 s31, s31, %d" % WF_OFF)
    ROT = env('ROT', 0)
    if ROT:
        e("s_lshr_b32 s33, s27, 3"); e("s_add_u32 s33, s33, s28")
        if ROT == 2:
            e("s_and_b32 s32, s33, 1"); e("s_xor_b32 s36, s32, 1"); e("s_mov_b32 s39, 2")
        else:
            e("s_mul_i32 s34, s33, 86"); e("s_lshr_b32 s34, s34, 8"); e("s_mul_i32 s34, s34, 3"); e("s_sub_u32 s32, s33, s34")
            e("s_add_u32 s36, s32, 1"); e("s_cmp_eq_u32 s36, 3"); e("s_cselect_b32 s36, 0, s36")
            e("s_add_u32 s39, s36, 1"); e("s_cmp_eq_u32 s39, 3"); e("s_cselect_b32 s39, 0, s39")
    else:
        e("s_mov_b32 s32, 0"); e("s_mov_b32 s36, 1"); e("s_mov_b32 s39, 2")
    SRD = {'X': [12, 40, 44], 'W': [16, 48, 52], 'H': [20, 56, 60]}
    CH = [32, 36, 39]
    def srd_off(kind, ch):
        base = {'X': 29, 'W': 31, 'H': 30}[kind]; stride = {'X': 32768, 'W': 28672, 'H': 32768}[kind]
        sr = SRD[kind][ch]
        e("s_mul_i32 s%d, s%d, %d" % (sr + 2, CH[ch], stride)); e("s_add_u32 s%d, s%d, s%d" % (sr + 2, sr + 2, base))
    def srd_fin(kind, ch):
        sr = SRD[kind][ch]; sz = {'X': 32768, 'W': 28672, 'H': XREG + 32768}[kind]
        e("s_add_u32 s%d, s8, s%d" % (sr, sr + 2)); e("s_addc_u32 s%d, s9, 0" % (sr + 1)); e("s_and_b32 s%d, s%d, 0xffff" % (sr + 1, sr + 1))
        e("s_mov_b32 s%d, %d" % (sr + 2, sz)); e("s_mov_b32 s%d, 0x00020000" % (sr + 3))
    for kind in 'XW': srd_off(kind, 0)
    if not FUSED: e("s_waitcnt lgkmcnt(0)")
    for kind in 'XW': srd_fin(kind, 0)
    CST = [None, 25, 26, 64, 65, 66, 67, 68] if not STAMP else [None, 25, 26, 96, 97, 98, 99, 100]
    need0 = sorted(set((f.off % (32768 if f.kind != 'W' else 28672)) // 4096 for f in pre) - {0})
    for j in need0: e("s_mov_b32 s%d, %d" % (CST[j], j * 4096))
    def late_srds():
        for j in range(1, 8):
            if j not in need0: e("s_mov_b32 s%d, %d" % (CST[j], j * 4096))
        for kind, ch in [('H', 0), ('X', 1), ('W', 1), ('H', 1), ('X', 2), ('W', 2), ('H', 2)]:
            srd_off(kind, ch); srd_fin(kind, ch)
    def load(f, slot):
        if slot > 100 and ((env('SKIPW', 0) and f.kind == 'W') or (env('SKIPX', 0) and f.kind != 'W')): return
        stride = 28672 if f.kind == 'W' else 32768
        off = f.off % stride
        assert f.off // stride == f.ch
        so = off // 4096; io = off % 4096
        sreg = "0" if so == 0 else "s%d" % CST[so]
        kind = {'X': 'X', 'W': 'W', 'H': 'H', 'S': 'H'}[f.kind]
        sr = SRD[kind][f.ch]
        vo = {'X': V_FR, 'W': V_L16, 'H': V_HOFF, 'S': V_SH}[f.kind]
        E.vload("buffer_load_dwordx4 %s, v%d, s[%d:%d], %s offen offset:%d%s" % (rn(f.reg), vo, sr, sr + 3, sreg, io, env('LDW', ' sc1') if f.kind == 'W' else env('LDX', ' sc1')), regs(f.reg), V(vo), tok=('slot', slot))
    assert all(f.kind in 'XW' and f.ch == 0 for f in pre), pre
    e("s_add_u32 s10, s10, K2_at-%s_pc" % KN); e("s_addc_u32 s11, s11, 0")
    e("s_lshl_b32 s33, s24, 10")
    va("v_add_u32 v3, s33, v%d" % V_L16, V(3), V(V_L16))
    def touch(c): raise Exception('touch disabled')
    NP1 = env('NP1', 12)
    SPIN = env('SPIN', 400000)
    def poll_loads(phase, raw=False):
        ld = (lambda t, d, a: e(t)) if raw else (lambda t, d, a: E.vload(t, V(d), V(a), tok=('slot', slot_now[0])))
        if phase == 0:
            ld("global_load_dword v3, v252, s[8:9] sc1", 3, 252)
            ld("global_load_dword v8, v255, s[8:9] sc1", 8, 255)
        else:
            if raw: e("v_add_u32 v%d, %d, v252" % (252 + phase, 6144 if phase == 1 else 20480))
            ld("global_load_dword v3, v%d, s[8:9] sc1" % (252 + phase), 3, 252 + phase)
            ld("global_load_dword v%d, v255, s[8:9] offset:%d sc1" % (252 + phase, 256 * phase), 252 + phase, 255)
    def poll_test(phase, lab, raw=False):
        regs_ = [3, 8] if phase == 0 else [3, 252 + phase]
        for k_, r_ in enumerate(regs_):
            t = "v_cmp_ne_u32 s[%d:%d], s82, v%d" % (72 + 2 * k_, 73 + 2 * k_, r_)
            if raw: e(t)
            else: va(t, [], V(r_))
        e("s_nop 4")
        e("s_or_b64 s[72:73], s[72:73], s[74:75]")
        e("s_cmp_lg_u64 s[72:73], 0")
        e("s_cbranch_scc1 %s" % lab)
    if FUSED:
        E.vload("global_load_dwordx4 v[4:7], v3, s[10:11]", V(4, 4), V(3), tok=('slot', -1))
        late_srds()
        for fn in setup: fn()
        e("s_lshl_b32 s33, s27, 7"); e("s_max_u32 s34, s27, 1"); e("s_sub_u32 s34, s34, 1"); e("s_lshl_b32 s34, s34, 7")
        va("v_mov_b32 v252, s33", V(252), []); va("v_mov_b32 v253, s34", V(253), [])
        va("v_cmp_gt_u32 s[72:73], 32, v0", [], V(0)); E.nop(2)
        va("v_cndmask_b32 v252, v253, v252, s[72:73]", V(252), V(252) + V(253))
        va("v_and_b32 v253, 31, v0", V(253), V(0))
        va("v_lshl_add_u32 v252, v253, 2, v252", V(252), V(252) + V(253))
        va("v_add_u32 v252, %d, v252" % FL_OFF, V(252), V(252))
        va("v_add_u32 v253, 6144, v252", V(253), V(252))
        va("v_add_u32 v254, 20480, v252", V(254), V(252))
        va("v_min_u32 v255, 55, v0", V(255), V(0))
        va("v_lshlrev_b32 v255, 2, v255", V(255), V(255))
        e("s_and_b32 s33, s2, 7"); e("s_lshl_b32 s33, s33, 10"); e("s_add_u32 s33, s33, %d" % (FL_OFF + 12288))
        va("v_add_u32 v255, s33, v255", V(255), V(255))
        e("s_mov_b32 s33, 0")
        E.wait(0, None)
        fstamp(3)
        e("s_cmp_lg_u32 s24, 3"); e("s_cbranch_scc1 FU_sig")
        poll_loads(0, raw=True)
        e("s_waitcnt vmcnt(0)")
        if FST == 3:
            e("v_cmp_ne_u32 s[96:97], s82, v3"); e("v_cmp_ne_u32 s[98:99], s82, v8"); e("s_mov_b32 s34, 0")
        poll_test(0, "FU_poll0_again", raw=True)
        E.label("FU_poll0_ok")
        if FST == 3: e("s_mov_b32 s92, s34")
        E.label("FU_sig")
        signal1((12, 13))
        E.barrier()
        fstamp(4)
        for f in pre: load(f, -1)
    else:
        for f in pre[:NP1]: load(f, -1)
        late_srds()
        for fn in setup: fn()
        for f in pre[NP1:]: load(f, -1)
        E.vload("global_load_dwordx4 v[4:7], v3, s[10:11]", V(4, 4), V(3), tok=('slot', -1))
    if STAMP and STAMP != 3: e("s_memtime s[72:73]")
    if FUSED:
        for ph in (1, 2):
            first = min(f.issue for f in frags if f.ch >= ph)
            mp2 = first - 1; mp1 = max(1, mp2 - env('MPL', 80))
            def p_issue(ph=ph): poll_loads(ph)
            def p_check(ph=ph):
                E._need(V(3) + V(252 + ph))
                poll_test(ph, "FU_poll%d_again" % ph)
                E.label("FU_poll%d_ok" % ph)
                E.barrier()
            gap[mp1].append(('ins', p_issue, 'poll')); gap[mp2].insert(0, ('ins', p_check, 'poll'))
            sys.stderr.write("fused: poll %d issued at %d, checked at %d\n" % (ph, mp1, mp2))
        D0 = env('DEF0', 110); DS_ = env('DEFS', 4)
        DR = [40, 44, 48, 52]
        seq = []
        for n_, (task, i) in enumerate([(t_, i_) for t_ in range(2) for i_ in range(4)]):
            r = DR[n_ % 4]
            def rd(r=r, task=task, i=i): E.dsread("ds_read_b128 v[%d:%d], v%d offset:%d" % (r, r + 3, 16 + i, task * 12352 + 768 * i + 128), V(r, 4), V(16 + i))
            def st_(r=r, task=task, i=i):
                e("s_add_u32 s33, s%d, %d" % (88 + task, i * XW + 2 * 32768))
                E.vstore("buffer_store_dwordx4 v[%d:%d], v11, s[84:87], s33 offen sc1" % (r, r + 3), V(r, 4), V(11), tok=('def2',))
            gap[D0 + n_ * DS_].append(('ins', rd, 'def')); gap[D0 + n_ * DS_ + 10].append(('ins', st_, 'def'))
        def sig2():
            E._need([('def2',)])
            signal12(20480, (12, 13))
        gap[D0 + 7 * DS_ + 10 + env('DEFW', 80)].append(('ins', sig2, 'def'))
    started = set()
    for i in range(N + 1):
        slot_now[0] = i
        if i == N and STAMP: e("s_memtime s[76:77]"); e("s_memrealtime s[82:83]")
        for x in gap[i]:
            if x[0] == 'load': load(x[1], i)
            elif x[0] == 'touch': touch(x[1])
            else: x[1]()
        if i == N:
            final(); break
        a, (ch, c, rho), w = ops[i]
        xf = XS[ch, c, rho] if (rho < 0 and (ch, c) in SHL) else X[ch, c, rho if rho >= 0 else rho + S]
        prewait(regs(xf.reg) + regs(w.reg))
        if STAMP:
            if i == 0 and STAMP != 3: e("s_memtime s[74:75]")
            if i == 0: e("s_memrealtime s[88:89]")
            m1, m2 = (N // 3, 2 * N // 3) if STAMP == 1 else (env('M1', 0), env('M2', 0))
            if STAMP != 3 and i == m1: e("s_memtime s[84:85]"); e("s_memrealtime s[90:91]")
            if STAMP != 3 and i == m2: e("s_memtime s[86:87]"); e("s_memrealtime s[92:93]")
        if i == 0: fstamp(5)
        E.mfma(accreg[a], xf.reg, w.reg, accreg[a] if a in started else None)
        started.add(a)
    if STAMP:
        e("s_memtime s[94:95]"); e("s_memrealtime s[66:67]"); e("s_waitcnt lgkmcnt(0)")
        e("s_add_u32 s4, s8, %d" % ST_OFF); e("s_addc_u32 s5, s9, 0"); e("s_and_b32 s5, s5, 0xffff"); e("s_mov_b32 s6, %d" % (256 * 4 * 64))
        e("s_lshl_b32 s33, s2, 2"); e("s_add_u32 s33, s33, s24"); e("s_lshl_b32 s33, s33, 6")
        for k2, sr in enumerate((70, 72, 74, 76, 80, 82, 84, 86, 88, 90, 92, 94, 66)):
            e("v_mov_b32 v6, s%d" % sr); e("v_mov_b32 v5, %d" % (4 * k2)); e("s_mov_b64 exec, 1")
            e("buffer_store_dword v6, v5, s[4:7], s33 offen"); e("s_mov_b64 exec, -1")
    if FST == 3:
        e("s_load_dwordx2 s[4:5], s[0:1], 24"); e("s_waitcnt lgkmcnt(0)")
        e("s_lshl_b32 s34, s2, 2"); e("s_add_u32 s34, s34, s24"); e("s_mov_b32 s33, 0")
        for n_, (wg, wv) in enumerate(((37, 3), (170, 3), (90, 3))):
            e("s_cmp_eq_u32 s34, %d" % (wg * 4 + wv)); e("s_cselect_b32 s33, %d, s33" % (4 + 20 * n_))
        e("s_cmp_eq_u32 s33, 0"); e("s_cbranch_scc1 K2_end")
        for k2, sr in enumerate([96, 97, 98, 99, 92]):
            e("v_mov_b32 v6, s%d" % sr); e("v_mov_b32 v5, s33"); e("v_add_u32 v5, %d, v5" % (4 * k2)); e("s_mov_b64 exec, 1")
            e("global_store_dword v5, v6, s[4:5]"); e("s_mov_b64 exec, -1")
    elif FST == 2:
        fstamp(6); e("s_waitcnt lgkmcnt(0)")
        e("s_load_dwordx2 s[4:5], s[0:1], 24"); e("s_waitcnt lgkmcnt(0)")
        e("s_lshl_b32 s34, s2, 2"); e("s_add_u32 s34, s34, s24"); e("s_mov_b32 s33, 0")
        for n_, (wg, wv) in enumerate(((37, 0), (170, 0), (170, 3))):
            e("s_cmp_eq_u32 s34, %d" % (wg * 4 + wv)); e("s_cselect_b32 s33, %d, s33" % (4 + 20 * n_))
        e("s_cmp_eq_u32 s33, 0"); e("s_cbranch_scc1 K2_end")
        for k2, kk in enumerate([2, 3, 4, 5, 6]):
            e("s_sub_u32 s34, s%d, s100" % fs_regs[kk])
            e("v_mov_b32 v6, s34"); e("v_mov_b32 v5, s33"); e("v_add_u32 v5, %d, v5" % (4 * k2)); e("s_mov_b64 exec, 1")
            e("global_store_dword v5, v6, s[4:5]"); e("s_mov_b64 exec, -1")
    elif FST:
        fstamp(6); e("s_waitcnt lgkmcnt(0)")
        e("s_add_u32 s4, s8, %d" % ST_OFF); e("s_addc_u32 s5, s9, 0"); e("s_and_b32 s5, s5, 0xffff"); e("s_mov_b32 s6, %d" % (256 * 4 * 64)); e("s_mov_b32 s7, 0x00020000")
        e("s_lshl_b32 s33, s2, 2"); e("s_add_u32 s33, s33, s24"); e("s_lshl_b32 s33, s33, 6")
        for k2, sr in enumerate([100] + [fs_regs[k_] for k_ in range(1, 7)]):
            e("v_mov_b32 v6, s%d" % sr); e("v_mov_b32 v5, %d" % (4 * k2)); e("s_mov_b64 exec, 1")
            e("buffer_store_dword v6, v5, s[4:7], s33 offen"); e("s_mov_b64 exec, -1")
    E.label("K2_end")
    e("s_endpgm")
    if FUSED:
        E.label("FU_idle")
        for task in range(2):
            for i in range(4):
                r = 72 + 16 * task + 4 * i
                e("ds_read_b128 v[%d:%d], v%d offset:%d" % (r, r + 3, 16 + i, task * 12352 + 768 * i + 128))
        e("s_waitcnt lgkmcnt(0)")
        for task in range(2):
            for i in range(4):
                r = 72 + 16 * task + 4 * i
                e("s_add_u32 s33, s%d, %d" % (88 + task, i * XW + 2 * 32768))
                e("buffer_store_dwordx4 v[%d:%d], v11, s[84:87], s33 offen sc1" % (r, r + 3))
        e("s_waitcnt vmcnt(0)")
        signal1((12, 13))
        signal12(20480)
        e("s_endpgm")
        for n_ in range(3):
            E.label("FU_poll%d_again" % n_)
            e("s_mov_b32 s34, 0")
            E.label("FU_poll%d_loop" % n_)
            e("s_add_u32 s34, s34, 1"); e("s_cmp_ge_u32 s34, %d" % SPIN); e("s_cbranch_scc1 FU_poll%d_ok" % n_)
            e("s_sleep %d" % env('PSL', 16))
            poll_loads(n_, raw=True); e("s_waitcnt vmcnt(0)")
            poll_test(n_, "FU_poll%d_loop" % n_, raw=True)
            e("s_branch FU_poll%d_ok" % n_)
        pagen.tables(E, G)
    tb = np.zeros((4, 64, 8), dtype=np.float64)
    for v in range(4):
        for l in range(64):
            n, kg = l % 16, l // 16
            if n >= cfg.m: continue
            if kg < 2:
                for ww in range(2):
                    for sl in range(3): tb[v, l, 4 * ww + sl] = cfg.ATs[2 * kg + ww, sl, n]
            elif kg == 2:
                for p in range(4):
                    ww = p ^ v
                    tb[v, l, 2 * p] = cfg.ATs[ww, 3, n]; tb[v, l, 2 * p + 1] = cfg.ATs[ww, 4, n]
    E.raw(".p2align 8"); E.label("K2_at"); E.raw(G['table'](bf16bits(tb).reshape(-1)))
    E.label("K2_code_end")
    sys.stderr.write("K2: %d MFMA main, %d instr, %d waits, %d nops\n" % (N, E.ninst, E.nwait, E.nnop))
    name = "standalone__fft_conv__vision_kernel" if FUSED else "k2_kernel"
    return G['head'](name) + E.text() + G['KD'] % (name, 512, 102, 256), LDS
```

```python
import numpy as np
from emit import *
from consts import bf16bits, bf16r

WLDS = 27008
SL1 = 12352
KS = 2080

def phase_a(E, G):
    env = G['env']; cfg = G['cfg']
    XW, XREG, XF_SIZE, WF_OFF, WF_SIZE, XBYTES, WBYTES, ROWB = [G[k] for k in 'XW XREG XF_SIZE WF_OFF WF_SIZE XBYTES WBYTES ROWB'.split()]
    SF = env('K1SF', ' sc1')
    e = E.salu
    va = lambda t, d, s_, **kw: E.valu(t, d, s_, **kw)
    st = G.get('fstamp', lambda n: None)
    e("s_and_b32 s20, s2, 7")
    e("s_lshr_b32 s21, s2, 3"); e("s_lshl_b32 s21, s21, 2"); e("s_add_u32 s21, s21, s24")
    e("s_lshr_b32 s83, s2, 3"); e("s_lshl_b32 s83, s83, 1"); e("s_add_u32 s83, s83, s24"); e("s_cmp_lt_u32 s24, 2"); e("s_cselect_b32 s83, s83, 64")
    e("s_add_u32 s22, s83, 128"); e("s_min_u32 s22, s22, 167")
    e("s_mov_b32 s80, 0")
    e("s_cmp_lt_u32 s24, 2"); e("s_cbranch_scc1 FA_noas")
    e("s_lshr_b32 s57, s2, 3"); e("s_lshl_b32 s58, s57, 1"); e("s_add_u32 s58, s58, s24"); e("s_sub_u32 s58, s58, 2")
    e("s_cmp_ge_u32 s58, 61"); e("s_cbranch_scc1 FA_noas")
    e("s_mov_b32 s80, 1")
    e("s_add_u32 s22, s58, 128"); e("s_mov_b32 s81, %d" % (SL1 - 2 * WLDS))
    e("s_cmp_lt_u32 s58, 40"); e("s_cbranch_scc1 FA_noas")
    e("s_sub_u32 s22, s21, 2"); e("s_mov_b32 s81, %d" % (-2 * WLDS))
    E.label("FA_noas")
    va("v_and_b32 v1, 3, v0", V(1), V(0))
    va("v_bfe_u32 v5, v0, 2, 1", V(5), V(0))
    e("s_sub_u32 s23, s22, s21")
    va("v_mul_u32_u24 v5, s23, v5", V(5), V(5))
    va("v_add_u32 v5, s21, v5", V(5), V(5))
    va("v_lshl_add_u32 v1, v5, 2, v1", V(1), V(1) + V(5))
    va("v_mul_u32_u24 v2, 2260, v1", V(2), V(1))
    va("v_lshrrev_b32 v2, 16, v2", V(2), V(2))
    va("v_mul_u32_u24 v3, 29, v2", V(3), V(2))
    va("v_sub_u32 v3, v1, v3", V(3), V(1) + V(3))
    va("v_min_u32 v2, 22, v2", V(2), V(2))
    va("v_lshlrev_b32 v4, 3, v3", V(4), V(3))
    va("v_add_u32 v4, 216, v4", V(4), V(4))
    va("v_subrev_u32 v5, 224, v4", V(5), V(4))
    va("v_min_u32 v4, v4, v5", V(4), V(4) + V(5))
    va("v_add_u32 v4, s20, v4", V(4), V(4))
    va("v_mul_u32_u24 v4, %d, v4" % ROWB, V(4), V(4))
    va("v_mul_u32_u24 v6, 1920, v2", V(6), V(2))
    va("v_add_u32 v7, v4, v6", V(7), V(4) + V(6))
    va("v_cmp_eq_u32 vcc, 0, v2", [], V(2))
    va("v_mov_b32 v5, %d" % ROWB, V(5), [])
    va("v_mov_b32 v6, 0", V(6), [])
    va("v_cndmask_b32 v3, v6, v5, vcc", V(3), V(5) + V(6))
    E.nop(1)
    for a in range(8): e("v_readlane_b32 s%d, v7, %d" % (40 + a, a))
    for a in range(8): e("v_readlane_b32 s%d, v3, %d" % (48 + a, a))
    for n in range(3):
        va("v_add_u32 v8, %d, v0" % (64 * n), V(8), V(0))
        va("v_mul_u32_u24 v9, 5462, v8", V(9), V(8))
        va("v_bfe_u32 v10, v9, 18, 2", V(10), V(9))
        va("v_xor_b32 v8, v8, v10", V(8), V(8) + V(10))
        va("v_lshlrev_b32 v%d, 4, v8" % (12 + n), V(12 + n), V(8))
        if n < 2:
            va("v_lshrrev_b32 v9, 16, v9", V(9), V(9))
            va("v_cmp_gt_u32 vcc, 6, v9", [], V(9))
            E.nop(2)
            va("v_cndmask_b32 v%d, 0, 1, vcc" % (16 + n), V(16 + n), [])
    e("s_mul_i32 s56, s24, %d" % WLDS)
    e("s_waitcnt lgkmcnt(0)")
    e("s_mov_b64 s[76:77], s[6:7]")
    e("s_sub_u32 s12, s84, 1152"); e("s_subb_u32 s13, s85, 0"); e("s_and_b32 s13, s13, 0xffff"); e("s_mov_b32 s14, %d" % (XBYTES + 1152)); e("s_mov_b32 s15, 0x00020000")
    def xloads(task):
        for a in range(4):
            for n in range(3):
                t = 8 + (3 * a + n) % 2
                e("s_add_u32 m0, s56, %d" % (task * SL1 + a * 3088 + n * 1024))
                if n < 2: va("v_mad_i32_i24 v%d, v%d, s%d, v%d" % (t, 16 + n, 48 + 4 * task + a, 12 + n), V(t), V(16 + n) + V(12 + n))
                else:
                    t = 14; E.nop(1)
                E.vload("buffer_load_dwordx4 v%d, s[12:15], s%d offen lds" % (t, 40 + 4 * task + a), [], V(t), tok=('x', task, a))
    e("s_or_b32 s57, s2, s24"); e("s_cmp_lg_u32 s57, 0"); e("s_cbranch_scc1 FA_nononce")
    e("s_memrealtime s[58:59]"); e("s_waitcnt lgkmcnt(0)"); e("s_or_b32 s58, s58, 1")
    va("v_mov_b32 v8, 0", V(8), []); va("v_mov_b32 v9, s58", V(9), [])
    e("s_mov_b64 exec, 1"); e("global_store_dword v8, v9, s[76:77] sc1"); e("s_mov_b64 exec, -1")
    E.label("FA_nononce")
    def first_loads():
        xloads(0)
        va("v_mov_b32 v30, 0", V(30), [])
        E.vload("global_load_dword v31, v30, s[76:77] sc1", V(31), V(30), tok=('nonce',))
    e("s_cmp_lt_u32 s83, 40"); e("s_cbranch_scc1 FA_xx")
    e("s_cmp_lt_u32 s83, 61"); e("s_cbranch_scc1 FA_xw")
    import copy
    def snap(): return copy.deepcopy((E.pos, E.w, E.mc, E.sd, E.vm, E.lg))
    def rest(s_): E.pos, E.w, E.mc, E.sd, E.vm, E.lg = copy.deepcopy(s_)
    base_state = snap()

    def xsetup():
        va("v_lshlrev_b32 v1, 3, v0", V(1), V(0))
        e("s_add_u32 s58, s10, FU_bt-FU_pc"); e("s_addc_u32 s59, s11, 0")
        E.vload("global_load_dwordx2 v[20:21], v1, s[58:59]", V(20, 2), V(1))
        va("v_lshrrev_b32 v2, 4, v0", V(2), V(0))
        va("v_and_b32 v3, 15, v0", V(3), V(0))
        va("v_lshrrev_b32 v4, 2, v3", V(4), V(3))
        va("v_and_b32 v5, 3, v0", V(5), V(0))
        va("v_lshl_add_u32 v6, v2, 2, v4", V(6), V(2) + V(4))
        va("v_mul_u32_u24 v7, 193, v5", V(7), V(5))
        va("v_mul_u32_u24 v8, 12, v6", V(8), V(6))
        va("v_add_u32 v7, v7, v8", V(7), V(7) + V(8))
        va("v_mov_b32 v10, s56", V(10), [])
        for kg in range(4):
            va("v_xor_b32 v9, %d, v2" % kg, V(9), V(2))
            va("v_add_u32 v9, v7, v9", V(9), V(7) + V(9))
            va("v_lshl_add_u32 v%d, v9, 4, v10" % (24 + kg), V(24 + kg), V(9) + V(10))
        va("v_mul_u32_u24 v7, 193, v2", V(7), V(2))
        va("v_mul_u32_u24 v8, 12, v3", V(8), V(3))
        va("v_add_u32 v7, v7, v8", V(7), V(7) + V(8))
        va("v_lshrrev_b32 v8, 2, v3", V(8), V(3))
        for kg in range(4):
            va("v_xor_b32 v9, %d, v8" % kg, V(9), V(8))
            va("v_add_u32 v9, v7, v9", V(9), V(7) + V(9))
            va("v_lshl_add_u32 v%d, v9, 4, v10" % (244 + kg), V(244 + kg), V(9) + V(10))
        va("v_lshrrev_b32 v2, 4, v0", V(2), V(0))
        va("v_bfe_u32 v3, v0, 2, 2", V(3), V(0))
        va("v_and_b32 v4, 3, v0", V(4), V(0))
        va("v_mul_u32_u24 v7, 193, v4", V(7), V(4))
        va("v_mul_u32_u24 v8, 12, v2", V(8), V(2))
        va("v_add_u32 v7, v7, v8", V(7), V(7) + V(8))
        for v in range(4):
            va("v_xor_b32 v9, %d, v3" % v, V(9), V(3))
            va("v_add_u32 v9, v7, v9", V(9), V(7) + V(9))
            va("v_lshl_add_u32 v%d, v9, 4, v10" % (16 + v), V(16 + v), V(9) + V(10))
        va("v_lshlrev_b32 v7, 13, v2", V(7), V(2))
        va("v_lshl_add_u32 v7, v3, 6, v7", V(7), V(3) + V(7))
        va("v_lshl_add_u32 v11, v4, 4, v7", V(11), V(4) + V(7))
        for task, qs in ((0, 21), (1, 22)):
            e("s_lshr_b32 s62, s%d, 2" % qs); e("s_lshl_b32 s%d, s62, 7" % (78 + task)); e("s_mul_i32 s%d, s62, %d" % (60 + task, XREG))
            e("s_lshl_b32 s62, s20, 2"); e("s_and_b32 s57, s%d, 3" % qs); e("s_add_u32 s62, s62, s57"); e("s_lshl_b32 s62, s62, 2")
            e("s_add_u32 s%d, s%d, s62" % (78 + task, 78 + task)); e("s_add_u32 s%d, s%d, %d" % (78 + task, 78 + task, G['FL_OFF']))
            e("s_lshl_b32 s62, s20, 10"); e("s_add_u32 s%d, s%d, s62" % (60 + task, 60 + task))
            e("s_and_b32 s62, s%d, 3" % qs); e("s_lshl_b32 s62, s62, 8"); e("s_add_u32 s%d, s%d, s62" % (60 + task, 60 + task))
        e("s_mov_b32 s16, s8"); e("s_and_b32 s17, s9, 0xffff"); e("s_mov_b32 s18, %d" % XF_SIZE); e("s_mov_b32 s19, 0x00020000")
    AFR = [32, 160]
    def reads(task, k):
        for kg in range(4):
            for hf in range(2):
                a = AFR[task] + 16 * k + 2 * (2 * kg + hf)
                E.dsread("ds_read_b64_tr_b16 v[%d:%d], v%d offset:%d" % (a, a + 1, 24 + kg, task * SL1 + k * 64 + 8 * hf), V(a, 2), V(24 + kg))
    def mm(task, k, d):
        for i in range(8): E.mfma16(('v', d + 4 * i), ('v', AFR[task] + 16 * k + 2 * i), ('v', 20), None)
    def pack(task, k, d):
        for kg in range(4):
            d0 = d + 8 * kg
            for i in range(4):
                va("v_cvt_pk_bf16_f32 v%d, v%d, v%d" % (d0 + i, d0 + 2 * i, d0 + 2 * i + 1), V(d0 + i), V(d0 + 2 * i, 2))
            E.dswrite("ds_write_b128 v%d, v[%d:%d] offset:%d" % (244 + kg, d0, d0 + 3, task * SL1 + k * 64), V(d0, 4), V(244 + kg))
    ring = [0]
    def out(task, k):
        base = 144 if ring[0] % 2 == 0 else 208
        ring[0] += 1
        for i in range(4):
            r = base + 4 * i
            E.dsread("ds_read_b128 v[%d:%d], v%d offset:%d" % (r, r + 3, 16 + i, task * SL1 + 768 * i + 64 * k), V(r, 4), V(16 + i))
        for i in range(4):
            r = base + 4 * i
            e("s_add_u32 s62, s%d, %d" % (60 + task, i * XW + k * 32768))
            E.vstore("buffer_store_dwordx4 v[%d:%d], v11, s[16:19], s62 offen%s" % (r, r + 3, SF), V(r, 4), V(11), tok=('st', task, k))
    def get_nonce(tag):
        E._need(V(31))
        E.nop(1)
        e("v_readfirstlane_b32 s82, v31")
        e("s_mov_b32 s57, 0")
        E.label("FA_n%s" % tag)
        e("s_cmp_lg_u32 s82, 0"); e("s_cbranch_scc1 FA_nok%s" % tag)
        e("s_add_u32 s57, s57, 1"); e("s_cmp_ge_u32 s57, %d" % env('SPIN', 400000)); e("s_cbranch_scc1 FA_nok%s" % tag)
        e("s_sleep 4")
        e("v_mov_b32 v30, 0"); e("global_load_dword v31, v30, s[76:77] sc1"); e("s_waitcnt vmcnt(0)"); e("v_readfirstlane_b32 s82, v31")
        e("s_branch FA_n%s" % tag)
        E.label("FA_nok%s" % tag)
    def signal(offs):
        for o in offs:
            va("v_mov_b32 v1, s%d" % o, V(1), [])
            va("v_mov_b32 v2, s82", V(2), [])
            e("s_mov_b64 exec, 1")
            E.vstore("global_atomic_swap v1, v2, s[8:9] sc1", V(2), V(1))
            e("s_mov_b64 exec, -1")
    first_loads()
    xsetup()
    E.wait_token(('x', 0, 3))
    st(1)
    for k in range(3): reads(0, k)
    mm(0, 0, 80); mm(0, 1, 112); pack(0, 0, 80); out(0, 0)
    mm(0, 2, 80); pack(0, 1, 112); pack(0, 2, 80)

    out(0, 1)
    get_nonce('a')
    E._need([('st', 0, 0)])
    signal([78])
    st(2)
    E.wait(None, 0); E.barrier()
    e("s_mov_b32 s81, 0" if False else "s_nop 0")
    e("s_cmp_eq_u32 s80, 0"); e("s_cbranch_scc1 FA_noassist")
    for i in range(4): va("v_add_u32 v%d, s81, v%d" % (200 + i, 16 + i), V(200 + i), V(16 + i))
    for i in range(4):
        r = 160 + 4 * i
        E.dsread("ds_read_b128 v[%d:%d], v%d offset:%d" % (r, r + 3, 200 + i, 768 * i + 64), V(r, 4), V(200 + i))
    for i in range(4):
        r = 160 + 4 * i
        e("s_add_u32 s62, s61, %d" % (i * XW + 32768))
        E.vstore("buffer_store_dwordx4 v[%d:%d], v11, s[16:19], s62 offen%s" % (r, r + 3, SF), V(r, 4), V(11))
    e("s_mov_b32 s81, s79")
    e("s_mov_b32 s79, 0"); e("s_mov_b32 s61, 0x40000000")
    e("s_branch FU_pb")
    E.label("FA_noassist")
    e("s_mov_b32 s81, 0")
    e("s_mov_b32 s79, 0"); e("s_mov_b32 s61, 0x40000000")
    e("s_branch FU_pb")
    E.label("FA_xx"); rest(base_state); ring[0] = 0
    first_loads()
    xloads(1)
    xsetup()
    E.wait_token(('x', 0, 3))
    st(1)
    for k in range(3): reads(0, k)
    mm(0, 0, 80); mm(0, 1, 112); pack(0, 0, 80); out(0, 0)
    if env('FS2', 0): G['fs2'](3)
    E.wait_token(('x', 1, 3))
    for k in range(3): reads(1, k)
    mm(1, 0, 80); pack(0, 1, 112); pack(1, 0, 80); out(1, 0)
    mm(1, 1, 112); mm(0, 2, 80)
    get_nonce('b')
    E._need([('st', 0, 0)])
    signal([78])
    pack(1, 1, 112)
    E.wait(None, 0); E.barrier()
    E._need([('st', 1, 0)])
    signal([79])
    out(0, 1)
    pack(0, 2, 80); mm(1, 2, 112); pack(1, 2, 112)
    st(2)
    e("s_mov_b32 s80, 2"); e("s_mov_b32 s81, 0")
    e("s_branch FU_pb")
    E.label("FA_xw"); rest(base_state); ring[0] = 0
    e("s_mul_i32 s63, s20, 21"); e("s_add_u32 s63, s63, s83"); e("s_sub_u32 s63, s63, 40")
    e("s_and_b32 s64, s63, 1")
    e("s_lshr_b32 s63, s63, 1")
    e("s_and_b32 s65, s63, 3")
    e("s_lshr_b32 s63, s63, 2")
    e("s_mul_i32 s66, s63, 86"); e("s_lshr_b32 s66, s66, 8")
    e("s_mul_i32 s67, s66, 3"); e("s_sub_u32 s67, s63, s67")
    va("v_lshlrev_b32 v22, 4, v0", V(22), V(0))
    va("v_add_u32 v23, 1024, v22", V(23), V(22))
    e("s_mul_i32 s68, s66, %d" % (7 * 18432))
    e("s_mul_i32 s69, s67, %d" % (32 * 192)); e("s_add_u32 s68, s68, s69")
    e("s_mul_i32 s69, s65, %d" % (8 * 192)); e("s_add_u32 s68, s68, s69")
    e("s_mov_b32 s72, s86"); e("s_and_b32 s73, s87, 0xffff"); e("s_mov_b32 s74, %d" % WBYTES); e("s_mov_b32 s75, 0x00020000")
    for kw in range(7):
        for hf in range(2):
            e("s_add_u32 m0, s56, %d" % (SL1 + kw * KS + hf * 1024))
            e("s_add_u32 s69, s68, %d" % (kw * 18432))
            E.vload("buffer_load_dwordx4 v%d, s[72:75], s69 offen lds" % (22 + hf), [], V(22 + hf), tok=('w', kw, hf))
    va("v_lshlrev_b32 v2, 3, v0", V(2), V(0))
    e("s_add_u32 s58, s10, FU_gt-FU_pc"); e("s_addc_u32 s59, s11, 0")
    E.vload("global_load_dwordx2 v[22:23], v2, s[58:59]", V(22, 2), V(2))
    first_loads()
    xsetup()
    va("v_bfe_u32 v3, v0, 4, 1", V(3), V(0))
    va("v_bfe_u32 v4, v0, 2, 2", V(4), V(0))
    va("v_lshl_add_u32 v3, v3, 2, v4", V(3), V(3) + V(4))
    va("v_min_u32 v3, 6, v3", V(3), V(3))
    va("v_mul_u32_u24 v3, %d, v3" % KS, V(3), V(3))
    va("v_and_b32 v4, 3, v0", V(4), V(0))
    va("v_lshl_add_u32 v3, v4, 3, v3", V(3), V(3) + V(4))
    e("s_mul_i32 s69, s64, 96"); e("s_add_u32 s69, s69, s56")
    va("v_add_u32 v240, s69, v3", V(240), V(3))
    va("v_lshrrev_b32 v4, 4, v0", V(4), V(0))
    va("v_mul_u32_u24 v241, %d, v4" % (3 * 28 * 1024), V(241), V(4))
    va("v_and_b32 v4, 15, v0", V(4), V(0))
    va("v_lshl_add_u32 v241, v4, 4, v241", V(241), V(241) + V(4))
    e("s_mul_i32 s68, s64, %d" % (3 * 4 * 3 * 28 * 1024))
    e("s_mul_i32 s69, s67, %d" % (28 * 1024)); e("s_add_u32 s68, s68, s69")
    e("s_lshl_b32 s69, s66, 10"); e("s_add_u32 s68, s68, s69")
    e("s_lshl_b32 s69, s65, 8"); e("s_add_u32 s68, s68, s69")
    e("s_add_u32 s72, s8, %d" % WF_OFF); e("s_addc_u32 s73, s9, 0"); e("s_and_b32 s73, s73, 0xffff"); e("s_mov_b32 s74, %d" % WF_SIZE)
    E.wait_token(('w', 6, 1))
    for u in range(3):
        for i in range(8):
            a = 160 + 16 * u + 2 * i
            E.dsread("ds_read_b64_tr_b16 v[%d:%d], v240 offset:%d" % (a, a + 1, SL1 + i * 192 + u * 32), V(a, 2), V(240))
    for u in range(3):
        d = 80 if u % 2 == 0 else 112
        for i in range(8): E.mfma16(('v', d + 4 * i), ('v', 22), ('v', 160 + 16 * u + 2 * i), None)
        for j in range(4):
            p = 224 + 4 * j
            for dd in range(4):
                va("v_cvt_pk_bf16_f32 v%d, v%d, v%d" % (p + dd, d + 8 * dd + j, d + 8 * dd + 4 + j), V(p + dd), V(d + 8 * dd + j) + V(d + 8 * dd + 4 + j))
            e("s_add_u32 s69, s68, %d" % (u * 4 * 3 * 28 * 1024 + j * 7 * 1024))
            E.vstore("buffer_store_dwordx4 v[%d:%d], v241, s[72:75], s69 offen%s" % (p, p + 3, SF), V(p, 4), V(241), tok=('wst', u, j))
    E.wait_token(('x', 0, 3))
    st(1)
    for k in range(3): reads(0, k)
    mm(0, 0, 80); mm(0, 1, 112); pack(0, 0, 80); out(0, 0)
    mm(0, 2, 80)
    get_nonce('c')
    E._need([('wst', 2, 3)])
    e("s_lshl_b32 s79, s66, 2"); e("s_add_u32 s79, s79, s65"); e("s_lshl_b32 s79, s79, 1"); e("s_add_u32 s79, s79, s64"); e("s_lshl_b32 s79, s79, 2")
    e("s_lshl_b32 s69, s67, 8"); e("s_add_u32 s79, s79, s69"); e("s_add_u32 s79, s79, %d" % (G['FL_OFF'] + 12288))
    va("v_lshlrev_b32 v1, 10, v0", V(1), V(0))
    va("v_add_u32 v1, s79, v1", V(1), V(1))
    va("v_mov_b32 v2, s82", V(2), [])
    e("s_mov_b64 exec, 0xff")
    E.vstore("global_atomic_swap v1, v2, s[8:9] sc1", V(2), V(1))
    e("s_mov_b64 exec, -1")
    pack(0, 1, 112)
    E._need([('st', 0, 0)])
    signal([78])
    E.wait(None, 0); E.barrier()
    pack(0, 2, 80)
    st(2)
    e("s_mov_b32 s79, 0"); e("s_mov_b32 s61, 0x40000000")
    e("s_mov_b32 s80, 3"); e("s_mov_b32 s81, 0")
    e("s_branch FU_pb")

def tables(E, G):
    cfg = G['cfg']
    tb = np.zeros((64, 4), dtype=np.uint16)
    for l in range(64):
        n, g = l % 16, l // 16
        tb[l] = bf16bits(cfg.BT[n, 4 * g:4 * g + 4])
    E.raw(".p2align 8"); E.label("FU_bt"); E.raw(G['table'](tb.reshape(-1)))
    gc = np.zeros((16, 8)); gc[:, :7] = cfg.G[:, ::-1]
    ghi = bf16r(gc); glo = bf16r(gc - ghi.astype(np.float64))
    tg = np.zeros((64, 4), dtype=np.uint16)
    for l in range(64):
        n, g = l % 16, l // 16
        tg[l] = bf16bits((ghi if g < 2 else glo)[n, 4 * (g % 2):4 * (g % 2) + 4])
    E.label("FU_gt"); E.raw(G['table'](tg.reshape(-1)))
```

```python
import sys, os
import numpy as np
from emit import *
from consts import bf16bits, bf16r

class Task:
    def __init__(s, name, ins, lo, hi, deps=()):
        s.name, s.ins, s.lo, s.hi = name, list(ins), lo, hi
        s.deps = [d if isinstance(d, tuple) else (d, 0) for d in deps]
        s.done_at = None

def gen_k2(G):
    FUSED = G.get('FUSED', 0)
    env = G['env']; cfg = G['cfg']; S = G['S']; NREG = G['NREG']; NC = G['NC']; NCH = G['NCH']
    XW, XREG, XF_SIZE, WW, WF_OFF, WF_SIZE, ST_OFF, XBYTES, ROWB = [G[k] for k in 'XW XREG XF_SIZE WW WF_OFF WF_SIZE ST_OFF XBYTES ROWB'.split()]
    STAMP = env('STAMP', 0)
    PACE = env('PACE', 5); WLAT = env('WLAT', 90)
    E = Em(); e = E.salu
    va = lambda t, d, s_, **kw: E.valu(t, d, s_, **kw)
    class Frag:
        def __init__(s, kind, ch, c, idx, off):
            s.kind, s.ch, s.c, s.idx, s.off = kind, ch, c, idx, off
            s.first = None; s.last = None; s.reg = None; s.issue = None
        def __repr__(s): return "%s(ch%d c%d i%d)" % (s.kind, s.ch, s.c, s.idx)
    X = {}; Hf = {}; W = {}
    for ch in range(NCH):
        for c in range(NC):
            for r in range(S): X[ch, c, r] = Frag('X', ch, c, r, ((ch * NC + c) * S + r) * 1024)
            Hf[ch, c] = Frag('H', ch, c, 0, ((ch * NC + c) * S) * 1024)
            for kh in range(7): W[ch, c, kh] = Frag('W', ch, c, kh, ((ch * NC + c) * 7 + kh) * 1024)
    SHL = set([(NCH - 1, 2), (NCH - 1, 3)]) if env('SHL', 1) else set()
    XS = {}
    for (ch_, c_) in SHL:
        for n in range(1, 7): XS[ch_, c_, -n] = Frag('S', ch_, c_, -n, ((ch_ * NC + c_) * S + S - n) * 1024)
    ops = []
    def op(sl, r, ch, c, kh, cw): ops.append(((sl, r), (ch, c, r - kh), W[ch, cw, kh]))
    marks = {}
    def pstage(ch):
        for hi_, hs in enumerate([[0, 1, 2, 3], [4, 5, 6]]):
            marks['P%d_%d' % (ch, hi_)] = len(ops)
            if ch == 0 and hi_ == 0 and env('WAVEF', 1):
                prs = sorted([(max(7 - (r - kh), kh + env('WFB', 0)), -r, kh) for r in range(S) for kh in hs])
                fl = 0
                for lev, mr, kh in prs:
                    r = -mr
                    seq = [(0, 0, 0), (1, 0, 1), (1, 1, 0), (2, 1, 1)]
                    if fl: seq = seq[::-1]
                    for sl, cx, cw in seq: op(sl, r, ch, cx, kh, cw)
                    fl ^= 1
                continue
            for r in range(S - 1, -1, -1):
                for kh in hs: op(0, r, ch, 0, kh, 0)
                for kh in hs[::-1]: op(1, r, ch, 0, kh, 1)
                for kh in hs: op(1, r, ch, 1, kh, 0)
                for kh in hs[::-1]: op(2, r, ch, 1, kh, 1)
    def rstage(ch, u):
        for r in range(S - 1, -1, -1):
            for kh in range(7): op(2 + u, r, ch, 1 + u, kh, 1 + u)
    for ch in range(NCH - 1):
        pstage(ch); rstage(ch, 1); rstage(ch, 2)
    ch = NCH - 1
    pstage(ch)
    FIN = env('FIN', 2)
    step_end = {}
    if FIN == 1:
        rstage(ch, 1)
        marks['F'] = len(ops)
        for r in range(S - 1, -1, -1):
            for kh in range(7): op(4, r, ch, 3, kh, 3)
            step_end[r] = len(ops) - 1
    else:
        marks['F'] = len(ops)
        for r in range(S - 1, -1, -1):
            for kh in range(7): op(3, r, ch, 2, kh, 2)
            for kh in range(6, -1, -1): op(4, r, ch, 3, kh, 3)
            step_end[r] = len(ops) - 1
    N = len(ops)
    use = {}; acc_last = {}
    for i, (a, xk, w) in enumerate(ops):
        use.setdefault(xk, [i, i])[1] = i
        if w.first is None: w.first = i
        w.last = i
        acc_last[a] = i
    shifts = []
    for (ch, c, r), f in X.items():
        f.first, f.last = use[ch, c, r]
        if (ch, c) in SHL: continue
        if (ch, c, r - S) in use:
            a, b = use[ch, c, r - S]
            assert f.last < a - 12, (ch, c, r, f.last, a)
            shifts.append([f, S - r, f.last, a]); f.last = b
    for key, f in XS.items(): f.first, f.last = use[key]
    for key in SHL: del Hf[key]
    for (ch, c), h in Hf.items():
        sh = [s_ for s_ in shifts if s_[0].ch == ch and s_[0].c == c]
        h.first = max(env('H0', 50), min(s_[2] for s_ in sh) - env('HEARLY', 20)); h.last = max(s_[3] for s_ in sh)
    V_L16, V_HOFF, V_FR = 1, 2, 247
    accreg = {}
    for sl in range(3):
        for r in range(S): accreg[sl, r] = ('a', 4 * (sl * S + r))
    RV = env('RV', 1)
    vbase = 8
    abase = 96
    for sl in (3, 4):
        for r in range(S):
            if RV: accreg[sl, r] = ('v', vbase); vbase += 4
            else: accreg[sl, r] = ('a', abase); abase += 4
    vfree = [('v', x) for x in range(vbase, 253, 4) if x not in ((244, 248, 252) if FUSED else (244, 248))]
    afree = [('a', x) for x in range(abase, 253, 4)]
    vlast = {r: -1 for r in vfree}
    frags = list(X.values()) + list(Hf.values()) + list(W.values()) + list(XS.values())
    frags.sort(key=lambda f: (f.first - (env('SEARLY', 30) if f.kind == 'S' else 0), {'W': 1, 'X': 0, 'H': 2, 'S': 3}[f.kind]))
    gap = [[] for _ in range(N + 1)]
    pending = list(frags); active = []; pre = []
    TEMP_T = marks['P2_1'] - env('TEMPE', 60)
    NTEMP = env('NTEMP', 4)
    reserved = vfree[-NTEMP:]
    def alloc(f):
        if f.kind in 'WS':
            if afree: return afree.pop(0)
            return None
        for r in vfree:
            if r in reserved and f.last >= TEMP_T: continue
            vfree.remove(r); return r
        return None
    def release(upto):
        for f in list(active):
            if f.last < upto:
                active.remove(f); (afree if f.reg[0] == 'a' else vfree).append(f.reg)
    while pending and len(pre) < env('NPRE', 16):
        f = pending.pop(0); f.reg = alloc(f); f.issue = -1; pre.append(f); active.append(f)
    lastload = -100
    for i in range(1, N):
        release(i - 1)
        pace = env('PACE0', PACE) if i < env('RAMP', 0) else PACE
        if pending and (i - lastload >= pace or pending[0].first - i < env('URG', 40)):
            f = pending[0]; r = alloc(f)
            if r is not None:
                f.reg = r; f.issue = i; active.append(f); pending.pop(0); gap[i].append(('load', f)); lastload = i
            elif f.first - i < 3: raise Exception("no register for %s at %d" % (f, i))
    assert not pending
    for f in frags:
        if f.reg[0] == 'v': vlast[f.reg] = max(vlast[f.reg], f.last)
    la = [f.first - f.issue for f in frags if f.issue > 0]
    sys.stderr.write("K2 lookahead (slots): min %d p10 %d median %d\n" % (min(la), np.percentile(la, 10), np.median(la)))
    TPF = env('TPF', 0); TP = env('TP', 6); TLEAD = env('TLEAD', 90); NT0 = env('NT0', 14)
    touches = []
    if TPF:
        cand = []
        for m in range(768 // 6):
            line = 6 * m + 3
            f = X[(6 * m // 8) // (NC * S), ((6 * m // 8) // S) % NC, (6 * m // 8) % S]
            cand.append((f.issue, 'X', m * 768))
        for m in range(672 // 5):
            fi = 5 * m // 8
            f = W[fi // (NC * 7), (fi // 7) % NC, fi % 7]
            cand.append((f.issue, 'W', m * 640))
        cand.sort()
        cand = [c for c in cand if c[0] > env('TSKIP', 0)]
        pre_t = cand[:NT0]; rest = cand[NT0:]
        touches = pre_t
        i = env('T0', 40)
        while rest and i < N:
            while rest and rest[0][0] - i < TLEAD: rest.pop(0)
            if not rest: break
            gap[i].append(('touch', rest.pop(0))); i += TP
        sys.stderr.write("K2 touches: %d in prologue, %d in loop\n" % (len(pre_t), sum(1 for g in gap for x in g if x[0] == 'touch')))
    cnt = [len(g) for g in gap]
    if env('PREDW', 1):
        order_ = pre + [x[1] for g in gap for x in g if x[0] == 'load']
        posn = {id(f): k for k, f in enumerate(order_)}
        done_ = -1; nw_ = 0
        for i, (a_, xk, w_) in enumerate(ops):
            ch_, c_, rho_ = xk
            xf_ = XS[xk] if (rho_ < 0 and (ch_, c_) in SHL) else X[ch_, c_, rho_ if rho_ >= 0 else rho_ + S]
            k = max(posn[id(xf_)], posn[id(w_)])
            if k > done_:
                while k + 1 < len(order_) and order_[k + 1].issue >= 0 and order_[k + 1].issue + WLAT <= i and order_[k + 1].issue < i: k += 1
                done_ = k; cnt[i] += 1; nw_ += 1
        sys.stderr.write("K2 predicted waits: %d\n" % nw_)
    tasks = []
    slot_now = [0]
    def prewait(rs):
        rs = set(rs); idx = None; cur = slot_now[0]
        for i, d in enumerate(E.vm):
            if d & rs: idx = i
        if idx is None: return
        while idx + 1 < len(E.vm):
            sl = [t[1] for t in E.vm[idx + 1] if t[0] == 'slot']
            if sl and sl[0] >= 0 and sl[0] + WLAT <= cur: idx += 1
            else: break
        E.wait(len(E.vm) - 1 - idx, None)
    def mk_shift(f, n):
        h = Hf[f.ch, f.c]
        ins = []
        if env('NODPP', 0): return [lambda: None]
        for d in range(4):
            def mv(d=d):
                r = f.reg[1] + d; prewait(V(r))
                va("v_mov_b32_dpp v%d, v%d row_shr:1 row_mask:0xf bank_mask:0xf" % (r, r), V(r), [], dpp=V(r))
            ins.append(mv)
        for d in range(4):
            def cm(d=d):
                r = f.reg[1] + d; hr = h.reg[1] + d; k = 6 - n
                prewait(V(hr))
                if k > 0: va("v_cndmask_b32_dpp v%d, v%d, v%d, vcc row_shl:%d row_mask:0xf bank_mask:0xf" % (r, hr, r, k), V(r), V(r), dpp=V(hr))
                else: va("v_cndmask_b32 v%d, v%d, v%d, vcc" % (r, hr, r), V(r), V(r) + V(hr))
            ins.append(cm)
        return ins
    for f, n, lo, hi in shifts:
        h = Hf[f.ch, f.c]
        lo2 = max(lo + 1, min(h.issue + env('HLAT', 60), hi - 20) if h.issue > 0 else 0)
        tasks.append(Task('sh', mk_shift(f, n), lo2, hi - 3))
    PL = 32768; STG = 3 * PL; LDS = STG + 4 * 16384
    tmp = [r[1] for r in reserved]
    late = sorted([r[1] for r, l in vlast.items() if r not in reserved and l < marks['F'] + 2])
    a0, a1 = 244, 248
    AT = 4
    V_WP, V_WR, V_IR, V_SW = a0, a0 + 1, a0 + 2, a0 + 3
    assert env('DST', 1)
    V_SW = 240
    V_SR, V_O0, V_O1, V_SH = a1, a1 + 1, a1 + 2, a1 + 3
    V_SR = 241
    sc = [236 + i for i in range(8)]
    PT = [tmp[0], tmp[1], tmp[2], tmp[3]]
    setup = []
    MK = 64 if STAMP else 70
    def S_(fn): setup.append(fn)
    t0, t1, t2, t3, t4, t5, t6, t7 = sc
    vv = lambda t, d, s_: S_(lambda: va(t, d, s_))
    ss = lambda t: S_(lambda: e(t))
    vv("v_and_b32 v%d, 15, v0" % t1, V(t1), V(0))
    vv("v_lshrrev_b32 v%d, 4, v0" % t2, V(t2), V(0))
    vv("v_lshlrev_b32 v%d, 10, v%d" % (t3, t2), V(t3), V(t2))
    vv("v_lshl_add_u32 v%d, v%d, 4, v%d" % (t3, t1, t3), V(t3), V(t1) + V(t3))
    ss("s_lshr_b32 s33, s24, 1"); ss("s_mul_i32 s33, s33, %d" % PL); ss("s_and_b32 s34, s24, 1"); ss("s_lshl_b32 s34, s34, 3"); ss("s_add_u32 s33, s33, s34")
    vv("v_add_u32 v%d, s33, v%d" % (V_WP, t3), V(V_WP), V(t3))
    vv("v_xor_b32 v%d, s24, v%d" % (t4, t2), V(t4), V(t2))
    vv("v_lshl_add_u32 v%d, v%d, 2, v%d" % (t4, t4, t3), V(t4), V(t4) + V(t3))
    vv("v_add_u32 v%d, %d, v%d" % (V_WR, 2 * PL, t4), V(V_WR), V(t4))
    vv("v_min_u32 v%d, 2, v%d" % (t3, t2), V(t3), V(t2))
    vv("v_lshlrev_b32 v%d, 15, v%d" % (t3, t3), V(t3), V(t3))
    vv("v_lshl_add_u32 v%d, v%d, 4, v%d" % (t3, t1, t3), V(t3), V(t1) + V(t3))
    ss("s_lshl_b32 s33, s24, 10")
    vv("v_add_u32 v%d, s33, v%d" % (V_IR, t3), V(V_IR), V(t3))
    ss("s_lshl_b32 s33, s24, 14"); ss("s_add_u32 s33, s33, %d" % STG)
    vv("v_and_b32 v%d, 15, v0" % t1, V(t1), V(0))
    vv("v_lshrrev_b32 v%d, 1, v%d" % (t3, t2), V(t3), V(t2))
    vv("v_lshl_add_u32 v%d, v%d, 1, v%d" % (t3, t1, t3), V(t3), V(t1) + V(t3))
    vv("v_bfe_u32 v%d, v%d, 2, 1" % (t4, t1), V(t4), V(t1))
    vv("v_xor_b32 v%d, v%d, v%d" % (t3, t3, t4), V(t3), V(t3) + V(t4))
    vv("v_and_b32 v%d, 1, v%d" % (t4, t2), V(t4), V(t2))
    vv("v_lshlrev_b32 v%d, %d, v%d" % (t4, 9 if env('B128', 1) else 3, t4), V(t4), V(t4))
    vv("v_lshl_add_u32 v%d, v%d, 4, v%d" % (t3, t3, t4), V(t3), V(t3) + V(t4))
    vv("v_add_u32 v%d, s33, v%d" % (V_SW, t3), V(V_SW), V(t3))
    vv("v_bfe_u32 v%d, v0, 3, 1" % t4, V(t4), V(0))
    vv("v_xor_b32 v%d, v0, v%d" % (t4, t4), V(t4), V(0) + V(t4))
    vv("v_lshl_add_u32 v%d, v%d, 4, s33" % (V_SR, t4), V(V_SR), V(t4))
    if env('DST', 1):
        vv("v_bfe_u32 v%d, v0, 4, 1" % t0, V(t0), V(0))
        vv("v_and_b32 v%d, 15, v0" % t1, V(t1), V(0))
        vv("v_lshrrev_b32 v%d, 5, v0" % t2, V(t2), V(0))
    else:
        vv("v_lshrrev_b32 v%d, 5, v0" % t0, V(t0), V(0))
        vv("v_bfe_u32 v%d, v0, 1, 4" % t1, V(t1), V(0))
        vv("v_and_b32 v%d, 1, v0" % t2, V(t2), V(0))
    ss("s_mov_b32 s38, 224"); ss("s_mov_b32 s35, 2260"); ss("s_mov_b32 s37, 192")
    for p in range(2):
        o = V_O0 + p
        ss("s_lshl_b32 s33, s27, 4"); ss("s_lshl_b32 s34, s24, 2"); ss("s_add_u32 s33, s33, s34"); ss("s_add_u32 s33, s33, %d" % (2 * p))
        vv("v_add_u32 v%d, s33, v%d" % (t3, t0), V(t3), V(t0))
        vv("v_mul_u32_u24 v%d, s35, v%d" % (t4, t3), V(t4), V(t3))
        vv("v_lshrrev_b32 v%d, 16, v%d" % (t4, t4), V(t4), V(t4))
        vv("v_mul_u32_u24 v%d, 29, v%d" % (t5, t4), V(t5), V(t4))
        vv("v_sub_u32 v%d, v%d, v%d" % (t5, t3, t5), V(t5), V(t3) + V(t5))
        vv("v_mul_u32_u24 v%d, 10, v%d" % (t6, t4), V(t6), V(t4))
        vv("v_add_u32 v%d, v%d, v%d" % (t6, t6, t1), V(t6), V(t6) + V(t1))
        vv("v_subrev_u32 v%d, 1, v%d" % (t7, t5), V(t7), V(t5))
        vv("v_mul_u32_u24 v%d, %d, v%d" % (t7, 8 * 224, t7), V(t7), V(t7))
        vv("v_add_u32 v%d, v%d, v%d" % (t7, t7, t6), V(t7), V(t7) + V(t6))
        vv("v_mul_lo_u32 v%d, v%d, s37" % (t7, t7), V(t7), V(t7))
        vv("v_lshl_add_u32 v%d, v%d, 4, v%d" % (t7, t2, t7), V(t7), V(t7) + V(t2))
        ss("s_lshl_b32 s34, s28, 5")
        vv("v_add_u32 v%d, s34, v%d" % (t7, t7), V(t7), V(t7))
        vv("v_cmp_ne_u32 s[%d:%d], 0, v%d" % (MK, MK + 1, t5), [], V(t5))
        vv("v_cmp_gt_u32 s[%d:%d], 10, v%d" % (MK + 2, MK + 3, t1), [], V(t1))
        vv("v_cmp_gt_u32 s[%d:%d], s38, v%d" % (MK + 4, MK + 5, t6), [], V(t6))
        vv("v_mov_b32 v%d, 0x7fffffff" % t3, V(t3), [])
        S_(lambda: E.nop(3))
        ss("s_and_b64 s[%d:%d], s[%d:%d], s[%d:%d]" % (MK, MK + 1, MK, MK + 1, MK + 2, MK + 3)); ss("s_and_b64 s[%d:%d], s[%d:%d], s[%d:%d]" % (MK, MK + 1, MK, MK + 1, MK + 4, MK + 5))
        S_(lambda: E.nop(1))
        vv("v_cndmask_b32 v%d, v%d, v%d, s[%d:%d]" % (o, t3, t7, MK, MK + 1), V(o), V(t3) + V(t7))
    ss("s_cmp_eq_u32 s27, 0"); ss("s_cselect_b32 s33, 0, %d" % XREG)
    vv("v_and_b32 v%d, 15, v0" % t3, V(t3), V(0))
    vv("v_add_u32 v%d, -1, v%d" % (t3, t3), V(t3), V(t3))
    vv("v_lshrrev_b32 v%d, 2, v%d" % (t4, t3), V(t4), V(t3))
    vv("v_lshlrev_b32 v%d, 8, v%d" % (t4, t4), V(t4), V(t4))
    vv("v_and_b32 v%d, 3, v%d" % (t3, t3), V(t3), V(t3))
    vv("v_lshl_add_u32 v%d, v%d, 4, v%d" % (t3, t3, t4), V(t3), V(t3) + V(t4))
    vv("v_lshrrev_b32 v%d, 4, v0" % t4, V(t4), V(0))
    vv("v_lshlrev_b32 v%d, 6, v%d" % (t4, t4), V(t4), V(t4))
    vv("v_add3_u32 v%d, v%d, v%d, s33" % (t3, t3, t4), V(t3), V(t3) + V(t4))
    vv("v_add_u32 v%d, 816, v%d" % (t4, t4), V(t4), V(t4))
    vv("v_cndmask_b32 v%d, v%d, v%d, vcc" % (V_SH, t4, t3), V(V_SH), V(t4) + V(t3))
    ss("s_mov_b32 s6, %d" % XBYTES); ss("s_mov_b32 s7, 0x00020000"); ss("s_and_b32 s5, s5, 0xffff")
    mreg = 64 if STAMP else 94
    ss("s_mov_b32 s%d, 0x03ff03ff" % mreg); ss("s_mov_b32 s%d, 0x03ff03ff" % (mreg + 1))
    T_setup = Task('setup', [], 0, 0); T_setup.done_at = 0
    T_pp = {}
    prev = T_setup
    for r in range(S - 1, -1, -1):
        rd = {}; cv = {}; wr = {}
        for j in range(4):
            t = PT[j]
            rd[j] = [(lambda t=t, sl=sl, ar=accreg[sl, r][1] + j: va("v_accvgpr_read_b32 v%d, a%d" % (t + sl, ar), V(t + sl), A(ar))) for sl in range(3)]
            cv[j] = [lambda t=t: va("v_cvt_pk_bf16_f32 v%d, v%d, v%d" % (t, t, t + 1), V(t), V(t, 2)), lambda t=t: va("v_cvt_pk_bf16_f32 v%d, v%d, 0" % (t + 1, t + 2), V(t + 1), V(t + 2))]
            wr[j] = [lambda t=t, j=j, r=r: E.dswrite("ds_write_b64 v%d, v[%d:%d] offset:%d" % (V_WP, t, t + 1, (r * 16 + j) * 256), V(t, 2), V(V_WP))]
        ins = rd[0] + rd[1] + cv[0] + rd[2] + wr[0] + cv[1] + rd[3] + wr[1] + cv[2] + cv[3] + wr[2] + wr[3]
        lo = max(acc_last[sl, r] for sl in range(3)) + 6
        T_pp[r] = Task('pp%d' % r, ins, lo, step_end[r] + 4, [prev]); prev = T_pp[r]; tasks.append(T_pp[r])
    RT = late[0:2]
    order = list(range(S - 1, -1, -1))
    T_rp = {}
    for si, r in enumerate(order):
        se = step_end[r]
        ins = []
        for j in range(4):
            t = RT[si % 2] + j
            r1 = accreg[3, r][1] + j; r2 = accreg[4, r][1] + j
            ins.append(lambda t=t, r1=r1, r2=r2: va("v_cvt_pk_bf16_f32 v%d, v%d, v%d" % (t, r1, r2), V(t), V(r1) + V(r2)))
        for j in range(4):
            t = RT[si % 2] + j
            ins.append(lambda t=t, j=j, r=r: E.dswrite("ds_write_b32 v%d, v%d offset:%d" % (V_WR, t, (r * 16 + j) * 256), V(t), V(V_WR), tok=('rp', r)))
        T_rp[r] = Task('rp%d' % r, ins, se + 4, se + 10, [T_pp[r]])
        tasks.append(T_rp[r])
    B128 = env('B128', 1)
    lateA = [x for x in late if x not in RT]
    def inv_seq(rows, AFp, DIp, OUTp):
        na, nd, no = len(AFp) // 4, len(DIp) // 4, len(OUTp) // 2
        def reads(si):
            r = rows[si]
            return [lambda a=a, r=r, f=AFp[4 * (si % na) + a]: E.dsread("ds_read_b128 v[%d:%d], v%d offset:%d" % (f, f + 3, V_IR, (r * 16 + a) * 256), V(f, 4), V(V_IR)) for a in range(4)]
        def mm(si):
            return [lambda a=a: E.mfma(('v', DIp[4 * (si % nd) + a]), ('v', AFp[4 * (si % na) + a]), ('v', AT), None) for a in range(4)]
        def cw(si):
            r = rows[si]; ins = []
            D = [DIp[4 * (si % nd) + a] for a in range(4)]
            if not B128:
                for a in range(4):
                    d = D[a]
                    ins.append(lambda d=d: va("v_cvt_pk_bf16_f32 v%d, v%d, v%d" % (d, d, d + 1), V(d), V(d, 2)))
                    ins.append(lambda d=d: va("v_cvt_pk_bf16_f32 v%d, v%d, v%d" % (d + 1, d + 2, d + 3), V(d + 1), V(d + 2, 2)))
            if B128:
                for p in range(2):
                    d0 = D[2 * p]
                    ins.append(lambda d0=d0: va("v_cvt_pk_bf16_f32 v%d, v%d, v%d" % (d0, d0, d0 + 1), V(d0), V(d0, 2)))
                    ins.append(lambda d0=d0: va("v_cvt_pk_bf16_f32 v%d, v%d, v%d" % (d0 + 1, d0 + 2, d0 + 3), V(d0 + 1), V(d0 + 2, 2)))
                for p in range(2):
                    d0, d1 = D[2 * p], D[2 * p + 1]
                    ins.append(lambda d0=d0, d1=d1: va("v_cvt_pk_bf16_f32 v%d, v%d, v%d" % (d0 + 2, d1, d1 + 1), V(d0 + 2), V(d1, 2)))
                    ins.append(lambda d0=d0, d1=d1: va("v_cvt_pk_bf16_f32 v%d, v%d, v%d" % (d0 + 3, d1 + 2, d1 + 3), V(d0 + 3), V(d1 + 2, 2)))
                for p in range(2):
                    d0 = D[2 * p]
                    ins.append(lambda d0=d0: va("v_permlane16_swap_b32 v%d, v%d" % (d0, d0 + 2), V(d0) + V(d0 + 2), V(d0) + V(d0 + 2), perm=True))
                    ins.append(lambda d0=d0: va("v_permlane16_swap_b32 v%d, v%d" % (d0 + 1, d0 + 3), V(d0 + 1) + V(d0 + 3), V(d0 + 1) + V(d0 + 3), perm=True))
                if env('DST', 1):
                    def both(r=r, D=D):
                        e("s_mov_b32 s33, %d" % (r * ROWB))
                        E._need(V(D[0], 4) + V(D[2], 4))
                        E._pad(max(E._dist(V(D[0], 4) + V(D[2], 4), {'mfma': 8}), 0))
                        if env('XM', 1): e("s_mov_b64 exec, s[94:95]" if not STAMP else "s_mov_b64 exec, s[64:65]")
                        for p in range(2):
                            d0 = D[2 * p]
                            if env('NOOUT', 0) == 1 or (env('NOOUT', 0) == 2 and p): continue
                            E.vstore("buffer_store_dwordx4 v[%d:%d], v%d, s[4:7], s33 offen%s" % (d0, d0 + 3, V_O0 + p, env('OSF', '')), V(d0, 4), V(V_O0 + p))
                        if env('XM', 1): e("s_mov_b64 exec, -1")
                        if str(r) in env('WB', '').split(','):
                            e("s_lshl_b32 s34, s2, 2"); e("s_add_u32 s34, s34, s24")
                            e("s_cmp_ge_u32 s34, %d" % env('WBN', 32)); e("s_cbranch_scc1 K2_nowb%d" % r)
                            e("s_cmp_lg_u32 s24, 0"); e("s_cbranch_scc1 K2_nowb%d" % r)
                            e("buffer_wbl2 sc1")
                            E.label("K2_nowb%d" % r)
                    ins.append(both)
                    return ins
                for p in range(2):
                    d0 = D[2 * p]
                    ins.append(lambda d0=d0, p=p, r=r: E.dswrite("ds_write_b128 v%d, v[%d:%d] offset:%d" % (V_SW, d0, d0 + 3, (r * 4 + 2 * p) * 512), V(d0, 4), V(V_SW)))
            else:
                for a in range(4):
                    d = D[a]
                    ins.append(lambda d=d, a=a, r=r: E.dswrite("ds_write_b64 v%d, v[%d:%d] offset:%d" % (V_SW, d, d + 1, (r * 4 + a) * 512), V(d, 2), V(V_SW)))
            for p in range(2):
                o = OUTp[2 * (si % no) + p]
                ins.append(lambda o=o, p=p, r=r: E.dsread("ds_read_b128 v[%d:%d], v%d offset:%d" % (o, o + 3, V_SR, (r * 4 + 2 * p) * 512), V(o, 4), V(V_SR)))
            return ins
        def st(si):
            if env('DST', 1): return []
            r = rows[si]; ins = [lambda r=r: e("s_mov_b32 s33, %d" % (r * ROWB))]
            for p in range(2):
                o = OUTp[2 * (si % no) + p]
                if env('NOOUT', 0): continue
                ins.append(lambda o=o, p=p: E.vstore("buffer_store_dwordx4 v[%d:%d], v%d, s[4:7], s33 offen%s" % (o, o + 3, V_O0 + p, env('OSF', '')), V(o, 4), V(V_O0 + p)))
            return ins
        n = len(rows); seq = []
        head = []
        for si in range(min(na, n)): head += reads(si)
        for si in range(n + 2):
            if si < n: seq += mm(si)
            if si + na < n: seq += reads(si + na)
            if no == 1 and 0 <= si - 2 < n: seq += st(si - 2)
            if 0 <= si - 1 < n: seq += cw(si - 1)
            if no > 1 and 0 <= si - 2 < n: seq += st(si - 2)
        return head, seq
    NA = env('NA', 4 if FIN == 1 else 7)
    rowsA = order[:NA]; rowsB = order[NA:]
    T_A = None
    if NA and FIN == 1:
        assert len(lateA) >= 16, lateA
        hA, sA = inv_seq(rowsA, lateA[0:8], lateA[8:16], [lateA[16], lateA[17]] if len(lateA) >= 18 else [0, 0])
        def barA(): E._need([('rp', rowsA[-1])]); E.barrier()
        T_barA = Task('barA', [barA], 0, step_end[rowsA[-1]] + 12, [(T_rp[rowsA[-1]], env('LBA', 4))])
        T_A = Task('invA', hA + sA, 0, N + 500, [T_barA])
        tasks += [T_barA, T_A]
    if NA and FIN == 2:
        assert len(lateA) >= 16, lateA
        AF2 = lateA[0:8]; DI2 = lateA[8:16]
        L1, L2, L3 = env('L1', 4), env('L2', 7), env('L3', 3)
        pb = None; pm = {}; pc = {}
        for si, r in enumerate(rowsA):
            se = step_end[r]
            def bar(r=r):
                if env('NOBAR', 0) in (1, 2):
                    if env('NOBAR', 0) == 2: E._need([('rp', r)])
                    return
                E._need([('rp', r)]); E.barrier()
            tb_ = Task('bar%d' % r, [bar], 0, se + 12, [(T_rp[r], L1)] + ([pb] if pb else []))
            pb = tb_
            af = AF2[4 * (si % 2):4 * (si % 2) + 4]; di = DI2[4 * (si % 2):4 * (si % 2) + 4]
            h_, s_ = inv_seq([r], af, di, [0, 0])
            mms, rest = s_[:4], s_[4:]
            t1_ = Task('rd%d' % r, h_, 0, se + 16, [tb_] + ([pm[si - 2]] if si >= 2 else []))
            t2_ = Task('mm%d' % r, mms, 0, se + 26, [(t1_, L2)] + ([pc[si - 2]] if si >= 2 else []))
            t3_ = Task('cw%d' % r, rest, 0, se + 40, [(t2_, L3)])
            pm[si] = t2_; pc[si] = t3_
            tasks += [tb_, t1_, t2_, t3_]
    def final():
        used = set(lateA[:18]) if NA else set()
        pool = sorted(set([accreg[sl, r][1] for sl in (3, 4) for r in rowsA] + [r_[1] for r_ in vlast.keys() if r_ not in reserved]) - set(RT) - used)
        nb = len(rowsB)
        hB, sB = inv_seq(rowsB, pool[0:4 * min(nb, 4)], pool[16:24], pool[24:28])
        E.wait(None, 0)
        if STAMP == 3: e("s_memtime s[72:73]")
        E.barrier()
        if STAMP == 3: e("s_memtime s[74:75]")
        for f in hB: f()
        if T_A is not None:
            for f in T_A.rest: f()
        for x in deferred:
            for f in x: f()
        if STAMP == 3: e("s_memtime s[84:85]")
        for k_, f in enumerate(sB):
            f()
            if STAMP == 3 and k_ == len(sB) // 2: e("s_memtime s[86:87]")
    deferred = []
    def budget(i):
        if i >= marks['F']: return env('BF', 3)
        if i >= TEMP_T: return env('BP', 2)
        return 1
    MAXF = env('MAXF', 2)
    delay = {}
    for i in range(1, N + 1):
        k = 0
        while True:
            avail = [x for x in tasks if x.ins and (x.lo <= i or i == N) and all(d.done_at is not None and (i == N or i >= d.done_at + lg) for d, lg in x.deps)]
            if not avail: break
            avail.sort(key=lambda x: x.hi)
            if i < N:
                b = budget(i) - cnt[i]
                urgent = False
                if b <= k:
                    if k >= max(MAXF, budget(i)) - cnt[i]: break
                    tot = 0
                    for y in sorted([x for x in tasks if x.ins and x.lo <= i + 40 and x.name == 'sh'], key=lambda x: x.hi):
                        tot += len(y.ins)
                        cap = sum(1 for g in range(i + 1, min(y.hi + 1, N)) if cnt[g] == 0)
                        if tot - 1 > cap * env('URGF', 0.9): urgent = True; break
                    if not urgent: break
            x = avail[0]
            if i == N and x.name == 'invA':
                x.rest = list(x.ins); x.ins = []; x.done_at = i; continue
            if i == N and x.name[:2] in ('mm', 'cw'):
                deferred.append(list(x.ins)); x.ins = []; x.done_at = i; continue
            if x.name == 'sh': assert i <= x.hi, ("shift late", i, x.hi)
            gap[i].append(('ins', x.ins.pop(0), x.name)); k += 1
            if not x.ins: x.done_at = i
        cnt[i] += k
    if T_A is not None and not hasattr(T_A, 'rest'): T_A.rest = []
    assert all(not x.ins for x in tasks), [x.name for x in tasks if x.ins]
    sys.stderr.write("K2 tail after last MFMA: %d instr; done: %s\n" % (len(gap[N]), " ".join("%s@%d" % (x.name, x.done_at - marks['F']) for x in tasks if x.name[:2] in ('pp', 'ba', 'cw'))))
    KN = "FU" if FUSED else "K2"
    FST = env('FSTAMP', 0)
    fs_regs = {1: 88, 2: 90, 3: 92, 4: 96, 5: 98, 6: 82}
    def fs2(n): e("s_memrealtime s[%d:%d]" % (fs_regs[n], fs_regs[n] + 1))
    G['fs2'] = fs2
    def fstamp(n):
        if env('FS2', 0) and n in (3, 4, 5): return
        if FST and n in fs_regs: e("s_memrealtime s[%d:%d]" % (fs_regs[n], fs_regs[n] + 1))
    if FUSED:
        import pagen
        G['fstamp'] = (lambda n: fstamp(n) if n < 3 else None)
        e("s_load_dwordx4 s[84:87], s[0:1], 0" if not FST else "s_load_dwordx4 s[84:87], s[0:1], 0")
        e("s_load_dwordx4 s[4:7], s[0:1], 16")
        e("s_load_dwordx2 s[8:9], s[0:1], 32")
        if FST: e("s_memrealtime s[100:101]")
        e("s_getpc_b64 s[10:11]")
        E.label("FU_pc")
        e("s_cmp_ge_u32 s2, 256"); e("s_cbranch_scc1 K2_end")
        va("v_lshrrev_b32 v3, 6, v0", V(3), V(0))
        va("v_and_b32 v0, 63, v0", V(0), V(0))
        E.nop(1)
        e("v_readfirstlane_b32 s24, v3")
        pagen.phase_a(E, G)
        E.label("FU_pb")
        E.vm = []; E.lg = []; E.w = {}; E.mc = {}; E.sd = {}
        e("s_waitcnt lgkmcnt(0)")
        e("s_mov_b32 s88, s60"); e("s_mov_b32 s89, s61")
        e("s_mov_b64 s[92:93], s[10:11]")
        e("s_lshr_b32 s90, s2, 3"); e("s_lshl_b32 s90, s90, 2"); e("s_add_u32 s90, s90, s24"); e("s_lshl_b32 s90, s90, 7")
        e("s_mov_b32 s84, s8"); e("s_and_b32 s85, s9, 0xffff"); e("s_mov_b32 s86, %d" % XF_SIZE); e("s_mov_b32 s87, 0x00020000")
        if env('BPF1', 0):
            e("s_add_u32 s33, s90, FU_pb-FU_pc+16384"); e("s_min_u32 s33, s33, K2_code_end-FU_pc-4"); e("s_load_dword s99, s[92:93], s33")
        if env('CPF', 1):
            e("s_cmp_ge_u32 s2, 8"); e("s_cbranch_scc1 K2_nocpf")
            e("s_lshl_b32 s33, s24, 13")
            va("v_lshlrev_b32 v4, 7, v0", V(4), V(0))
            va("v_add_u32 v4, s33, v4", V(4), V(4))
            va("v_min_u32 v4, K2_code_end-FU_pc-4, v4", V(4), V(4))
            E.vload("global_load_dword v72, v4, s[10:11]", V(72), V(4))
            E.label("K2_nocpf")
            E.vm = []
    else:
        e("s_load_dwordx2 s[8:9], s[0:1], 32")
        e("s_load_dwordx2 s[4:5], s[0:1], 16")
        if STAMP: e("s_memtime s[70:71]"); e("s_memrealtime s[80:81]")
        e("s_getpc_b64 s[10:11]")
        E.label("K2_pc")
        e("s_cmp_ge_u32 s2, 256"); e("s_cbranch_scc1 K2_end")
        va("v_lshrrev_b32 v3, 6, v0", V(3), V(0))
        if env('CPF', 1):
            va("v_lshlrev_b32 v4, 7, v0", V(4), V(0))
            va("v_min_u32 v4, K2_code_end-K2_pc-4, v4", V(4), V(4))
        va("v_and_b32 v0, 63, v0", V(0), V(0))
        E.nop(1)
        e("v_readfirstlane_b32 s24, v3")
        if env('CPF', 1):
            e("s_cmp_ge_u32 s2, 8"); e("s_cbranch_scc1 K2_nocpf")
            E.vload("global_load_dword v255, v4, s[10:11]", V(255), V(4))
            E.label("K2_nocpf")
    FL_OFF = G.get('FL_OFF', 0)
    nsig = [0]
    def signal12(plane=6144, tv=(10, 11), srcs=(78, 79)):
        for o in srcs:
            e("s_cmp_eq_u32 s%d, 0" % o); e("s_cbranch_scc1 FU_nosig%d_%d" % (nsig[0], o))
            e("s_add_u32 s33, s%d, %d" % (o, plane))
            e("v_mov_b32 v%d, s33" % tv[0]); e("v_mov_b32 v%d, s82" % tv[1])
            e("s_mov_b64 exec, 1")
            e("global_atomic_swap v%d, v%d, s[8:9] sc1" % tv)
            e("s_mov_b64 exec, -1")
            E.label("FU_nosig%d_%d" % (nsig[0], o))
        nsig[0] += 1
    def signal1(tv):
        e("s_cmp_eq_u32 s80, 3"); e("s_cselect_b32 s80, 0, s78")
        signal12(6144, tv, (80, 81))
    e("s_and_b32 s25, s2, 7"); e("s_lshr_b32 s26, s2, 3")
    e("s_mul_i32 s27, s26, 43"); e("s_lshr_b32 s27, s27, 8"); e("s_mul_i32 s28, s27, 6"); e("s_sub_u32 s28, s26, s28")
    e("s_lshl_b32 s27, s27, 3"); e("s_add_u32 s27, s27, s25")
    e("s_cmp_lt_u32 s26, 30"); e("s_cbranch_scc1 K2_map")
    e("s_lshl_b32 s29, s25, 1"); e("s_add_u32 s29, s29, s26"); e("s_sub_u32 s29, s29, 30")
    e("s_mul_i32 s27, s29, 43"); e("s_lshr_b32 s27, s27, 8"); e("s_mul_i32 s28, s27, 6"); e("s_sub_u32 s28, s29, s28"); e("s_add_u32 s27, s27, 40")
    E.label("K2_map")
    e("s_cmp_ge_u32 s27, %d" % NREG); e("s_cbranch_scc1 %s" % ("FU_idle" if FUSED else "K2_end"))
    va("v_lshlrev_b32 v%d, 4, v0" % V_L16, V(V_L16), V(0))
    va("v_and_b32 v3, 15, v0", V(3), V(0))
    va("v_cmp_ne_u32 vcc, 0, v3", [], V(3))
    va("v_lshrrev_b32 v4, 4, v0", V(4), V(0))
    va("v_lshlrev_b32 v4, 6, v4", V(4), V(4))
    va("v_lshrrev_b32 v5, 2, v3", V(5), V(3))
    va("v_lshl_add_u32 v5, v5, 8, v4", V(5), V(5) + V(4))
    va("v_and_b32 v6, 3, v0", V(6), V(0))
    va("v_lshl_add_u32 v%d, v6, 4, v5" % V_FR, V(V_FR), V(5) + V(6))
    va("v_min_u32 v3, 5, v3", V(3), V(3))
    va("v_add_u32 v3, %d, v3" % (S - 6), V(3), V(3))
    va("v_lshlrev_b32 v3, 10, v3", V(3), V(3))
    va("v_add3_u32 v%d, v3, v4, s%d" % (V_HOFF, 33) if False else "v_add_u32 v3, v3, v4", V(3), V(3) + V(4))
    va("v_add_u32 v%d, 816, v3" % V_HOFF, V(V_HOFF), V(3))
    e("s_lshl_b32 s29, s27, 2"); e("s_add_u32 s29, s29, s24"); e("s_mul_i32 s29, s29, %d" % XW)
    e("s_max_u32 s30, s27, 1"); e("s_sub_u32 s30, s30, 1"); e("s_lshl_b32 s30, s30, 2"); e("s_add_u32 s30, s30, s24"); e("s_mul_i32 s30, s30, %d" % XW)
    e("s_lshl_b32 s31, s28, 2"); e("s_add_u32 s31, s31, s24"); e("s_mul_i32 s31, s31, %d" % WW); e("s_add_u32 s31, s31, %d" % WF_OFF)
    ROT = env('ROT', 0)
    if ROT:
        e("s_lshr_b32 s33, s27, 3"); e("s_add_u32 s33, s33, s28")
        if ROT == 2:
            e("s_and_b32 s32, s33, 1"); e("s_xor_b32 s36, s32, 1"); e("s_mov_b32 s39, 2")
        else:
            e("s_mul_i32 s34, s33, 86"); e("s_lshr_b32 s34, s34, 8"); e("s_mul_i32 s34, s34, 3"); e("s_sub_u32 s32, s33, s34")
            e("s_add_u32 s36, s32, 1"); e("s_cmp_eq_u32 s36, 3"); e("s_cselect_b32 s36, 0, s36")
            e("s_add_u32 s39, s36, 1"); e("s_cmp_eq_u32 s39, 3"); e("s_cselect_b32 s39, 0, s39")
    else:
        e("s_mov_b32 s32, 0"); e("s_mov_b32 s36, 1"); e("s_mov_b32 s39, 2")
    SRD = {'X': [12, 40, 44], 'W': [16, 48, 52], 'H': [20, 56, 60]}
    CH = [32, 36, 39]
    def srd_off(kind, ch):
        base = {'X': 29, 'W': 31, 'H': 30}[kind]; stride = {'X': 32768, 'W': 28672, 'H': 32768}[kind]
        sr = SRD[kind][ch]
        e("s_mul_i32 s%d, s%d, %d" % (sr + 2, CH[ch], stride)); e("s_add_u32 s%d, s%d, s%d" % (sr + 2, sr + 2, base))
    def srd_fin(kind, ch):
        sr = SRD[kind][ch]; sz = {'X': 32768, 'W': 28672, 'H': XREG + 32768}[kind]
        e("s_add_u32 s%d, s8, s%d" % (sr, sr + 2)); e("s_addc_u32 s%d, s9, 0" % (sr + 1)); e("s_and_b32 s%d, s%d, 0xffff" % (sr + 1, sr + 1))
        e("s_mov_b32 s%d, %d" % (sr + 2, sz)); e("s_mov_b32 s%d, 0x00020000" % (sr + 3))
    for kind in 'XW': srd_off(kind, 0)
    if not FUSED: e("s_waitcnt lgkmcnt(0)")
    for kind in 'XW': srd_fin(kind, 0)
    CST = [None, 25, 26, 64, 65, 66, 67, 68] if not STAMP else [None, 25, 26, 96, 97, 98, 99, 100]
    need0 = sorted(set((f.off % (32768 if f.kind != 'W' else 28672)) // 4096 for f in pre) - {0})
    for j in need0: e("s_mov_b32 s%d, %d" % (CST[j], j * 4096))
    def late_srds():
        for j in range(1, 8):
            if j not in need0: e("s_mov_b32 s%d, %d" % (CST[j], j * 4096))
        for kind, ch in [('H', 0), ('X', 1), ('W', 1), ('H', 1), ('X', 2), ('W', 2), ('H', 2)]:
            srd_off(kind, ch); srd_fin(kind, ch)
    def load(f, slot):
        if slot > 100 and ((env('SKIPW', 0) and f.kind == 'W') or (env('SKIPX', 0) and f.kind != 'W')): return
        stride = 28672 if f.kind == 'W' else 32768
        off = f.off % stride
        assert f.off // stride == f.ch
        so = off // 4096; io = off % 4096
        sreg = "0" if so == 0 else "s%d" % CST[so]
        kind = {'X': 'X', 'W': 'W', 'H': 'H', 'S': 'H'}[f.kind]
        sr = SRD[kind][f.ch]
        vo = {'X': V_FR, 'W': V_L16, 'H': V_HOFF, 'S': V_SH}[f.kind]
        E.vload("buffer_load_dwordx4 %s, v%d, s[%d:%d], %s offen offset:%d%s" % (rn(f.reg), vo, sr, sr + 3, sreg, io, env('LDW', ' sc1') if f.kind == 'W' else env('LDX', ' sc1')), regs(f.reg), V(vo), tok=('slot', slot))
    assert all(f.kind in 'XW' and f.ch == 0 for f in pre), pre
    e("s_add_u32 s10, s10, K2_at-%s_pc" % KN); e("s_addc_u32 s11, s11, 0")
    e("s_lshl_b32 s33, s24, 10")
    va("v_add_u32 v3, s33, v%d" % V_L16, V(3), V(V_L16))
    def touch(c): raise Exception('touch disabled')
    NP1 = env('NP1', 12)
    SPIN = env('SPIN', 400000)
    def poll_loads(phase, raw=False):
        ld = (lambda t, d, a: e(t)) if raw else (lambda t, d, a: E.vload(t, V(d), V(a), tok=('slot', slot_now[0])))
        if phase == 0:
            ld("global_load_dword v3, v252, s[8:9] sc1", 3, 252)
            ld("global_load_dword v8, v255, s[8:9] sc1", 8, 255)
        else:
            if raw: e("v_add_u32 v%d, %d, v252" % (252 + phase, 6144 if phase == 1 else 20480))
            ld("global_load_dword v3, v%d, s[8:9] sc1" % (252 + phase), 3, 252 + phase)
            ld("global_load_dword v%d, v255, s[8:9] offset:%d sc1" % (252 + phase, 256 * phase), 252 + phase, 255)
    def poll_test(phase, lab, raw=False):
        regs_ = [3, 8] if phase == 0 else [3, 252 + phase]
        for k_, r_ in enumerate(regs_):
            t = "v_cmp_ne_u32 s[%d:%d], s82, v%d" % (72 + 2 * k_, 73 + 2 * k_, r_)
            if raw: e(t)
            else: va(t, [], V(r_))
        e("s_nop 4")
        e("s_or_b64 s[72:73], s[72:73], s[74:75]")
        e("s_cmp_lg_u64 s[72:73], 0")
        e("s_cbranch_scc1 %s" % lab)
    if FUSED:
        E.vload("global_load_dwordx4 v[4:7], v3, s[10:11]", V(4, 4), V(3), tok=('slot', -1))
        late_srds()
        for fn in setup: fn()
        e("s_lshl_b32 s33, s27, 7"); e("s_max_u32 s34, s27, 1"); e("s_sub_u32 s34, s34, 1"); e("s_lshl_b32 s34, s34, 7")
        va("v_mov_b32 v252, s33", V(252), []); va("v_mov_b32 v253, s34", V(253), [])
        va("v_cmp_gt_u32 s[72:73], 32, v0", [], V(0)); E.nop(2)
        va("v_cndmask_b32 v252, v253, v252, s[72:73]", V(252), V(252) + V(253))
        va("v_and_b32 v253, 31, v0", V(253), V(0))
        va("v_lshl_add_u32 v252, v253, 2, v252", V(252), V(252) + V(253))
        va("v_add_u32 v252, %d, v252" % FL_OFF, V(252), V(252))
        va("v_add_u32 v253, 6144, v252", V(253), V(252))
        va("v_add_u32 v254, 20480, v252", V(254), V(252))
        va("v_min_u32 v255, 55, v0", V(255), V(0))
        va("v_lshlrev_b32 v255, 2, v255", V(255), V(255))
        e("s_and_b32 s33, s2, 7"); e("s_lshl_b32 s33, s33, 10"); e("s_add_u32 s33, s33, %d" % (FL_OFF + 12288))
        va("v_add_u32 v255, s33, v255", V(255), V(255))
        e("s_mov_b32 s33, 0")
        E.wait(0, None)
        fstamp(3)
        e("s_cmp_lg_u32 s24, 3"); e("s_cbranch_scc1 FU_sig")
        poll_loads(0, raw=True)
        e("s_waitcnt vmcnt(0)")
        poll_test(0, "FU_poll0_again", raw=True)
        E.label("FU_poll0_ok")
        E.label("FU_sig")
        signal1((12, 13))
        E.barrier()
        fstamp(4)
        for f in pre: load(f, -1)
    else:
        for f in pre[:NP1]: load(f, -1)
        late_srds()
        for fn in setup: fn()
        for f in pre[NP1:]: load(f, -1)
        E.vload("global_load_dwordx4 v[4:7], v3, s[10:11]", V(4, 4), V(3), tok=('slot', -1))
    if STAMP and STAMP != 3: e("s_memtime s[72:73]")
    if FUSED:
        for ph in (1, 2):
            first = min(f.issue for f in frags if f.ch >= ph)
            mp2 = first - 1; mp1 = max(1, mp2 - env('MPL', 80))
            def p_issue(ph=ph): poll_loads(ph)
            def p_check(ph=ph):
                E._need(V(3) + V(252 + ph))
                poll_test(ph, "FU_poll%d_again" % ph)
                E.label("FU_poll%d_ok" % ph)
                E.barrier()
            gap[mp1].append(('ins', p_issue, 'poll')); gap[mp2].insert(0, ('ins', p_check, 'poll'))
            sys.stderr.write("fused: poll %d issued at %d, checked at %d\n" % (ph, mp1, mp2))
        for n_, spec in enumerate([x for x in env('STCH', '650:K2_t1').split(',') if x]):
            sl_, lab_ = spec.split(':')
            def tch(lab_=lab_):
                if env('T64', 0): e("s_lshr_b32 s33, s90, 1"); e("s_add_u32 s33, s33, %s-FU_pc" % lab_)
                else: e("s_add_u32 s33, s90, %s-FU_pc" % lab_)
                e("s_min_u32 s33, s33, K2_code_end-FU_pc-4"); e("s_load_dword s99, s[92:93], s33")
            gap[int(sl_)].append(('ins', tch, 'tch'))
        def mklab(nm): return lambda: E.label(nm)
        gap[env('T0AT', 450)].insert(0, ('ins', mklab('K2_t0'), 'lab')); gap[env('T1AT', 780)].insert(0, ('ins', mklab('K2_t1'), 'lab'))
        D0 = env('DEF0', 110); DS_ = env('DEFS', 4)
        DR = [40, 44, 48, 52]
        seq = []
        for n_, (task, i) in enumerate([(t_, i_) for t_ in range(2) for i_ in range(4)]):
            r = DR[n_ % 4]
            def rd(r=r, task=task, i=i): E.dsread("ds_read_b128 v[%d:%d], v%d offset:%d" % (r, r + 3, 16 + i, task * 12352 + 768 * i + 128), V(r, 4), V(16 + i))
            def st_(r=r, task=task, i=i):
                e("s_add_u32 s33, s%d, %d" % (88 + task, i * XW + 2 * 32768))
                E.vstore("buffer_store_dwordx4 v[%d:%d], v11, s[84:87], s33 offen sc1" % (r, r + 3), V(r, 4), V(11), tok=('def2',))
            gap[D0 + n_ * DS_].append(('ins', rd, 'def')); gap[D0 + n_ * DS_ + 10].append(('ins', st_, 'def'))
        def sig2():
            E._need([('def2',)])
            signal12(20480, (12, 13))
        gap[D0 + 7 * DS_ + 10 + env('DEFW', 80)].append(('ins', sig2, 'def'))
    started = set()
    for i in range(N + 1):
        slot_now[0] = i
        if i == N and STAMP: e("s_memtime s[76:77]"); e("s_memrealtime s[82:83]")
        for x in gap[i]:
            if x[0] == 'load': load(x[1], i)
            elif x[0] == 'touch': touch(x[1])
            else: x[1]()
        if i == N:
            final(); break
        a, (ch, c, rho), w = ops[i]
        xf = XS[ch, c, rho] if (rho < 0 and (ch, c) in SHL) else X[ch, c, rho if rho >= 0 else rho + S]
        prewait(regs(xf.reg) + regs(w.reg))
        if STAMP:
            if i == 0 and STAMP != 3: e("s_memtime s[74:75]")
            if i == 0: e("s_memrealtime s[88:89]")
            m1, m2 = (N // 3, 2 * N // 3) if STAMP == 1 else (env('M1', 0), env('M2', 0))
            if STAMP != 3 and i == m1: e("s_memtime s[84:85]"); e("s_memrealtime s[90:91]")
            if STAMP != 3 and i == m2: e("s_memtime s[86:87]"); e("s_memrealtime s[92:93]")
        if i == 0: fstamp(5)
        E.mfma(accreg[a], xf.reg, w.reg, accreg[a] if a in started else None)
        started.add(a)
    if STAMP:
        e("s_memtime s[94:95]"); e("s_memrealtime s[66:67]"); e("s_waitcnt lgkmcnt(0)")
        e("s_add_u32 s4, s8, %d" % ST_OFF); e("s_addc_u32 s5, s9, 0"); e("s_and_b32 s5, s5, 0xffff"); e("s_mov_b32 s6, %d" % (256 * 4 * 64))
        e("s_lshl_b32 s33, s2, 2"); e("s_add_u32 s33, s33, s24"); e("s_lshl_b32 s33, s33, 6")
        for k2, sr in enumerate((70, 72, 74, 76, 80, 82, 84, 86, 88, 90, 92, 94, 66)):
            e("v_mov_b32 v6, s%d" % sr); e("v_mov_b32 v5, %d" % (4 * k2)); e("s_mov_b64 exec, 1")
            e("buffer_store_dword v6, v5, s[4:7], s33 offen"); e("s_mov_b64 exec, -1")
    if FST == 2:
        fstamp(6); e("s_waitcnt lgkmcnt(0)")
        e("s_load_dwordx2 s[4:5], s[0:1], 24"); e("s_waitcnt lgkmcnt(0)")
        e("s_lshl_b32 s34, s2, 2"); e("s_add_u32 s34, s34, s24"); e("s_mov_b32 s33, 0")
        for n_, (wg, wv) in enumerate(((37, 0), (170, 0), (170, 3))):
            e("s_cmp_eq_u32 s34, %d" % (wg * 4 + wv)); e("s_cselect_b32 s33, %d, s33" % (4 + 20 * n_))
        e("s_cmp_eq_u32 s33, 0"); e("s_cbranch_scc1 K2_end")
        for k2, kk in enumerate([2, 3, 4, 5, 6]):
            e("s_sub_u32 s34, s%d, s100" % fs_regs[kk])
            e("v_mov_b32 v6, s34"); e("v_mov_b32 v5, s33"); e("v_add_u32 v5, %d, v5" % (4 * k2)); e("s_mov_b64 exec, 1")
            e("global_store_dword v5, v6, s[4:5]"); e("s_mov_b64 exec, -1")
    elif FST:
        fstamp(6); e("s_waitcnt lgkmcnt(0)")
        e("s_add_u32 s4, s8, %d" % ST_OFF); e("s_addc_u32 s5, s9, 0"); e("s_and_b32 s5, s5, 0xffff"); e("s_mov_b32 s6, %d" % (256 * 4 * 64)); e("s_mov_b32 s7, 0x00020000")
        e("s_lshl_b32 s33, s2, 2"); e("s_add_u32 s33, s33, s24"); e("s_lshl_b32 s33, s33, 6")
        for k2, sr in enumerate([100] + [fs_regs[k_] for k_ in range(1, 7)]):
            e("v_mov_b32 v6, s%d" % sr); e("v_mov_b32 v5, %d" % (4 * k2)); e("s_mov_b64 exec, 1")
            e("buffer_store_dword v6, v5, s[4:7], s33 offen"); e("s_mov_b64 exec, -1")
    E.label("K2_end")
    e("s_endpgm")
    if FUSED:
        E.label("FU_idle")
        for task in range(2):
            for i in range(4):
                r = 72 + 16 * task + 4 * i
                e("ds_read_b128 v[%d:%d], v%d offset:%d" % (r, r + 3, 16 + i, task * 12352 + 768 * i + 128))
        e("s_waitcnt lgkmcnt(0)")
        for task in range(2):
            for i in range(4):
                r = 72 + 16 * task + 4 * i
                e("s_add_u32 s33, s%d, %d" % (88 + task, i * XW + 2 * 32768))
                e("buffer_store_dwordx4 v[%d:%d], v11, s[84:87], s33 offen sc1" % (r, r + 3))
        e("s_waitcnt vmcnt(0)")
        signal1((12, 13))
        signal12(20480)
        e("s_endpgm")
        for n_ in range(3):
            E.label("FU_poll%d_again" % n_)
            e("s_mov_b32 s34, 0")
            E.label("FU_poll%d_loop" % n_)
            e("s_add_u32 s34, s34, 1"); e("s_cmp_ge_u32 s34, %d" % SPIN); e("s_cbranch_scc1 FU_poll%d_ok" % n_)
            e("s_sleep %d" % env('PSL', 16))
            poll_loads(n_, raw=True); e("s_waitcnt vmcnt(0)")
            poll_test(n_, "FU_poll%d_loop" % n_, raw=True)
            e("s_branch FU_poll%d_ok" % n_)
        pagen.tables(E, G)
    tb = np.zeros((4, 64, 8), dtype=np.float64)
    for v in range(4):
        for l in range(64):
            n, kg = l % 16, l // 16
            if n >= cfg.m: continue
            if kg < 2:
                for ww in range(2):
                    for sl in range(3): tb[v, l, 4 * ww + sl] = cfg.ATs[2 * kg + ww, sl, n]
            elif kg == 2:
                for p in range(4):
                    ww = p ^ v
                    tb[v, l, 2 * p] = cfg.ATs[ww, 3, n]; tb[v, l, 2 * p + 1] = cfg.ATs[ww, 4, n]
    E.raw(".p2align 8"); E.label("K2_at"); E.raw(G['table'](bf16bits(tb).reshape(-1)))
    E.label("K2_code_end")
    sys.stderr.write("K2: %d MFMA main, %d instr, %d waits, %d nops\n" % (N, E.ninst, E.nwait, E.nnop))
    name = "standalone__fft_conv__vision_kernel" if FUSED else "k2_kernel"
    return G['head'](name) + E.text() + G['KD'] % (name, 512, 102, 256), LDS
```

```python
import numpy as np
from emit import *
from consts import bf16bits, bf16r

WLDS = 27008
SL1 = 12352
KS = 2080

def phase_a(E, G):
    env = G['env']; cfg = G['cfg']
    XW, XREG, XF_SIZE, WF_OFF, WF_SIZE, XBYTES, WBYTES, ROWB = [G[k] for k in 'XW XREG XF_SIZE WF_OFF WF_SIZE XBYTES WBYTES ROWB'.split()]
    SF = env('K1SF', ' sc1')
    e = E.salu
    va = lambda t, d, s_, **kw: E.valu(t, d, s_, **kw)
    st = G.get('fstamp', lambda n: None)
    e("s_and_b32 s20, s2, 7")
    e("s_lshr_b32 s21, s2, 3"); e("s_lshl_b32 s21, s21, 2"); e("s_add_u32 s21, s21, s24")
    e("s_lshr_b32 s83, s2, 3"); e("s_lshl_b32 s83, s83, 1"); e("s_add_u32 s83, s83, s24"); e("s_cmp_lt_u32 s24, 2"); e("s_cselect_b32 s83, s83, 64")
    e("s_add_u32 s22, s83, 128"); e("s_min_u32 s22, s22, 167")
    e("s_mov_b32 s80, 0")
    e("s_cmp_lt_u32 s24, 2"); e("s_cbranch_scc1 FA_noas")
    e("s_lshr_b32 s57, s2, 3"); e("s_lshl_b32 s58, s57, 1"); e("s_add_u32 s58, s58, s24"); e("s_sub_u32 s58, s58, 2")
    e("s_cmp_ge_u32 s58, 61"); e("s_cbranch_scc1 FA_noas")
    e("s_mov_b32 s80, 1")
    e("s_add_u32 s22, s58, 128"); e("s_mov_b32 s81, %d" % (SL1 - 2 * WLDS))
    e("s_cmp_lt_u32 s58, 40"); e("s_cbranch_scc1 FA_noas")
    e("s_sub_u32 s22, s21, 2"); e("s_mov_b32 s81, %d" % (-2 * WLDS))
    E.label("FA_noas")
    va("v_and_b32 v1, 3, v0", V(1), V(0))
    va("v_bfe_u32 v5, v0, 2, 1", V(5), V(0))
    e("s_sub_u32 s23, s22, s21")
    va("v_mul_u32_u24 v5, s23, v5", V(5), V(5))
    va("v_add_u32 v5, s21, v5", V(5), V(5))
    va("v_lshl_add_u32 v1, v5, 2, v1", V(1), V(1) + V(5))
    va("v_mul_u32_u24 v2, 2260, v1", V(2), V(1))
    va("v_lshrrev_b32 v2, 16, v2", V(2), V(2))
    va("v_mul_u32_u24 v3, 29, v2", V(3), V(2))
    va("v_sub_u32 v3, v1, v3", V(3), V(1) + V(3))
    va("v_min_u32 v2, 22, v2", V(2), V(2))
    va("v_lshlrev_b32 v4, 3, v3", V(4), V(3))
    va("v_add_u32 v4, 216, v4", V(4), V(4))
    va("v_subrev_u32 v5, 224, v4", V(5), V(4))
    va("v_min_u32 v4, v4, v5", V(4), V(4) + V(5))
    va("v_add_u32 v4, s20, v4", V(4), V(4))
    va("v_mul_u32_u24 v4, %d, v4" % ROWB, V(4), V(4))
    va("v_mul_u32_u24 v6, 1920, v2", V(6), V(2))
    va("v_add_u32 v7, v4, v6", V(7), V(4) + V(6))
    va("v_cmp_eq_u32 vcc, 0, v2", [], V(2))
    va("v_mov_b32 v5, %d" % ROWB, V(5), [])
    va("v_mov_b32 v6, 0", V(6), [])
    va("v_cndmask_b32 v3, v6, v5, vcc", V(3), V(5) + V(6))
    E.nop(1)
    for a in range(8): e("v_readlane_b32 s%d, v7, %d" % (40 + a, a))
    for a in range(8): e("v_readlane_b32 s%d, v3, %d" % (48 + a, a))
    for n in range(3):
        va("v_add_u32 v8, %d, v0" % (64 * n), V(8), V(0))
        va("v_mul_u32_u24 v9, 5462, v8", V(9), V(8))
        va("v_bfe_u32 v10, v9, 18, 2", V(10), V(9))
        va("v_xor_b32 v8, v8, v10", V(8), V(8) + V(10))
        va("v_lshlrev_b32 v%d, 4, v8" % (12 + n), V(12 + n), V(8))
        if n < 2:
            va("v_lshrrev_b32 v9, 16, v9", V(9), V(9))
            va("v_cmp_gt_u32 vcc, 6, v9", [], V(9))
            E.nop(2)
            va("v_cndmask_b32 v%d, 0, 1, vcc" % (16 + n), V(16 + n), [])
    e("s_mul_i32 s56, s24, %d" % WLDS)
    e("s_waitcnt lgkmcnt(0)")
    e("s_mov_b64 s[76:77], s[6:7]")
    e("s_sub_u32 s12, s84, 1152"); e("s_subb_u32 s13, s85, 0"); e("s_and_b32 s13, s13, 0xffff"); e("s_mov_b32 s14, %d" % (XBYTES + 1152)); e("s_mov_b32 s15, 0x00020000")
    def xloads(task):
        for a in range(4):
            for n in range(3):
                t = 8 + (3 * a + n) % 2
                e("s_add_u32 m0, s56, %d" % (task * SL1 + a * 3088 + n * 1024))
                if n < 2: va("v_mad_i32_i24 v%d, v%d, s%d, v%d" % (t, 16 + n, 48 + 4 * task + a, 12 + n), V(t), V(16 + n) + V(12 + n))
                else:
                    t = 14; E.nop(1)
                E.vload("buffer_load_dwordx4 v%d, s[12:15], s%d offen lds" % (t, 40 + 4 * task + a), [], V(t), tok=('x', task, a))
    e("s_or_b32 s57, s2, s24"); e("s_cmp_lg_u32 s57, 0"); e("s_cbranch_scc1 FA_nononce")
    e("s_memrealtime s[58:59]"); e("s_waitcnt lgkmcnt(0)"); e("s_or_b32 s58, s58, 1")
    va("v_mov_b32 v8, 0", V(8), []); va("v_mov_b32 v9, s58", V(9), [])
    e("s_mov_b64 exec, 1"); e("global_store_dword v8, v9, s[76:77] sc1"); e("s_mov_b64 exec, -1")
    E.label("FA_nononce")
    if env('BPF0', 0):
        e("s_lshl_b32 s57, s21, 7"); e("s_add_u32 s57, s57, FU_pb-FU_pc"); e("s_load_dword s99, s[10:11], s57")
    def first_loads():
        xloads(0)
        va("v_mov_b32 v30, 0", V(30), [])
        E.vload("global_load_dword v31, v30, s[76:77] sc1", V(31), V(30), tok=('nonce',))
    e("s_cmp_lt_u32 s83, 40"); e("s_cbranch_scc1 FA_xx")
    e("s_cmp_lt_u32 s83, 61"); e("s_cbranch_scc1 FA_xw")
    import copy
    def snap(): return copy.deepcopy((E.pos, E.w, E.mc, E.sd, E.vm, E.lg))
    def rest(s_): E.pos, E.w, E.mc, E.sd, E.vm, E.lg = copy.deepcopy(s_)
    base_state = snap()

    def xsetup():
        va("v_lshlrev_b32 v1, 3, v0", V(1), V(0))
        e("s_add_u32 s58, s10, FU_bt-FU_pc"); e("s_addc_u32 s59, s11, 0")
        E.vload("global_load_dwordx2 v[20:21], v1, s[58:59]", V(20, 2), V(1))
        va("v_lshrrev_b32 v2, 4, v0", V(2), V(0))
        va("v_and_b32 v3, 15, v0", V(3), V(0))
        va("v_lshrrev_b32 v4, 2, v3", V(4), V(3))
        va("v_and_b32 v5, 3, v0", V(5), V(0))
        va("v_lshl_add_u32 v6, v2, 2, v4", V(6), V(2) + V(4))
        va("v_mul_u32_u24 v7, 193, v5", V(7), V(5))
        va("v_mul_u32_u24 v8, 12, v6", V(8), V(6))
        va("v_add_u32 v7, v7, v8", V(7), V(7) + V(8))
        va("v_mov_b32 v10, s56", V(10), [])
        for kg in range(4):
            va("v_xor_b32 v9, %d, v2" % kg, V(9), V(2))
            va("v_add_u32 v9, v7, v9", V(9), V(7) + V(9))
            va("v_lshl_add_u32 v%d, v9, 4, v10" % (24 + kg), V(24 + kg), V(9) + V(10))
        va("v_mul_u32_u24 v7, 193, v2", V(7), V(2))
        va("v_mul_u32_u24 v8, 12, v3", V(8), V(3))
        va("v_add_u32 v7, v7, v8", V(7), V(7) + V(8))
        va("v_lshrrev_b32 v8, 2, v3", V(8), V(3))
        for kg in range(4):
            va("v_xor_b32 v9, %d, v8" % kg, V(9), V(8))
            va("v_add_u32 v9, v7, v9", V(9), V(7) + V(9))
            va("v_lshl_add_u32 v%d, v9, 4, v10" % (244 + kg), V(244 + kg), V(9) + V(10))
        va("v_lshrrev_b32 v2, 4, v0", V(2), V(0))
        va("v_bfe_u32 v3, v0, 2, 2", V(3), V(0))
        va("v_and_b32 v4, 3, v0", V(4), V(0))
        va("v_mul_u32_u24 v7, 193, v4", V(7), V(4))
        va("v_mul_u32_u24 v8, 12, v2", V(8), V(2))
        va("v_add_u32 v7, v7, v8", V(7), V(7) + V(8))
        for v in range(4):
            va("v_xor_b32 v9, %d, v3" % v, V(9), V(3))
            va("v_add_u32 v9, v7, v9", V(9), V(7) + V(9))
            va("v_lshl_add_u32 v%d, v9, 4, v10" % (16 + v), V(16 + v), V(9) + V(10))
        va("v_lshlrev_b32 v7, 13, v2", V(7), V(2))
        va("v_lshl_add_u32 v7, v3, 6, v7", V(7), V(3) + V(7))
        va("v_lshl_add_u32 v11, v4, 4, v7", V(11), V(4) + V(7))
        for task, qs in ((0, 21), (1, 22)):
            e("s_lshr_b32 s62, s%d, 2" % qs); e("s_lshl_b32 s%d, s62, 7" % (78 + task)); e("s_mul_i32 s%d, s62, %d" % (60 + task, XREG))
            e("s_lshl_b32 s62, s20, 2"); e("s_and_b32 s57, s%d, 3" % qs); e("s_add_u32 s62, s62, s57"); e("s_lshl_b32 s62, s62, 2")
            e("s_add_u32 s%d, s%d, s62" % (78 + task, 78 + task)); e("s_add_u32 s%d, s%d, %d" % (78 + task, 78 + task, G['FL_OFF']))
            e("s_lshl_b32 s62, s20, 10"); e("s_add_u32 s%d, s%d, s62" % (60 + task, 60 + task))
            e("s_and_b32 s62, s%d, 3" % qs); e("s_lshl_b32 s62, s62, 8"); e("s_add_u32 s%d, s%d, s62" % (60 + task, 60 + task))
        e("s_mov_b32 s16, s8"); e("s_and_b32 s17, s9, 0xffff"); e("s_mov_b32 s18, %d" % XF_SIZE); e("s_mov_b32 s19, 0x00020000")
    AFR = [32, 160]
    def reads(task, k):
        for kg in range(4):
            for hf in range(2):
                a = AFR[task] + 16 * k + 2 * (2 * kg + hf)
                E.dsread("ds_read_b64_tr_b16 v[%d:%d], v%d offset:%d" % (a, a + 1, 24 + kg, task * SL1 + k * 64 + 8 * hf), V(a, 2), V(24 + kg))
    def mm(task, k, d):
        for i in range(8): E.mfma16(('v', d + 4 * i), ('v', AFR[task] + 16 * k + 2 * i), ('v', 20), None)
    def pack(task, k, d):
        for kg in range(4):
            d0 = d + 8 * kg
            for i in range(4):
                va("v_cvt_pk_bf16_f32 v%d, v%d, v%d" % (d0 + i, d0 + 2 * i, d0 + 2 * i + 1), V(d0 + i), V(d0 + 2 * i, 2))
            E.dswrite("ds_write_b128 v%d, v[%d:%d] offset:%d" % (244 + kg, d0, d0 + 3, task * SL1 + k * 64), V(d0, 4), V(244 + kg))
    ring = [0]
    def out(task, k):
        base = 144 if ring[0] % 2 == 0 else 208
        ring[0] += 1
        for i in range(4):
            r = base + 4 * i
            E.dsread("ds_read_b128 v[%d:%d], v%d offset:%d" % (r, r + 3, 16 + i, task * SL1 + 768 * i + 64 * k), V(r, 4), V(16 + i))
        for i in range(4):
            r = base + 4 * i
            e("s_add_u32 s62, s%d, %d" % (60 + task, i * XW + k * 32768))
            E.vstore("buffer_store_dwordx4 v[%d:%d], v11, s[16:19], s62 offen%s" % (r, r + 3, SF), V(r, 4), V(11), tok=('st', task, k))
    def get_nonce(tag):
        E._need(V(31))
        E.nop(1)
        e("v_readfirstlane_b32 s82, v31")
        e("s_mov_b32 s57, 0")
        E.label("FA_n%s" % tag)
        e("s_cmp_lg_u32 s82, 0"); e("s_cbranch_scc1 FA_nok%s" % tag)
        e("s_add_u32 s57, s57, 1"); e("s_cmp_ge_u32 s57, %d" % env('SPIN', 400000)); e("s_cbranch_scc1 FA_nok%s" % tag)
        e("s_sleep 4")
        e("v_mov_b32 v30, 0"); e("global_load_dword v31, v30, s[76:77] sc1"); e("s_waitcnt vmcnt(0)"); e("v_readfirstlane_b32 s82, v31")
        e("s_branch FA_n%s" % tag)
        E.label("FA_nok%s" % tag)
    def signal(offs):
        for o in offs:
            va("v_mov_b32 v1, s%d" % o, V(1), [])
            va("v_mov_b32 v2, s82", V(2), [])
            e("s_mov_b64 exec, 1")
            E.vstore("global_atomic_swap v1, v2, s[8:9] sc1", V(2), V(1))
            e("s_mov_b64 exec, -1")
    first_loads()
    xsetup()
    E.wait_token(('x', 0, 3))
    st(1)
    for k in range(3): reads(0, k)
    mm(0, 0, 80); mm(0, 1, 112); pack(0, 0, 80); out(0, 0)
    mm(0, 2, 80); pack(0, 1, 112); pack(0, 2, 80)

    out(0, 1)
    get_nonce('a')
    E._need([('st', 0, 0)])
    signal([78])
    st(2)
    E.wait(None, 0); E.barrier()
    e("s_mov_b32 s81, 0" if False else "s_nop 0")
    e("s_cmp_eq_u32 s80, 0"); e("s_cbranch_scc1 FA_noassist")
    for i in range(4): va("v_add_u32 v%d, s81, v%d" % (200 + i, 16 + i), V(200 + i), V(16 + i))
    for i in range(4):
        r = 160 + 4 * i
        E.dsread("ds_read_b128 v[%d:%d], v%d offset:%d" % (r, r + 3, 200 + i, 768 * i + 64), V(r, 4), V(200 + i))
    for i in range(4):
        r = 160 + 4 * i
        e("s_add_u32 s62, s61, %d" % (i * XW + 32768))
        E.vstore("buffer_store_dwordx4 v[%d:%d], v11, s[16:19], s62 offen%s" % (r, r + 3, SF), V(r, 4), V(11))
    e("s_mov_b32 s81, s79")
    e("s_mov_b32 s79, 0"); e("s_mov_b32 s61, 0x40000000")
    e("s_branch FU_pb")
    E.label("FA_noassist")
    e("s_mov_b32 s81, 0")
    e("s_mov_b32 s79, 0"); e("s_mov_b32 s61, 0x40000000")
    e("s_branch FU_pb")
    E.label("FA_xx"); rest(base_state); ring[0] = 0
    first_loads()
    xloads(1)
    xsetup()
    E.wait_token(('x', 0, 3))
    st(1)
    for k in range(3): reads(0, k)
    mm(0, 0, 80); mm(0, 1, 112); pack(0, 0, 80); out(0, 0)
    if env('FS2', 0): G['fs2'](3)
    E.wait_token(('x', 1, 3))
    for k in range(3): reads(1, k)
    mm(1, 0, 80); pack(0, 1, 112); pack(1, 0, 80); out(1, 0)
    mm(1, 1, 112); mm(0, 2, 80); pack(1, 1, 112)
    E.wait(None, 0); E.barrier()
    out(0, 1)
    get_nonce('b')
    E._need([('st', 0, 0)])
    signal([78])
    pack(0, 2, 80); mm(1, 2, 112); pack(1, 2, 112)
    E._need([('st', 1, 0)])
    signal([79])
    st(2)
    e("s_mov_b32 s80, 2"); e("s_mov_b32 s81, 0")
    e("s_branch FU_pb")
    E.label("FA_xw"); rest(base_state); ring[0] = 0
    e("s_mul_i32 s63, s20, 21"); e("s_add_u32 s63, s63, s83"); e("s_sub_u32 s63, s63, 40")
    e("s_and_b32 s64, s63, 1")
    e("s_lshr_b32 s63, s63, 1")
    e("s_and_b32 s65, s63, 3")
    e("s_lshr_b32 s63, s63, 2")
    e("s_mul_i32 s66, s63, 86"); e("s_lshr_b32 s66, s66, 8")
    e("s_mul_i32 s67, s66, 3"); e("s_sub_u32 s67, s63, s67")
    va("v_lshlrev_b32 v22, 4, v0", V(22), V(0))
    va("v_add_u32 v23, 1024, v22", V(23), V(22))
    e("s_mul_i32 s68, s66, %d" % (7 * 18432))
    e("s_mul_i32 s69, s67, %d" % (32 * 192)); e("s_add_u32 s68, s68, s69")
    e("s_mul_i32 s69, s65, %d" % (8 * 192)); e("s_add_u32 s68, s68, s69")
    e("s_mov_b32 s72, s86"); e("s_and_b32 s73, s87, 0xffff"); e("s_mov_b32 s74, %d" % WBYTES); e("s_mov_b32 s75, 0x00020000")
    for kw in range(7):
        for hf in range(2):
            e("s_add_u32 m0, s56, %d" % (SL1 + kw * KS + hf * 1024))
            e("s_add_u32 s69, s68, %d" % (kw * 18432))
            E.vload("buffer_load_dwordx4 v%d, s[72:75], s69 offen lds" % (22 + hf), [], V(22 + hf), tok=('w', kw, hf))
    va("v_lshlrev_b32 v2, 3, v0", V(2), V(0))
    e("s_add_u32 s58, s10, FU_gt-FU_pc"); e("s_addc_u32 s59, s11, 0")
    E.vload("global_load_dwordx2 v[22:23], v2, s[58:59]", V(22, 2), V(2))
    first_loads()
    xsetup()
    va("v_bfe_u32 v3, v0, 4, 1", V(3), V(0))
    va("v_bfe_u32 v4, v0, 2, 2", V(4), V(0))
    va("v_lshl_add_u32 v3, v3, 2, v4", V(3), V(3) + V(4))
    va("v_min_u32 v3, 6, v3", V(3), V(3))
    va("v_mul_u32_u24 v3, %d, v3" % KS, V(3), V(3))
    va("v_and_b32 v4, 3, v0", V(4), V(0))
    va("v_lshl_add_u32 v3, v4, 3, v3", V(3), V(3) + V(4))
    e("s_mul_i32 s69, s64, 96"); e("s_add_u32 s69, s69, s56")
    va("v_add_u32 v240, s69, v3", V(240), V(3))
    va("v_lshrrev_b32 v4, 4, v0", V(4), V(0))
    va("v_mul_u32_u24 v241, %d, v4" % (3 * 28 * 1024), V(241), V(4))
    va("v_and_b32 v4, 15, v0", V(4), V(0))
    va("v_lshl_add_u32 v241, v4, 4, v241", V(241), V(241) + V(4))
    e("s_mul_i32 s68, s64, %d" % (3 * 4 * 3 * 28 * 1024))
    e("s_mul_i32 s69, s67, %d" % (28 * 1024)); e("s_add_u32 s68, s68, s69")
    e("s_lshl_b32 s69, s66, 10"); e("s_add_u32 s68, s68, s69")
    e("s_lshl_b32 s69, s65, 8"); e("s_add_u32 s68, s68, s69")
    e("s_add_u32 s72, s8, %d" % WF_OFF); e("s_addc_u32 s73, s9, 0"); e("s_and_b32 s73, s73, 0xffff"); e("s_mov_b32 s74, %d" % WF_SIZE)
    E.wait_token(('w', 6, 1))
    for u in range(3):
        for i in range(8):
            a = 160 + 16 * u + 2 * i
            E.dsread("ds_read_b64_tr_b16 v[%d:%d], v240 offset:%d" % (a, a + 1, SL1 + i * 192 + u * 32), V(a, 2), V(240))
    for u in range(3):
        d = 80 if u % 2 == 0 else 112
        for i in range(8): E.mfma16(('v', d + 4 * i), ('v', 22), ('v', 160 + 16 * u + 2 * i), None)
        for j in range(4):
            p = 224 + 4 * j
            for dd in range(4):
                va("v_cvt_pk_bf16_f32 v%d, v%d, v%d" % (p + dd, d + 8 * dd + j, d + 8 * dd + 4 + j), V(p + dd), V(d + 8 * dd + j) + V(d + 8 * dd + 4 + j))
            e("s_add_u32 s69, s68, %d" % (u * 4 * 3 * 28 * 1024 + j * 7 * 1024))
            E.vstore("buffer_store_dwordx4 v[%d:%d], v241, s[72:75], s69 offen%s" % (p, p + 3, SF), V(p, 4), V(241), tok=('wst', u, j))
    E.wait_token(('x', 0, 3))
    st(1)
    for k in range(3): reads(0, k)
    mm(0, 0, 80); mm(0, 1, 112); pack(0, 0, 80); out(0, 0)
    mm(0, 2, 80); pack(0, 1, 112)
    E.wait(None, 0); E.barrier()
    pack(0, 2, 80)
    get_nonce('c')
    E._need([('wst', 2, 3)])
    e("s_lshl_b32 s79, s66, 2"); e("s_add_u32 s79, s79, s65"); e("s_lshl_b32 s79, s79, 1"); e("s_add_u32 s79, s79, s64"); e("s_lshl_b32 s79, s79, 2")
    e("s_lshl_b32 s69, s67, 8"); e("s_add_u32 s79, s79, s69"); e("s_add_u32 s79, s79, %d" % (G['FL_OFF'] + 12288))
    va("v_lshlrev_b32 v1, 10, v0", V(1), V(0))
    va("v_add_u32 v1, s79, v1", V(1), V(1))
    va("v_mov_b32 v2, s82", V(2), [])
    e("s_mov_b64 exec, 0xff")
    E.vstore("global_atomic_swap v1, v2, s[8:9] sc1", V(2), V(1))
    e("s_mov_b64 exec, -1")
    E._need([('st', 0, 0)])
    signal([78])
    st(2)
    e("s_mov_b32 s79, 0"); e("s_mov_b32 s61, 0x40000000")
    e("s_mov_b32 s80, 3"); e("s_mov_b32 s81, 0")
    e("s_branch FU_pb")

def tables(E, G):
    cfg = G['cfg']
    tb = np.zeros((64, 4), dtype=np.uint16)
    for l in range(64):
        n, g = l % 16, l // 16
        tb[l] = bf16bits(cfg.BT[n, 4 * g:4 * g + 4])
    E.raw(".p2align 8"); E.label("FU_bt"); E.raw(G['table'](tb.reshape(-1)))
    gc = np.zeros((16, 8)); gc[:, :7] = cfg.G[:, ::-1]
    ghi = bf16r(gc); glo = bf16r(gc - ghi.astype(np.float64))
    tg = np.zeros((64, 4), dtype=np.uint16)
    for l in range(64):
        n, g = l % 16, l // 16
        tg[l] = bf16bits((ghi if g < 2 else glo)[n, 4 * (g % 2):4 * (g % 2) + 4])
    E.label("FU_gt"); E.raw(G['table'](tg.reshape(-1)))
```
